```python
import torch

def _softmax(x, axis=-1):
    return torch.softmax(x, dim=axis)

def _gelu(x):
    return torch.nn.functional.gelu(x, approximate='tanh')

def _silu(x):
    return torch.nn.functional.silu(x)

def _sigmoid(x):
    return torch.sigmoid(x)

def _layernorm(x, axis=-1, eps=1e-05):
    m = x.mean(dim=axis, keepdim=True)
    v = x.var(dim=axis, keepdim=True, unbiased=False)
    return (x - m) / torch.sqrt(v + eps)

def _scatter_add(tgt, idx, src, axis=0):
    return tgt.clone().index_add_(axis, idx, src)

def _segment_sum(src, seg, n):
    out = torch.zeros((n,) + src.shape[1:], dtype=src.dtype)
    return out.index_add_(0, seg, src)

def _pad(x, pw):
    flat = tuple((v for pair in reversed(pw) for v in pair))
    return torch.nn.functional.pad(x, flat)
kernel_name = 'adaLN_cond__sliding_block_cached__glu_gated_swiglu__decode'

def setup_inputs():

    _w = lambda a: (lambda t: t.to(torch.bfloat16) if t.is_floating_point() else t)(torch.as_tensor(a))

    def _A_setup():
        B, Sq, D = (2, 1, 512)
        Hq, Hkv, Sk, Dh = (32, 32, 16384, 128)
        assert Hq % Hkv == 0, (Hq, Hkv)
        return {'x': _w((lambda *s: torch.randn(*s, dtype=torch.bfloat16) * 0.05)(B, Sq, D)), 'k_cache': _w((lambda *s: torch.randn(*s, dtype=torch.bfloat16) * 3.2)(B, Hkv, Sk, Dh)), 'v_cache': _w((lambda *s: torch.randn(*s, dtype=torch.bfloat16) * 3.2)(B, Hkv, Sk, Dh)), 'wq': _w((lambda *s: torch.randn(*s, dtype=torch.bfloat16) * 3.2)(D, Hq * Dh) * D ** (-0.5)), 'wo': _w((lambda *s: torch.randn(*s, dtype=torch.bfloat16) * 3.2)(Hq * Dh, D) * (Hq * Dh) ** (-0.5))}
    _A_in = _A_setup()

    def _B_setup():
        B, S, D, F = (2, 1, 512, 1376)
        return {'x': _w((lambda *s: torch.randn(*s, dtype=torch.bfloat16) * 0.05)(B, S, D)), 'w1': _w((lambda *s: torch.randn(*s, dtype=torch.bfloat16) * 1.6)(D, F) * (2.0 / D) ** 0.5), 'w3': _w((lambda *s: torch.randn(*s, dtype=torch.bfloat16) * 1.6)(D, F) * (2.0 / D) ** 0.5), 'w2': _w((lambda *s: torch.randn(*s, dtype=torch.bfloat16) * 1.6)(F, D) * (2.0 / F) ** 0.5)}
    _B_in = _B_setup()
    return {'A_x': _A_in['x'], 'A_k_cache': _A_in['k_cache'], 'A_v_cache': _A_in['v_cache'], 'A_wq': _A_in['wq'], 'A_wo': _A_in['wo'], 'B_x': _B_in['x'], 'B_w1': _B_in['w1'], 'B_w3': _B_in['w3'], 'B_w2': _B_in['w2'], 'c': _w((lambda *s: torch.randn(*s, dtype=torch.bfloat16) * 0.2)(2, 512) * 8.0), 'w_mod': _w((lambda *s: torch.randn(*s, dtype=torch.bfloat16) * 0.2)(512, 6 * 512) * 512 ** (-0.5) * 8.0)}

def reference(A_x, A_k_cache, A_v_cache, A_wq, A_wo, B_x, B_w1, B_w3, B_w2, c, w_mod):

    def _A_ref(x, k_cache, v_cache, wq, wo):
        B, Sq, D = x.shape
        Hq, Dh = (32, 128)
        Hkv, Sk = (k_cache.shape[1], k_cache.shape[2])
        W = min(4096, max(256, Sk // 4))
        rep = Hq // Hkv
        q = (lambda x, *d: x.permute(*d))((x @ wq).reshape(B, Sq, Hq, Dh), 0, 2, 1, 3)
        k = (lambda x, n, axis: torch.repeat_interleave(x, n, dim=axis))(k_cache[:, :, Sk - W:, :], rep, axis=1)
        v = (lambda x, n, axis: torch.repeat_interleave(x, n, dim=axis))(v_cache[:, :, Sk - W:, :], rep, axis=1)
        scores = torch.einsum('bhqd,bhkd->bhqk', q, k) * Dh ** (-0.5)
        p = _softmax(scores, axis=-1)
        o = torch.einsum('bhqk,bhkd->bhqd', p, v)
        return (lambda x, *d: x.permute(*d))(o, 0, 2, 1, 3).reshape(B, Sq, Hq * Dh) @ wo

    def _B_ref(x, w1, w3, w2):
        gate = torch.einsum('bsd,df->bsf', x, w1)
        up = torch.einsum('bsd,df->bsf', x, w3)
        h = _silu(gate) * up
        out = torch.einsum('bsf,fd->bsd', h, w2)
        return out
    x = A_x
    mod = (_silu(c) @ w_mod).reshape(c.shape[0], 6, 1, -1)
    sa, ca, ga, sb, cb, gb = (mod[:, 0].clone(), mod[:, 1].clone(), mod[:, 2].clone(), mod[:, 3].clone(), mod[:, 4].clone(), mod[:, 5].clone())
    h = _layernorm(x, axis=-1) * (1 + ca) + sa
    x = x + ga * _A_ref(h, A_k_cache, A_v_cache, A_wq, A_wo)
    h = _layernorm(x, axis=-1) * (1 + cb) + sb
    x = x + gb * _B_ref(h, B_w1, B_w3, B_w2)
    return x
```

```python
import sys, struct

KNAME = "adaLN_cond__sliding_block_cached__glu_gated_swiglu__decode_kernel"

def f2u(x): return struct.unpack("<I", struct.pack("<f", x))[0]
LOG2E = f2u(1.4426950408889634)
SCALE = f2u(128 ** -0.5)
EPS = f2u(1e-5)

WS_E   = 0x00000
WS_HDR = 0x00400
WS_MOD = 0x01000
WS_Q   = 0x08000
WS_ST  = 0x10000
WS_OP  = 0x20000
WS_HH  = 0x40000
WS_AP  = 0x50000
WS_PRB = 0x80000
WS_STAMP = 0x100000
ACT_BS = 1056
L_ACT = 0
L_QV  = L_ACT + 6400
L_ML  = L_QV + 256
L_PG  = L_ML + 8
L_NR  = L_ML + 12
L_PQ  = L_ML + 16
L_PS  = L_ML + 20
L_PE  = L_ML + 24
L_CNT = L_ML + 64
L_OP  = L_CNT + 64 + 128
L_RED = L_OP + 4096
L_SC  = L_RED + 1024
L_WT  = 20480
L_VX  = L_WT + 65536
assert L_SC + 8192 <= L_WT and L_OP % 16 == 0 and L_SC % 16 == 0

C_NONE, C_WO, C_F1, C_F2, C_MODB, C_MODA, C_Q = 0, 1, 2, 3, 4, 5, 6
RN = {0: "none", 1: "WO", 2: "F1", 3: "F2", 4: "MODB", 5: "MODA", 6: "Q"}
def cls(r, t):
    n = RN[r]
    if r in (C_WO, C_MODB, C_MODA, C_Q) and t % 8 == 3: n += "3"
    if r == C_F2 and t // 4 == 3: n += "3"
    return n
COST = {"Q": 620, "Q3": 900, "WO": 560, "WO3": 840, "MODA": 560, "MODA3": 860, "MODB": 530, "MODB3": 830, "F1": 220, "F2": 150, "F23": 250, "none": 0}
def role_map(mode=3, cost=COST):
    import itertools, random
    mod = lambda t: (C_MODA if t < 16 else C_MODB, t)
    h3 = [(C_Q, t) for t in range(64) if t % 8 == 3] + [mod(t) for t in range(48) if t % 8 == 3]
    hn = [mod(t) for t in range(16) if t % 8 != 3] + [(C_Q, t) for t in range(64) if t % 8 != 3] + [mod(t) for t in range(16, 48) if t % 8 != 3]
    nf1, nn, n3 = {3: ([4, 7, 4, 7, 4, 7, 4, 6], [0, 1, 0, 1, 0, 1, 0, 2], [2, 2, 2, 1, 2, 1, 2, 2]),
                   4: ([6, 5, 6, 5, 6, 5, 5, 5], [0, 1, 0, 1, 0, 1, 1, 1], [2, 2, 2, 1, 2, 1, 2, 2]),
                   5: ([5, 6, 5, 6, 5, 6, 5, 5], [0, 1, 0, 1, 0, 1, 0, 2], [2, 2, 2, 1, 2, 1, 2, 2])}[mode]
    X = []; f = 0
    for x in range(8):
        l = [(C_F2, 4 * x + i) for i in range(4)] + [(C_F1, f + i) for i in range(nf1[x])] + [(C_NONE, 0)] * nn[x]; f += nf1[x]
        X.append(l)
    for i in range(2):
        for x in range(8):
            if i < n3[x]: X[x].append(h3.pop(0))
    while hn:
        for x in range(8):
            if len(X[x]) < 24 and hn: X[x].append(hn.pop(0))
    c = lambda rt: cost[cls(*rt)]
    order = {C_MODA: 0, C_Q: 1, C_WO: 2, C_MODB: 3, C_F1: 4, C_F2: 5, C_NONE: 6}
    R = [None] * 256
    rnd_ = random.Random(1)
    for x in range(8):
        l = X[x]; assert len(l) == 24
        tot = lambda g: c((C_WO, g)) + sum(c(rt) for rt in l[3*g:3*g+3])
        bad = lambda: sum(tot(g) ** 2 for g in range(8))
        for _ in range(4000):
            a, b = rnd_.randrange(24), rnd_.randrange(24); o = bad()
            l[a], l[b] = l[b], l[a]
            if bad() > o: l[a], l[b] = l[b], l[a]
        for g in range(8):
            for s, rt in enumerate(sorted([(C_WO, g)] + l[3*g:3*g+3], key=lambda rt: order[rt[0]])): R[8 * (g + 8 * s) + x] = rt
    for c_, n in ((C_MODA, range(16)), (C_MODB, range(16, 48)), (C_F1, range(43)), (C_F2, range(32)), (C_Q, range(64))):
        assert sorted(t for r, t in R if r == c_) == list(n), c_
    return R
def split_table(RM, cost):
    T = [None] * 256
    for x in range(8):
        for g in range(8):
            ws = [8 * (g + 8 * s) + x for s in range(4)]
            c = [cost[w] if isinstance(cost, list) else cost[cls(*RM[w])] for w in ws]
            n = [256 + (sum(c) / 4 - ci) / 16 for ci in c]
            for _ in range(4):
                lo = [min(288, max(224, v)) for v in n]; d = 1024 - sum(lo)
                fr = [i for i in range(4) if (d > 0 and lo[i] < 288) or (d < 0 and lo[i] > 224)]
                n = [v + (d / len(fr) if i in fr else 0) for i, v in enumerate(lo)] if fr else lo
            a = [0]
            for v in n: a.append(a[-1] + v)
            a = [int(round(v)) for v in a]; assert a[4] == 1024
            for s, w in enumerate(ws):
                T[w] = (896 + a[s] - 224 * s, a[s + 1] - a[s] - 224); assert 0 <= T[w][1] <= 64
    return T
SPIN_MAX = 1 << 18
ST, SLOC, SXCC = 74, 75, 76

NOTES = {
    "L_nb1": "streaming waves: K then V of this workgroup's keys (range from L_table), 1 KB per load, at most 4 loads in flight per wave",
    "L_helper": "helper waves: LDS sentinels, launch tag, role dispatch",
    "L_r_moda": "roles MODA / MODB: 64 columns of silu(c) @ w_mod",
    "L_r_q": "role Q: LayerNorm + modulation + 64 columns of h @ wq",
    "L_r_wo": "role WO: 512 x 64 tile of wo",
    "L_r_f1": "role F1: 32 columns of w1 and w3",
    "L_r_f2": "role F2: 16 columns of w2",
    "L_svc1": "wave 0: fetch q for the streaming waves",
    "L_svc2": "wave 0: max / sum of this split's scores, for the streaming waves (LDS) and for the WO workgroups",
    "L_disp3": "idle-time preparation; wave 1 walks the tail code once (no barrier, no global access) to warm the instruction cache",
    "L_join": "the barrier opens when the streaming waves have ended; wave 0 publishes the partial attention output",
    "L_t_wo": "tail WO: gather the group's partial outputs, project, publish",
    "L_t_f1": "tail F1: residual, LayerNorm (applied after the product), gate/up, SwiGLU, publish",
    "L_t_f2": "tail F2: down projection, gated residual, output; advances the epoch word",
    "L_gtab": "per group: byte columns of w1/w3 and of w2 that its workgroups will read",
    "L_table": "per workgroup: role | tile << 3 | extra chunks << 9 | first extra chunk << 16 (chunk = 4 keys) | prefetch share << 26",
}
class G:
    def __init__(s, opts):
        s.L = []; s.o = opts; s.n = 0; s.tail = False; s.help = False
    def A(s, t):
        s.L.append("  " + t)
    def lab(s, t):
        if t in NOTES: s.L.append("; ---- " + NOTES[t])
        s.L.append(t + ":")
    def C(s, t): s.L.append("; ---- " + t)
    def uniq(s, p): s.n += 1; return f"L_{p}_{s.n}"
    def stamp(s, idx, lvl=1):
        m = s.o.get("stamps", 0)
        if m == 3 and idx not in (0, 6, 8): return
        if m and (m == lvl or idx in (0, 6, 8)) and not (lvl == 2 and m == 1):
            s.A(f"s_memrealtime s[{80+2*idx}:{81+2*idx}]")

def vr(a, n): return f"v[{a}:{a+n-1}]"

def wave_allreduce(g, op, v, t):
    A = g.A
    for r in (8, 4, 2, 1):
        A("s_nop 1")
        A(f"{op}_dpp v{v}, v{v}, v{v} row_ror:{r} row_mask:0xf bank_mask:0xf")
    A(f"v_mov_b32 v{t}, v{v}")
    A("s_nop 1")
    A(f"v_permlane16_swap_b32 v{t}, v{v}")
    A(f"{op} v{v}, v{v}, v{t}")
    A(f"v_mov_b32 v{t}, v{v}")
    A("s_nop 1")
    A(f"v_permlane32_swap_b32 v{t}, v{v}")
    A(f"{op} v{v}, v{v}, v{t}")

def rnd(g, d, s=None):
    g.A(f"v_cvt_pk_bf16_f32 v{d}, 0, v{s if s is not None else d}")

def spin_tail(g, l, e, sleep, mult=1):
    A = g.A
    A("s_cmp_eq_u64 vcc, 0")
    A(f"s_cbranch_scc1 {e}")
    if sleep: A(f"s_sleep {sleep}")
    A("s_add_u32 s70, s70, 1")
    A(f"s_cmp_lt_u32 s70, {SPIN_MAX*mult}")
    A(f"s_cbranch_scc1 {l}")
    g.lab(e)

def chk_sentinel(g, regs, tmp):
    A = g.A
    rs = list(regs)
    if len(rs) == 1:
        A(f"v_cmp_eq_u32 vcc, -1, v{rs[0]}")
        return
    if len(rs) == 2:
        A(f"v_max_u32 v{tmp}, v{rs[0]}, v{rs[1]}"); rs = []
    else:
        A(f"v_max3_u32 v{tmp}, v{rs[0]}, v{rs[1]}, v{rs[2]}"); rs = rs[3:]
    while len(rs) >= 2:
        A(f"v_max3_u32 v{tmp}, v{tmp}, v{rs[0]}, v{rs[1]}"); rs = rs[2:]
    if rs: A(f"v_max_u32 v{tmp}, v{tmp}, v{rs[0]}")
    A(f"v_cmp_eq_u32 vcc, -1, v{tmp}")

def poll_tagged(g, loads, tagregs, sleep=0):
    A = g.A
    l = g.uniq("polt"); e = g.uniq("poltd")
    A("s_mov_b32 s70, 0")
    g.lab(l)
    for x in loads: A(x)
    A("s_waitcnt vmcnt(0)")
    for i, r in enumerate(tagregs):
        if i == 0: A(f"v_cmp_ne_u32 vcc, s{ST}, v{r}")
        else:
            A(f"v_cmp_ne_u32 s[68:69], s{ST}, v{r}")
            A("s_or_b64 vcc, vcc, s[68:69]")
    spin_tail(g, l, e, sleep)

def poll_lds(g, loads, regs, tmp, sleep):
    A = g.A
    l = g.uniq("pl"); e = g.uniq("pld")
    A("s_mov_b32 s70, 0")
    g.lab(l)
    for x in loads: A(x)
    A("s_waitcnt lgkmcnt(0)")
    chk_sentinel(g, regs, tmp)
    spin_tail(g, l, e, sleep, 4)

def check_votes(g, va, vt):
    A = g.A
    A(f"v_lshlrev_b32 v{vt+6}, 5, v1")
    A(f"global_load_dword v{vt+5}, v{vt+6}, s[42:43] offset:{WS_HDR+4} sc1")
    A("s_waitcnt vmcnt(0)")
    A(f"v_subrev_u32 v{vt+5}, s{ST}, v{vt+5}")
    A(f"v_cmp_eq_u32 vcc, 1, v{vt+5}")
    A("s_bcnt1_i32_b64 s70, vcc")
    A(f"v_cmp_eq_u32 vcc, 0, v{vt+5}")
    A("s_bcnt1_i32_b64 s71, vcc")
    A("s_cmp_gt_u32 s70, s71")
    A("s_cselect_b32 s71, 4, 0")
    if "near" in g.o: A(f"s_mov_b32 s71, {4*g.o['near']}")
    A(f"s_sub_u32 s68, s{SXCC}, s{ST}")
    A("s_xor_b32 s71, s71, s68"); A("s_and_b32 s71, s71, 4"); A("s_lshl_b32 s71, s71, 11")
    A(f"v_mov_b32 v{vt}, s71")
    A(f"ds_write_b32 v38, v{vt} offset:{L_NR}")

def pub_local(g, ins):
    A = g.A
    l = g.uniq("pf"); e = g.uniq("pe")
    A(f"s_cmp_eq_u32 s{SLOC}, 1")
    A(f"s_cbranch_scc0 {l}")
    A(ins)
    A(f"s_branch {e}")
    g.lab(l)
    A(ins + " sc1")
    g.lab(e)

def hs_signal(g, vt, vt2):
    A = g.A
    A(f"v_mov_b32 v{vt2}, 1")
    A("s_mov_b64 exec, 1")
    A(f"ds_add_u32 v38, v{vt2} offset:{L_CNT}")
    A("s_mov_b64 exec, -1")
def hs_wait(g, target, vt2, sleep=1):
    A = g.A
    l = g.uniq("hs"); e = g.uniq("hsd")
    A("s_mov_b32 s70, 0")
    g.lab(l)
    A(f"ds_read_b32 v{vt2}, v38 offset:{L_CNT}")
    A("s_waitcnt lgkmcnt(0)")
    A(f"v_cmp_gt_u32 vcc, {target}, v{vt2}")
    spin_tail(g, l, e, sleep, 8)
def dma_loop(g, n, step, flags, pace=0):
    A = g.A
    l = g.uniq("dma"); e = g.uniq("dmae")
    if isinstance(n, int):
        A(f"s_add_u32 s51, s50, {n*1024}")
    else:
        A(f"s_add_u32 s51, s50, {n}")
        A("s_cmp_lt_u32 s50, s51")
        A(f"s_cbranch_scc0 {e}")
    g.lab(l)
    A("s_mov_b32 m0, s50")
    A("s_add_u32 s50, s50, 1024")
    if not g.o.get("nodma"):
        A(f"buffer_load_dwordx4 v2, s[44:47], s49 offen {flags} lds")
    A(f"s_add_u32 s49, s49, {step}")
    if pace: A(f"s_waitcnt vmcnt({pace-1})")
    A("s_cmp_lt_u32 s50, s51")
    A(f"s_cbranch_scc1 {l}")
    g.lab(e)

VW, VA = 40, 104

def srd(g, d, base, nbytes):
    A = g.A
    A(f"s_mov_b32 s{d}, s{base}")
    A(f"s_mov_b32 s{d+1}, s{base+1}")
    A(f"s_mov_b32 s{d+2}, {nbytes}")
    A(f"s_mov_b32 s{d+3}, 0x20000")

def tr64_addr(g):
    A = g.A
    A("v_lshrrev_b32 v2, 2, v1")
    A("v_bfe_u32 v3, v1, 1, 1")
    A("s_lshl_b32 s49, s5, 1")
    A("v_or_b32 v3, s49, v3")
    A("v_and_b32 v10, 6, v2")
    A("v_xor_b32 v3, v3, v10")
    A("v_lshlrev_b32 v2, 7, v2")
    A("v_lshl_add_u32 v2, v3, 4, v2")
    A("v_and_b32 v3, 1, v1")
    A("v_lshl_add_u32 v2, v3, 3, v2")
    A(f"v_add_u32 v2, {L_WT}, v2")
def tr_reads(g, nk, mstep, hstep):
    A = g.A
    for m in range(nk):
        for h in range(2):
            A(f"ds_read_b64_tr_b16 {vr(VW+4*m+2*h,2)}, v2 offset:{m*mstep+h*hstep}")
        if m >= 5: A("s_waitcnt lgkmcnt(10)")
    A("s_waitcnt lgkmcnt(0)")
def tr_tile64(g):
    tr64_addr(g)
    tr_reads(g, 16, 4096, 2048)
def gemv_fused(g, vaddr, D):
    A = g.A
    def rd(m):
        for h in range(2):
            A(f"ds_read_b64_tr_b16 {vr(VW+4*m+2*h,2)}, v2 offset:{m*4096+h*2048}")
        A(f"ds_read_b128 {vr(VA+4*m,4)}, v{vaddr} offset:{64*m}")
    for m in range(5): rd(m)
    for m in range(16):
        A(f"s_waitcnt lgkmcnt({3*(min(m+5,16)-m-1)})")
        c = "0" if m == 0 else vr(D, 4)
        A(f"v_mfma_f32_16x16x32_bf16 {vr(D,4)}, {vr(VW+4*m,4)}, {vr(VA+4*m,4)}, {c}")
        if m + 5 < 16: rd(m + 5)
    A("s_nop 7")

def batch_reduce2(g, va, vb, ta, tb):
    A = g.A
    A("s_nop 0")
    for m in ("quad_perm:[1,0,3,2]", "quad_perm:[2,3,0,1]", "row_ror:8"):
        A(f"v_add_f32_dpp v{va}, v{va}, v{va} {m} row_mask:0xf bank_mask:0xf")
        A(f"v_add_f32_dpp v{vb}, v{vb}, v{vb} {m} row_mask:0xf bank_mask:0xf")
        A("s_nop 0")
    for sw in ("v_permlane16_swap_b32", "v_permlane32_swap_b32"):
        A(f"v_mov_b32 v{ta}, v{va}")
        A(f"v_mov_b32 v{tb}, v{vb}")
        A("s_nop 0")
        A(f"{sw} v{ta}, v{va}")
        A(f"{sw} v{tb}, v{vb}")
        A(f"v_add_f32 v{va}, v{va}, v{ta}")
        A(f"v_add_f32 v{vb}, v{vb}, v{tb}")

def ln_partial(g, x):
    A = g.A
    A(f"v_add_f32 v8, v{x}, v{x+1}"); A(f"v_mul_f32 v9, v{x}, v{x}")
    A(f"v_add_f32 v10, v{x+2}, v{x+3}"); A(f"v_mul_f32 v11, v{x+2}, v{x+2}")
    A(f"v_fmac_f32 v9, v{x+1}, v{x+1}"); A(f"v_fmac_f32 v11, v{x+3}, v{x+3}")
    A("v_add_f32 v8, v8, v10"); A("v_add_f32 v9, v9, v11")
    batch_reduce2(g, 8, 9, 10, 11)
    A("ds_write_b64 v5, v[8:9]")
def ln_apply(g, x, t):
    A = g.A
    A(f"ds_read_b128 {vr(t,4)}, v6")
    A(f"ds_read_b128 {vr(t+4,4)}, v6 offset:16")
    A("s_waitcnt lgkmcnt(0)")
    A(f"v_pk_add_f32 {vr(t,2)}, {vr(t,2)}, {vr(t+2,2)}")
    A(f"v_pk_add_f32 {vr(t+4,2)}, {vr(t+4,2)}, {vr(t+6,2)}")
    A(f"v_pk_add_f32 {vr(t,2)}, {vr(t,2)}, {vr(t+4,2)}")
    A(f"v_mul_f32 v8, 0x{f2u(1/512):08x}, v{t}")
    A(f"v_mul_f32 v9, 0x{f2u(1/512):08x}, v{t+1}")
    A("v_fma_f32 v9, -v8, v8, v9")
    rnd(g, 8)
    A("v_max_f32 v9, 0, v9")
    rnd(g, 9)
    for i in range(2): A(f"v_sub_f32 v{x+i}, v{x+i}, v8")
    A(f"v_add_f32 v9, 0x{EPS:08x}, v9")
    for i in range(2, 4): A(f"v_sub_f32 v{x+i}, v{x+i}, v8")
    rnd(g, 9)
    rnd(g, x)
    A("v_sqrt_f32 v9, v9")
    rnd(g, x+1)
    rnd(g, 9)
    rnd(g, x+2)
    A("v_rcp_f32 v9, v9")
    rnd(g, x+3)
    for i in range(4): A(f"v_mul_f32 v{x+i}, v{x+i}, v9")
    for i in range(4): rnd(g, x+i)

def act_addr(g, v, base, bstride):
    A = g.A
    A(f"v_and_b32 v{v}, 1, v1")
    A(f"v_mul_u32_u24 v{v}, {bstride}, v{v}")
    A(f"v_lshrrev_b32 v3, 4, v1")
    A(f"v_lshl_add_u32 v{v}, v3, 4, v{v}")
    if base: A(f"v_add_u32 v{v}, {base}, v{v}")

def gemv(g, nk, vaddr, D):
    A = g.A
    first = min(nk, 12)
    for m in range(first):
        A(f"ds_read_b128 {vr(VA+4*m,4)}, v{vaddr} offset:{64*m}")
    issued = first
    for m in range(nk):
        A(f"s_waitcnt lgkmcnt({issued-m-1})")
        c = "0" if m == 0 else vr(D, 4)
        A(f"v_mfma_f32_16x16x32_bf16 {vr(D,4)}, {vr(VW+4*m,4)}, {vr(VA+4*m,4)}, {c}")
        if issued < nk:
            A(f"ds_read_b128 {vr(VA+4*issued,4)}, v{vaddr} offset:{64*issued}")
            issued += 1
    A("s_nop 7")

def guard(g, r):
    g.A(f"v_min_u32 v{r}, s72, v{r}")

def unpack2(g, d, s):
    g.A(f"v_lshlrev_b32 v{d}, 16, v{s}")
    g.A(f"v_and_b32 v{d+1}, s73, v{s}")
def unpack4(g, d, s, step=1):
    unpack2(g, d, s); unpack2(g, d+2, s+step)

def silu4(g, x, t):
    A = g.A
    for i in range(4): A(f"v_mul_f32 v{t+i}, 0x{LOG2E ^ 0x80000000:08x}, v{x+i}")
    for i in range(4): A(f"v_exp_f32 v{t+i}, v{t+i}")
    A("s_nop 0")
    for i in range(4): A(f"v_add_f32 v{t+i}, 1.0, v{t+i}")
    for i in range(4): A(f"v_rcp_f32 v{t+i}, v{t+i}")
    A("s_nop 0")
    for i in range(4): A(f"v_mul_f32 v{x+i}, v{x+i}, v{t+i}")

EX8 = ["s_mov_b32 exec_lo, 0x00030003", "s_mov_b32 exec_hi, 0x00030003"]

def gen(opts):
    g = G(opts); A = g.A
    D = opts.get("D", 4); NS = 36; NO = 8; NL = opts.get("NL", 8)
    LDS_BYTES = L_VX + 8192 * NL
    RM = role_map(opts.get("rmode", 4))
    cost = dict(COST)
    for k in list(cost):
        if "c" + k in opts: cost[k] = opts["c" + k]
    if opts.get("even"): cost = {k: 0 for k in cost}
    SP = split_table(RM, opts.get("ctab", cost))
    free = lambda w: RM[w][0] in (C_NONE, C_MODA, C_MODB, C_Q)
    RK = [sum(1 for v in range(w % 8, w, 8) if free(v)) for w in range(256)]
    WFL = opts.get("wflags", "nt").replace("_", " ")
    hdr = open(opts["ref"]).read().split("; Override launch")[0]
    g.L.append(hdr.rstrip("\n"))
    g.L.append(""";
;    answers faster) and the sizes of the key ranges only affect speed.""")
    g.L.append(f"; @launch grid=(256,1,1) block=(768,1,1) lds={LDS_BYTES}")
    g.L.append('.amdgcn_target "amdgcn-amd-amdhsa--gfx950"\n.text')
    g.L.append(f".globl {KNAME}\n.p2align 8\n.type {KNAME},@function\n{KNAME}:")
    A("s_cmpk_ge_u32 s2, 256")
    A("s_cbranch_scc1 L_end")
    A("s_load_dwordx2 s[44:45], s[0:1], 8")
    g.stamp(0)
    A("v_readfirstlane_b32 s5, v0")
    A("s_and_b32 s6, s2, 63")
    A("s_lshr_b32 s7, s2, 6")
    A("s_lshr_b32 s5, s5, 6")
    A("v_and_b32 v1, 63, v0")
    A("s_cmp_lt_u32 s5, 4")
    A("s_cbranch_scc1 L_helper")

    RB = 24
    def slot(j): return RB + 4 * j
    ROTM = opts.get("rot", 5)
    A("s_lshl_b32 s10, s6, 22")
    A(f"s_mul_i32 s58, s7, {224*1024}")
    A(f"s_add_u32 s11, s10, {0x300000-4*1024}")
    A("v_lshl_add_u32 v2, v0, 4, s11")
    A("s_lshl_b32 s46, 1, 28"); A("s_lshl_b32 s47, 1, 17")
    if ROTM:
        A(f"s_mul_i32 s12, s6, {ROTM}"); A("s_and_b32 s12, s12, 15"); A("s_lshl_b32 s12, s12, 13")
        A("s_add_u32 s12, s12, s58")
    else: A("s_mov_b32 s12, s58")
    A("s_waitcnt lgkmcnt(0)")
    def sched(txt):
        out = []
        for part in str(txt).split(","):
            p, _, u = part.partition(".")
            out.append(([int(c) for c in p], int(u) if u else 999))
        return lambda j: next(p[j % len(p)] for p, u in out if j < u)
    SCH = sched(opts.get("sch", D)); SCE = sched(opts.get("sce", D)); XM = opts.get("xm", 0x55)
    step = [D]
    def throttle(_=None):
        j = step[0]; step[0] += 1
        d = SCH(j); e = SCE(j)
        A(f"s_waitcnt vmcnt({d-1})")
        if e < d:
            l = g.uniq("th")
            A("s_bitcmp0_b32 s68, 0")
            A(f"s_cbranch_scc1 {l}")
            A(f"s_waitcnt vmcnt({e-1})")
            g.lab(l)
    def issue(t, i, lds=None):
        if i < NO:
            A(f"buffer_load_dwordx4 {vr(slot(i),4)}, v2, s[{44+4*t}:{47+4*t}], s13 offen nt")
            A("s_addk_i32 s13, 0x2000")
            return
        if lds is not None:
            A(f"s_add_u32 m0, s15, {lds*1024}")
            A("s_nop 0")
            A(f"buffer_load_dwordx4 v2, s[{44+4*t}:{47+4*t}], s12 offen nt lds")
        else:
            A(f"buffer_load_dwordx4 {vr(slot(i),4)}, v2, s[{44+4*t}:{47+4*t}], s12 offen nt")
        if (t, i) == (1, NS - 1): return
        if not ROTM and i == NS - 1: A("s_mov_b32 s12, s58"); return
        A("s_addk_i32 s12, 0x2000")
        if ROTM and i >= NO + 12:
            A("s_cmp_ge_u32 s12, s59")
            A("s_cselect_b32 s12, s58, s12")
    def optional(i, body):
        l = g.uniq("opt")
        A(f"s_cmp_gt_u32 s60, {i}")
        A(f"s_cbranch_scc1 {l}")
        body()
        g.lab(l)
    def optionals(t, between=None):
        l = g.uniq("opts")
        A("s_mov_b32 s13, s61")
        for i in range(NO - 1, -1, -1):
            A(f"s_cmp_gt_u32 s60, {i}")
            A(f"s_cbranch_scc1 {l}")
            throttle(99); issue(t, i)
        g.lab(l)
    g.lab("L_nb1")
    assert D <= 4
    for j in range(NO, NS):
        if j >= NO + D: throttle(j)
        issue(0, j)
        if j == NO + D - 1:
            if opts.get("pst"): g.stamp(2)
            A("s_getpc_b64 s[56:57]")
            g.lab("L_pc")
            A("s_lshl_b32 s3, s2, 2")
            A("s_add_u32 s3, s3, L_table-L_pc")
            A("s_load_dword s14, s[56:57], s3")
            A("s_load_dwordx2 s[48:49], s[0:1], 16")
            A("s_load_dwordx4 s[20:23], s[0:1], 24")
            A("s_load_dwordx2 s[28:29], s[0:1], 80")
            if opts.get("stamps"): A("s_load_dwordx2 s[42:43], s[0:1], 104")
            A("s_barrier")
            A("s_sub_u32 s9, s5, 4")
            if "sce" in opts: A("s_and_b32 s68, s2, 7"); A(f"s_lshr_b32 s68, {XM}, s68")
            A("s_mov_b64 s[50:51], s[46:47]")
            A("s_mov_b32 s52, 0xcccccccc"); A("s_mov_b32 s53, 0xcccccccc")
            A("s_mov_b32 s54, 0xaaaaaaaa"); A("s_mov_b32 s55, 0xaaaaaaaa")
            A(f"s_mul_i32 s15, s9, {NL*1024}")
            A(f"s_add_u32 s15, s15, {L_VX}")
            A(f"s_add_u32 s59, s58, {28*8192}")
            A("v_mov_b32 v4, 0")
            A("v_lshrrev_b32 v5, 3, v1")
            A("v_and_b32 v6, 6, v5")
            A("v_xor_b32 v6, v6, v1")
            A("v_and_b32 v6, 7, v6")
            A("s_lshl_b32 s33, s9, 6")
            A("s_movk_i32 s26, 6144"); A(f"s_mov_b32 s30, {512*6144}"); A("s_mov_b32 s31, s47")
            A("s_lshl_b32 s34, s9, 13"); A(f"s_add_u32 s34, s34, {L_WT}"); A("s_add_u32 s35, s34, 8192")
            A("s_and_b32 s36, s2, 7"); A("s_lshl_b32 s36, s36, 1"); A("s_and_b32 s37, s9, 1"); A("s_add_u32 s36, s36, s37")
            A("s_lshr_b32 s37, s9, 1"); A("s_lshl_b32 s37, s37, 4"); A("s_add_u32 s36, s36, s37"); A("s_lshl_b32 s36, s36, 6")
            A("s_waitcnt lgkmcnt(0)")
            A("s_and_b32 s27, s14, 7")
            A(f"s_cmp_eq_u32 s27, {C_Q}")
            A("s_cselect_b64 s[28:29], s[20:21], s[28:29]"); A("s_cselect_b32 s26, 0x2000, s26"); A("s_cselect_b32 s30, 0x400000, s30")
            A(f"s_cmp_eq_u32 s27, {C_WO}")
            A("s_cselect_b64 s[28:29], s[22:23], s[28:29]"); A("s_cselect_b32 s26, 0x400, s26"); A("s_cselect_b32 s30, 0x400000, s30")
            A("s_cselect_b32 s33, s36, s33")
            A(f"s_cselect_b32 s27, {C_MODB}, s27")
            A("v_mul_u32_u24 v5, s26, v5")
            A("v_lshl_add_u32 v5, v6, 4, v5")
            A("v_mov_b32 v6, 1")
            A("s_mul_i32 s33, s33, s26")
            A("s_bfe_u32 s32, s14, 0x60003"); A("s_lshl_b32 s32, s32, 7"); A("s_add_u32 s33, s33, s32")
            A("s_lshl_b32 s26, s26, 3")
        JW = opts.get("JW", NO + D - 1)
        for pos, cond in ((NO + D - 1, f"s_cmp_lt_u32 s27, {C_MODA if JW != NO + D - 1 else C_MODB}"), (JW, f"s_cmp_lg_u32 s27, {C_MODB}"))[:1 + (JW != NO + D - 1)]:
            if j == pos:
                l = g.uniq("wl"); e = g.uniq("we")
                A(cond); A(f"s_cbranch_scc1 {e}")
                g.lab(l)
                A("s_mov_b32 m0, s34")
                throttle(); step[0] -= 1
                if not opts.get("nodma"): A(f"buffer_load_dwordx4 v5, s[28:31], s33 offen {WFL} lds")
                A("s_add_u32 s33, s33, s26")
                A("s_addk_i32 s34, 1024")
                A("s_cmp_lt_u32 s34, s35"); A(f"s_cbranch_scc1 {l}")
                g.lab(e)
            if j == pos + D:
                e = g.uniq("ws")
                A(cond); A(f"s_cbranch_scc1 {e}")
                A("s_mov_b64 exec, 1")
                A(f"ds_add_u32 v4, v6 offset:{L_CNT}")
                A("s_mov_b64 exec, -1")
                g.lab(e)
        if j == NO + 11:
            A("s_bfe_u32 s61, s14, 0xa0010"); A("s_lshl_b32 s61, s61, 10")
            A("s_bfe_u32 s60, s14, 0x70009")
            A("s_sub_u32 s60, s9, s60"); A("s_add_u32 s60, s60, 64"); A("s_lshr_b32 s60, s60, 3")
            A("v_bfrev_b32 v3, v1")
            A("v_lshrrev_b32 v3, 28, v3")
            A("v_cmp_gt_u32 s[66:67], s60, v3")
            A("v_and_b32 v3, 15, v1")
            A("v_lshlrev_b32 v3, 4, v3")
            optionals(0)
        if j == opts.get("JQ", 23): A(f"ds_write_b32 v4, v4 offset:{L_PQ}")
        if j == opts.get("JG", 38): A(f"ds_write_b32 v4, v4 offset:{L_PG}")
    for k in range(NL):
        throttle(NS + k)
        issue(1, NO + k, lds=k)
        if NS + k == opts.get("JG", 38): A(f"ds_write_b32 v4, v4 offset:{L_PG}")
    g.stamp(1)
    T, X = 8, 16
    NOCOMP = opts.get("nocomp", 0)
    if not NOCOMP:
        poll_lds(g, [f"ds_read_b128 v[4:7], v3 offset:{L_QV}"], [4, 5, 6, 7], 8, 2)
    if not opts.get("pst"): g.stamp(2)
    A(f"s_waitcnt vmcnt({NL})")
    nxt = NO + NL
    for G_ in (1, 2, 3, 4, 0):
        ne = 4 if G_ == 4 else 8
        if not NOCOMP:
            for tt in range(4):
                for e in range(ne):
                    c = "0" if tt == 0 else f"v{T+e}"
                    A(f"v_dot2_f32_bf16 v{T+e}, v{slot(8*G_+e)+tt}, v{4+tt}, {c}")
        if G_ != 4 and nxt < 8 * ((G_ or 4) + 1):
            if NOCOMP: throttle(99)
            issue(1, nxt); nxt += 1
        if NOCOMP: continue
        for e in range(0, ne, 2):
            A(f"v_add_f32_dpp v{T+e}, v{T+e}, v{T+e} row_ror:8 row_mask:0xf bank_mask:0x3")
            A(f"v_add_f32_dpp v{T+e}, v{T+e+1}, v{T+e+1} row_ror:8 row_mask:0xf bank_mask:0xc")
        if ne == 4: A("s_nop 0")
        for h in range(ne // 4):
            d = 3 if G_ == 4 else X + 2 * G_ + h
            A(f"v_add_f32_dpp v{d}, v{T+4*h}, v{T+4*h} row_shl:4 row_mask:0xf bank_mask:0x5")
            A(f"v_add_f32_dpp v{d}, v{T+4*h+2}, v{T+4*h+2} row_shr:4 row_mask:0xf bank_mask:0xa")
    PR = [4, 6, 20]
    if NOCOMP:
        for n in range(4): A(f"v_mov_b32 v{X+n}, 1.0")
    else:
        A("v_add_f32_dpp v3, v3, v3 quad_perm:[2,3,0,1] row_mask:0xf bank_mask:0xf")
        for n in (2, 3, 4, 5, 6, 7, 0, 1):
            A(f"v_add_f32_dpp v{X+n}, v{X+n}, v{X+n} quad_perm:[2,3,0,1] row_mask:0xf bank_mask:0xf")
        for n in range(4):
            A(f"v_cndmask_b32 v{T+n}, v{X+2*n}, v{X+2*n+1}, s[52:53]")
        A(f"v_add_f32_dpp v{X+2}, v3, v3 quad_perm:[1,0,3,2] row_mask:0xf bank_mask:0xf")
        for n in range(4):
            A(f"v_add_f32_dpp v{T+n}, v{T+n}, v{T+n} quad_perm:[1,0,3,2] row_mask:0xf bank_mask:0xf")
        for n in range(2):
            A(f"v_cndmask_b32 v{X+n}, v{T+2*n}, v{T+2*n+1}, s[54:55]")
        for n in range(3): rnd(g, X+n)
        for n in range(3): A(f"v_mul_f32 v{X+n}, 0x{SCALE:08x}, v{X+n}")
        for n in range(3): rnd(g, X+n)
        A(f"v_mov_b32 v{X+3}, 0xff800000")
        A("s_mov_b32 s52, 0xeeeeeeee"); A("s_mov_b32 s53, 0xeeeeeeee")
        A(f"v_cndmask_b32 v{X}, v{X}, v{X+3}, s[66:67]")
        A(f"v_cndmask_b32 v{X+2}, v{X+2}, v{X+3}, s[52:53]")
    A("s_lshl_b32 s11, s9, 10")
    A("v_lshl_add_u32 v3, v1, 4, s11")
    A(f"ds_write_b128 v3, v[{X}:{X+3}] offset:{L_SC}")
    g.stamp(3)
    throttle(99); issue(1, nxt); nxt += 1
    A("v_lshl_add_u32 v3, v1, 4, s15")
    for k in range(NL):
        A(f"ds_read_b128 {vr(slot(NO+k),4)}, v3 offset:{k*1024}")
    A(f"v_max3_f32 v22, v{X}, v{X+1}, v{X+2}")
    wave_allreduce(g, "v_max_f32", 22, 23)
    for n in range(3): A(f"v_sub_f32 v{X+n}, v{X+n}, v22")
    for n in range(3): A(f"v_mul_f32 v{X+n}, 0x{LOG2E:08x}, v{X+n}")
    for n in range(3): A(f"v_exp_f32 v{X+n}, v{X+n}")
    A("s_nop 0")
    for n in range(3):
        A(f"v_cvt_pk_bf16_f32 v{PR[n]}, v{X+n}, 0")
        A(f"v_cvt_pk_bf16_f32 v{PR[n]+1}, 0, v{X+n}")
    for e in range(8): A(f"v_mov_b32 v{T+e}, 0")
    A("s_lshl_b32 s11, s9, 9")
    A("v_and_b32 v3, 15, v1")
    A("v_lshlrev_b32 v3, 5, v3")
    A("v_lshrrev_b32 v16, 4, v1")
    A("v_lshl_add_u32 v3, v16, 3, v3")
    A("v_add_u32 v3, s11, v3")
    A(f"v_mov_b32 v16, {L_ML}")
    def pv(i):
        if NOCOMP: return
        c = ((i & 1) << 3) | (((i >> 1) & 1) << 2) | (((i >> 2) & 1) << 1) | ((i >> 3) & 1)
        pr = PR[i >> 4]
        for tt in range(4):
            for hf in range(2):
                A(f"v_dot2c_f32_bf16_dpp v{T+2*tt+hf}, v{pr+hf}, v{slot(i)+tt} row_newbcast:{c} row_mask:0xf bank_mask:0xf")
    def pvx(i):
        if i < NO: optional(i, lambda: pv(i))
        else: pv(i)
    A("s_waitcnt lgkmcnt(0)")
    per = opts.get("pvper", 3)
    BURST = opts.get("burst", 4)
    order = list(range(NO, nxt)); done = 0
    nm = lambda k: sum(1 for s_ in order[k+1:] if s_ >= NO)
    optionals(1)
    order += list(range(NO - 1, -1, -1))
    rest = list(range(nxt, NS))
    for r, i in enumerate(rest):
        if len(rest) - r > BURST: throttle(99)
        ok = [k for k in range(done, len(order)) if nm(k) >= D - 1] if len(rest) - r > BURST else []
        issue(1, i); order.append(i)
        if i == opts.get("JS", 24): A(f"ds_write_b32 v16, v16 offset:{L_PS-L_ML}")
        for k in ok[:per]: pvx(order[k]); done += 1
    g.stamp(7)
    if not NOCOMP:
        poll_lds(g, ["ds_read_b32 v18, v16"], [18], 17, 2)
    g.stamp(4)
    A("v_sub_f32 v22, v22, v18")
    A(f"v_mul_f32 v22, 0x{LOG2E:08x}, v22")
    A("v_exp_f32 v22, v22")
    while done < NS:
        if nm(done) < D + BURST: A(f"s_waitcnt vmcnt({nm(done)})")
        pvx(order[done]); done += 1
    g.stamp(5); g.stamp(5, 2)
    A("s_nop 2")
    for j in range(4):
        A(f"v_permlane32_swap_b32 v{T+j}, v{T+j+4}")
    for j in range(4):
        A(f"v_add_f32 v{T+j}, v{T+j}, v{T+j+4}")
    A("s_nop 0")
    for j in range(2):
        A(f"v_permlane16_swap_b32 v{T+j}, v{T+j+2}")
    for j in range(2):
        A(f"v_add_f32 v{T+j}, v{T+j}, v{T+j+2}")
    for j in range(2):
        A(f"v_mul_f32 v{T+j}, v{T+j}, v22")
    A(f"ds_write_b64 v3, v[{T}:{T+1}] offset:{L_OP}")
    A("s_waitcnt lgkmcnt(0)")
    if opts.get("stamps") in (1, 2):
        g.stamp(6)
        A("s_lshl_b32 s3, s2, 7")
        A("s_lshl_b32 s4, s9, 2")
        A("s_add_u32 s4, s4, s3")
        A(f"s_add_u32 s4, s4, {WS_STAMP+96}")
        A("v_mov_b32 v2, s4")
        A("s_waitcnt lgkmcnt(0)")
        A("v_mov_b32 v3, s92")
        A("global_store_dword v2, v3, s[42:43]")
        A("s_cmp_lg_u32 s5, 4")
        A("s_cbranch_scc1 L_end")
        A(f"s_add_u32 s3, s3, {WS_STAMP+64}")
        A("v_mov_b32 v2, s3")
        A("s_waitcnt lgkmcnt(0)")
        for i in range(8):
            A(f"v_mov_b32 v3, s{80+2*i}")
            A(f"global_store_dword v2, v3, s[42:43] offset:{4*i}")
    A("s_endpgm")

    g.lab("L_helper")
    g.help = True
    if opts.get("nohelp") == 1: A("s_endpgm")
    A("s_getpc_b64 s[56:57]")
    g.lab("L_pc2")
    A("s_lshl_b32 s3, s2, 2")
    A("s_add_u32 s3, s3, L_table-L_pc2")
    A("s_load_dwordx16 s[16:31], s[0:1], 0")
    A("s_load_dword s14, s[56:57], s3")
    A("s_load_dwordx8 s[32:39], s[0:1], 64")
    A("s_load_dwordx4 s[40:43], s[0:1], 96")
    A("s_and_b32 s8, s2, 7")
    A("s_lshl_b32 s3, s8, 3")
    A("s_add_u32 s3, s3, L_gtab-L_pc2")
    A("s_load_dwordx2 s[100:101], s[56:57], s3")
    if opts.get("cpf", 0):
        A(f"s_cmpk_lt_u32 s2, {256 - 8*opts.get('cpf', 1)}"); A("s_cbranch_scc1 L_nopf")
        A("v_lshlrev_b32 v2, 7, v0")
        A("v_min_u32 v2, L_end-L_pc2, v2")
        A("global_load_dword v167, v2, s[56:57]")
        g.lab("L_nopf")
    if opts.get("amp"): A("s_memrealtime s[78:79]")
    A("s_mov_b32 s72, 0xfffffffe")
    A("s_mov_b32 s73, 0xffff0000")
    A("v_mov_b32 v4, -1"); A("v_mov_b32 v5, -1"); A("v_mov_b32 v6, -1"); A("v_mov_b32 v7, -1")
    A("v_lshlrev_b32 v2, 4, v0")
    A(f"ds_write_b128 v2, v[4:7] offset:{L_SC}")
    A(f"ds_write_b128 v2, v[4:7] offset:{L_SC+4096}")
    A("v_lshlrev_b32 v2, 2, v1")
    A(f"ds_write_b32 v2, v4 offset:{L_QV}")
    A("v_mov_b32 v38, 0")
    A(f"ds_write_b128 v38, v[4:7] offset:{L_ML}")
    A(f"ds_write_b128 v38, v[4:7] offset:{L_PQ}")
    A(f"ds_write_b32 v38, v38 offset:{L_CNT}")
    A(f"s_getreg_b32 s{SXCC}, hwreg(HW_REG_XCC_ID, 0, 4)")
    A("v_lshrrev_b32 v12, 3, v0")
    A("v_lshlrev_b32 v12, 5, v12")
    A("v_bfe_u32 v3, v1, 2, 1")
    A("v_lshl_add_u32 v12, v3, 10, v12")
    A("v_and_b32 v8, 3, v1")
    A("v_lshl_add_u32 v13, v8, 3, v12")
    A("v_and_b32 v12, 0xffffffdf, v12")
    A("v_lshl_add_u32 v12, v8, 4, v12")
    A("v_bfe_u32 v8, v1, 3, 1")
    A("v_lshl_add_u32 v12, v8, 3, v12")
    A("v_lshl_add_u32 v12, v3, 5, v12")
    A("s_waitcnt lgkmcnt(0)")
    A("s_barrier")
    A(f"s_load_dword s{ST}, s[42:43], {WS_E}")
    A("s_and_b32 s13, s14, 7")
    A("s_bfe_u32 s61, s14, 0x60003")
    A(f"s_cmp_eq_u32 s13, {C_Q}"); A("s_cbranch_scc1 L_r_q")
    A(f"s_cmp_ge_u32 s13, {C_MODB}"); A("s_cbranch_scc1 L_r_moda")
    A(f"s_cmp_eq_u32 s13, {C_WO}"); A("s_cbranch_scc1 L_r_wo")
    A(f"s_cmp_eq_u32 s13, {C_F1}"); A("s_cbranch_scc1 L_r_f1")
    A(f"s_cmp_eq_u32 s13, {C_F2}"); A("s_cbranch_scc1 L_r_f2")
    A("s_branch L_r_none")

    def make_tag():
        A("s_waitcnt lgkmcnt(0)")
        A(f"s_mul_i32 s{ST}, s{ST}, 0x9e3779b1")
        A(f"s_add_u32 s{ST}, s{ST}, 0x7f4a7c15")
        A(f"s_add_u32 s{SXCC}, s{SXCC}, s{ST}")
    def line_out_addr(v, bsh=6, ush=7):
        A(f"v_and_b32 v{v}, 1, v1")
        A(f"v_lshlrev_b32 v{v}, {bsh}, v{v}")
        A("v_lshrrev_b32 v3, 4, v1")
        A(f"v_lshl_add_u32 v{v}, v3, 4, v{v}")
        A(f"s_lshl_b32 s49, s5, {ush}")
        A("s_add_u32 s49, s49, s58")
        A(f"v_add_u32 v{v}, s49, v{v}")
    def pack_tagged():
        A("v_cvt_pk_bf16_f32 v8, v8, v9")
        A("v_cvt_pk_bf16_f32 v10, v10, v11")
        A(f"v_mov_b32 v9, s{ST}")
        A(f"v_mov_b32 v11, s{ST}")
    def ln_addrs():
        A("v_bfe_u32 v6, v1, 2, 1")
        A("v_lshlrev_b32 v6, 5, v6")
        A(f"v_add_u32 v6, {L_RED}, v6")
        A("s_lshl_b32 s49, s5, 3")
        A("v_add_u32 v5, s49, v6")

    def mod_params():
        A("s_lshl_b32 s58, s61, 9")
        A(f"s_add_u32 s58, s58, {WS_MOD}")
    def mod_act():
        unpack4(g, 16, 14)
        silu4(g, 16, 20)
        A("v_cvt_pk_bf16_f32 v14, v16, v17")
        A("v_cvt_pk_bf16_f32 v15, v18, v19")
        A(f"ds_write_b64 v12, v[14:15] offset:{L_ACT}")
    def mod_finish():
        line_out_addr(13)
        act_addr(g, 14, L_ACT, ACT_BS)
        tr64_addr(g)
        A("s_waitcnt lgkmcnt(0)")
        hs_signal(g, 8, 9); hs_wait(g, 12, 9, 2)
        g.stamp(1)
        gemv_fused(g, 14, 8)
        pack_tagged()
        for x in EX8: A(x)
        A("global_store_dwordx4 v13, v[8:11], s[42:43] sc1")
        A("s_mov_b64 exec, -1")
        g.stamp(2)

    g.lab("L_r_moda")
    mod_params()
    A("global_load_dwordx2 v[14:15], v13, s[34:35]")
    make_tag()
    A("s_waitcnt vmcnt(0)")
    mod_act()
    mod_finish()
    A("s_mov_b32 s60, 0")
    A("s_branch L_svc1")

    g.lab("L_r_q")
    A("s_lshl_b32 s58, s61, 9")
    A(f"s_add_u32 s58, s58, {WS_Q}")
    A("global_load_dwordx2 v[14:15], v13, s[16:17]")
    make_tag()
    A("s_waitcnt vmcnt(0)")
    ln_addrs()
    unpack4(g, 20, 14)
    ln_partial(g, 20)
    A("s_waitcnt lgkmcnt(0)")
    hs_signal(g, 8, 9); hs_wait(g, 12, 9, 4)
    ln_apply(g, 20, 24)
    tr_tile64(g)
    line_out_addr(13)
    act_addr(g, 14, L_ACT, ACT_BS)
    A("v_lshlrev_b32 v15, 4, v0")
    A(f"v_add_u32 v15, {WS_MOD}, v15")
    A("v_add_u32 v36, 0x1000, v15")
    poll_lds(g, [f"ds_read_b32 v8, v38 offset:{L_PQ}"], [8], 9, 8)
    g.stamp(1)
    A("s_mov_b64 s[64:65], -1"); A("s_mov_b64 s[66:67], -1")
    A("s_mov_b32 s70, 0")
    g.lab("L_q_p")
    A("s_mov_b64 exec, s[64:65]")
    A("global_load_dwordx4 v[16:19], v15, s[42:43] sc1")
    A("s_mov_b64 exec, s[66:67]")
    A("global_load_dwordx4 v[32:35], v36, s[42:43] sc1")
    A("s_mov_b64 exec, -1")
    A("s_waitcnt vmcnt(0)")
    A(f"v_cmp_ne_u32 s[64:65], s{ST}, v17"); A(f"v_cmp_ne_u32 s[68:69], s{ST}, v19"); A("s_or_b64 s[64:65], s[64:65], s[68:69]")
    A(f"v_cmp_ne_u32 s[66:67], s{ST}, v33"); A(f"v_cmp_ne_u32 s[68:69], s{ST}, v35"); A("s_or_b64 s[66:67], s[66:67], s[68:69]")
    A("s_or_b64 vcc, s[64:65], s[66:67]")
    spin_tail(g, "L_q_p", "L_q_ok", opts.get("msleep", 0))
    g.stamp(7)
    unpack4(g, 28, 32, 2)
    unpack4(g, 24, 16, 2)
    for i in range(4): A(f"v_add_f32 v{28+i}, 1.0, v{28+i}")
    for i in range(4): rnd(g, 28+i)
    for i in range(4): A(f"v_mul_f32 v{20+i}, v{20+i}, v{28+i}")
    for i in range(4): rnd(g, 20+i)
    for i in range(4): A(f"v_add_f32 v{20+i}, v{20+i}, v{24+i}")
    A("v_cvt_pk_bf16_f32 v16, v20, v21")
    A("v_cvt_pk_bf16_f32 v17, v22, v23")
    A(f"ds_write_b64 v12, v[16:17] offset:{L_ACT}")
    hs_signal(g, 8, 9); hs_wait(g, 16, 9, 0)
    gemv(g, 16, 14, 8)
    pack_tagged()
    guard(g, 8); guard(g, 10)
    for x in EX8: A(x)
    A("global_store_dwordx4 v13, v[8:11], s[42:43] sc1")
    A("s_mov_b64 exec, -1")
    g.stamp(2)
    A("s_mov_b32 s60, 0")
    A("s_branch L_svc1")

    g.lab("L_r_wo")
    A("s_and_b32 s66, s2, 7")
    A("s_lshr_b32 s58, s66, 1"); A("s_lshl_b32 s58, s58, 14")
    A("s_and_b32 s49, s66, 1"); A("s_lshl_b32 s49, s49, 12"); A("s_add_u32 s58, s58, s49")
    A("s_lshl_b32 s49, s61, 9")
    A("s_add_u32 s58, s58, s49")
    A(f"s_add_u32 s58, s58, {WS_AP}")
    make_tag()
    g.C("wave 3 times two fresh lines on either memory side and votes which hand-off copy its die should read (speed only)")
    e = g.uniq("nr"); l = g.uniq("nrl")
    A("s_cmp_lg_u32 s5, 3"); A(f"s_cbranch_scc1 {e}")
    A("s_lshl_b32 s49, s61, 14")
    A("s_lshl_b32 s50, s8, 10"); A("s_add_u32 s49, s49, s50"); A(f"s_add_u32 s49, s49, {WS_PRB}")
    A(f"s_add_u32 s50, s49, {opts.get('nprobe', 2)*128}")
    A("s_mov_b32 s54, -1"); A("s_mov_b32 s55, -1")
    g.lab(l)
    for c in range(2):
        A("s_memtime s[64:65]")
        A("s_waitcnt lgkmcnt(0)")
        A("s_load_dword s51, s[42:43], s49")
        A("s_waitcnt lgkmcnt(0)")
        A("s_memtime s[68:69]")
        A("s_waitcnt lgkmcnt(0)")
        A("s_sub_u32 s68, s68, s64")
        A(f"s_min_u32 s{54+c}, s{54+c}, s68")
        A("s_xor_b32 s49, s49, 0x2000")
    A("s_add_u32 s49, s49, 128")
    A("s_cmp_lt_u32 s49, s50"); A(f"s_cbranch_scc1 {l}")
    A("s_cmp_lt_u32 s55, s54")
    A("s_cselect_b32 s54, 1, 0")
    A(f"s_sub_u32 s55, s{SXCC}, s{ST}"); A("s_lshr_b32 s55, s55, 2")
    A("s_xor_b32 s54, s54, s55"); A("s_and_b32 s54, s54, 1")
    A(f"s_add_u32 s54, s54, s{ST}")
    A("s_lshl_b32 s55, s8, 3"); A("s_add_u32 s55, s55, s61"); A("s_lshl_b32 s55, s55, 5")
    A("v_mov_b32 v8, s55"); A(f"v_mov_b32 v10, s{SXCC}"); A("v_mov_b32 v11, s54")
    A("s_mov_b64 exec, 1")
    A(f"global_store_dwordx2 v8, v[10:11], s[42:43] offset:{WS_HDR} sc1")
    A("s_mov_b64 exec, -1")
    g.lab(e)
    A("s_mov_b32 s60, 1")
    A("s_branch L_svc1")

    def f1_lane_par(sp):
        A("v_lshrrev_b32 v2, 2, v1")
        A("v_mul_u32_u24 v2, 5504, v2")
        A("s_and_b32 s49, s5, 2")
        A(f"s_or_b32 s49, s49, {sp}")
        A("v_xor_b32 v3, s49, v1")
        A("v_and_b32 v3, 3, v3")
        A("v_lshl_add_u32 v2, v3, 4, v2")
    def f2_lane():
        A("v_lshrrev_b32 v2, 1, v1")
        A("v_lshlrev_b32 v2, 10, v2")
        A("v_and_b32 v3, 1, v1")
        A("v_lshl_add_u32 v2, v3, 4, v2")

    g.lab("L_r_f1")
    A("s_lshl_b32 s48, s61, 6")
    A("s_mul_i32 s49, s61, 47"); A("s_lshr_b32 s49, s49, 9")
    A(f"s_mul_i32 s49, s49, {16384-11*512}")
    A("s_lshl_b32 s58, s61, 9")
    A("s_add_u32 s58, s58, s49")
    A(f"s_add_u32 s58, s58, {WS_HH}")
    A("s_cmp_lt_u32 s5, 2")
    A("s_cselect_b32 s44, s28, s30")
    A("s_cselect_b32 s45, s29, s31")
    A(f"s_mov_b32 s46, {512*2752}"); A("s_mov_b32 s47, 0x20000")
    A("s_mov_b32 s60, 2")
    make_tag()
    A("s_branch L_svc1")

    g.lab("L_r_f2")
    srd(g, 44, 32, 1376*1024)
    make_tag()
    A("s_mov_b32 s60, 3")
    A("s_lshl_b32 s48, s61, 5")
    A("global_load_dword v167, v38, s[38:39]")
    A("s_branch L_svc1")

    g.lab("L_r_none")
    A("s_mov_b32 s60, 0")
    make_tag()

    g.lab("L_svc1")
    if opts.get("nohelp") == 2:
        A("s_endpgm")
    A("s_cmp_lg_u32 s5, 0")
    A("s_cbranch_scc1 L_disp3")
    A("s_and_b32 s64, s6, 31"); A("s_lshl_b32 s64, s64, 10")
    A("s_and_b32 s65, s6, 32"); A("s_lshl_b32 s65, s65, 1"); A("s_add_u32 s64, s64, s65")
    A(f"s_add_u32 s64, s64, {WS_Q}")
    A("v_bfe_u32 v16, v1, 2, 3")
    A("v_lshl_add_u32 v16, v16, 7, s64")
    A("v_and_b32 v17, 3, v1")
    A("v_lshl_add_u32 v16, v17, 4, v16")
    A("v_and_b32 v17, 31, v1")
    A("v_lshlrev_b32 v17, 3, v17")
    A("s_lshl_b32 s71, s8, 8")
    A("v_and_b32 v18, 7, v1")
    A("v_lshl_add_u32 v18, v18, 5, s71")
    poll_lds(g, [f"ds_read_b32 v8, v38 offset:{L_PG}"], [8], 9, 8)
    A(f"global_load_dword v19, v18, s[42:43] offset:{WS_HDR} sc1")
    poll_tagged(g, ["global_load_dwordx4 v[20:23], v16, s[42:43] sc1"], [21, 23], sleep=opts.get("qsleep", 0))
    A("v_mov_b32 v21, v22")
    A(f"ds_write_b64 v17, v[20:21] offset:{L_QV}")
    A(f"v_cmp_ne_u32 vcc, s{SXCC}, v19")
    A("s_cmp_eq_u64 vcc, 0")
    A(f"s_cselect_b32 s{SLOC}, 1, 0")
    if opts.get("nolocal"): A(f"s_mov_b32 s{SLOC}, 0")
    g.stamp(3)

    g.lab("L_svc2")
    A("v_lshlrev_b32 v16, 4, v1")
    A("s_lshl_b32 s64, s6, 9"); A(f"s_add_u32 s64, s64, {WS_ST}")
    A("s_lshl_b32 s65, s7, 7"); A("s_add_u32 s65, s65, s64")
    A("v_mov_b32 v18, s65")
    SR = [VA + 4 * i + k for i in range(8) for k in range(3)]
    poll_lds(g, [f"ds_read_b128 {vr(VA+4*i,4)}, v16 offset:{L_SC+1024*i}" for i in range(8)], SR, 8, 4)
    A(f"v_max3_f32 v8, v{SR[0]}, v{SR[1]}, v{SR[2]}")
    for i in range(3, 23, 2): A(f"v_max3_f32 v8, v8, v{SR[i]}, v{SR[i+1]}")
    A(f"v_max_f32 v8, v8, v{SR[23]}")
    wave_allreduce(g, "v_max_f32", 8, 11)
    A("v_min_u32 v9, s72, v8")
    A(f"ds_write_b32 v38, v9 offset:{L_ML}")
    for r in SR: A(f"v_sub_f32 v{r}, v{r}, v8")
    for r in SR: A(f"v_mul_f32 v{r}, 0x{LOG2E:08x}, v{r}")
    for r in SR: A(f"v_exp_f32 v{r}, v{r}")
    A("s_nop 0")
    for st in (12, 6, 3):
        for i in range(st): A(f"v_add_f32 v{SR[i]}, v{SR[i]}, v{SR[i+st]}")
    A(f"v_add_f32 v10, v{SR[0]}, v{SR[1]}")
    A(f"v_add_f32 v10, v10, v{SR[2]}")
    wave_allreduce(g, "v_add_f32", 10, 11)
    A(f"v_mov_b32 v9, s{ST}"); A(f"v_mov_b32 v11, s{ST}")
    A("s_mov_b64 exec, 1")
    pub_local(g, "global_store_dwordx4 v18, v[8:11], s[42:43]")
    A("s_mov_b64 exec, -1")
    g.stamp(4)

    g.lab("L_disp3")
    DRY = opts.get("dry", 1)
    A("s_mov_b32 s77, 0")
    for i in range(4): A(f"s_bfe_u32 s{62+i}, s{ST}, 0x{(8 << 16) | (8 * i):x}")
    if DRY:
        A("s_cmp_lg_u32 s5, 1"); A("s_cbranch_scc1 L_dry_ret")
        A("s_mov_b32 s77, 1")
        for r in (5, 6, 7, 14, 30): A(f"v_mov_b32 v{r}, {L_RED}")
        A("v_mov_b32 v2, 0")
        A("v_mov_b32 v7, 0")
        A("s_mov_b64 s[50:51], -1")
        A("s_branch L_dry_op")
        g.lab("L_dry_1")
        A("s_cmp_eq_u32 s60, 1"); A("s_cbranch_scc1 L_wo_ok")
        A("s_cmp_eq_u32 s60, 2"); A("s_cbranch_scc1 L_f1_ok")
        A("s_cmp_eq_u32 s60, 3"); A("s_cbranch_scc1 L_f2_ok")
        g.lab("L_dry_end")
        A("s_mov_b64 exec, -1")
        A("s_mov_b32 s77, 0")
        g.lab("L_dry_ret")
    def tbar():
        if DRY:
            l = g.uniq("nb")
            A("s_cmp_eq_u32 s77, 1"); A(f"s_cbranch_scc1 {l}")
            A("s_barrier")
            g.lab(l)
        else: A("s_barrier")
    def dry_out(lbl="L_dry_end"):
        if DRY:
            A("s_cmp_eq_u32 s77, 1"); A(f"s_cbranch_scc1 {lbl}")
    if opts.get("optouch", 1):
        e = g.uniq("opt")
        A("s_cmp_lg_u32 s5, 2"); A(f"s_cbranch_scc1 {e}")
        poll_lds(g, [f"ds_read_b32 v8, v38 offset:{L_ML}"], [8], 9, 32)
        A("s_lshl_b32 s56, s6, 2"); A("s_add_u32 s56, s56, s7")
        A("s_lshl_b32 s57, s56, 9"); A(f"s_add_u32 s57, s57, {WS_OP}")
        A("v_lshl_add_u32 v3, v1, 3, s57")
        A("global_load_dword v167, v3, s[42:43] sc1")
        g.lab(e)
    A("s_cmp_eq_u32 s60, 2"); A("s_cbranch_scc1 L_pre_f1")
    A("s_cmp_eq_u32 s60, 3"); A("s_cbranch_scc1 L_pre_f2")
    A("s_cmp_eq_u32 s60, 1"); A("s_cbranch_scc1 L_pre_wo")
    A("s_lshr_b32 s68, s14, 26"); A("s_lshl_b32 s68, s68, 2"); A("s_add_u32 s68, s68, s5"); A("s_and_b32 s68, s68, 31")
    A("s_and_b32 s69, s100, 0xffff"); A("s_lshr_b32 s100, s100, 16")
    A("v_and_b32 v12, 3, v1")
    A("v_lshl_add_u32 v12, v12, 7, s69")
    A("v_min_u32 v12, s100, v12")
    A("v_lshrrev_b32 v13, 2, v1")
    A("v_mul_u32_u24 v13, 2752, v13")
    A(f"s_mul_i32 s69, s68, {16*2752}")
    A("v_add3_u32 v12, v12, v13, s69")
    A("v_min_u32 v13, 42, v1")
    A(f"s_mul_i32 s68, s68, {43*1024}")
    A("s_add_u32 s68, s68, s101")
    A("v_lshl_add_u32 v13, v13, 10, s68")
    A("s_branch L_join")
    g.lab("L_pre_wo")
    hs_wait(g, 8, 9, 8)
    tr_tile64(g)
    A("s_lshl_b32 s49, s5, 3"); A("s_add_u32 s49, s49, s66")
    A("s_lshl_b32 s50, s49, 9"); A(f"s_add_u32 s50, s50, {WS_ST}")
    A("v_lshrrev_b32 v12, 5, v1")
    A("v_lshl_add_u32 v15, v12, 14, s50")
    A("v_and_b32 v16, 3, v1")
    A("v_lshl_add_u32 v15, v16, 7, v15")
    poll_lds(g, [f"ds_read_b32 v8, v38 offset:{L_PS}"], [8], 9, 16)
    poll_tagged(g, ["global_load_dwordx4 v[16:19], v15, s[42:43] sc1"], [17, 19], sleep=opts.get("ssleep", 8))
    A("v_max_f32_dpp v10, v16, v16 quad_perm:[1,0,3,2] row_mask:0xf bank_mask:0xf")
    A("s_nop 1")
    A("v_max_f32_dpp v10, v10, v10 quad_perm:[2,3,0,1] row_mask:0xf bank_mask:0xf")
    A("v_sub_f32 v8, v16, v10")
    A(f"v_mul_f32 v8, 0x{LOG2E:08x}, v8")
    A("v_exp_f32 v8, v8")
    A("s_nop 0")
    A("v_mul_f32 v9, v18, v8")
    A("s_nop 1")
    A("v_add_f32_dpp v9, v9, v9 quad_perm:[1,0,3,2] row_mask:0xf bank_mask:0xf")
    A("s_nop 1")
    A("v_add_f32_dpp v9, v9, v9 quad_perm:[2,3,0,1] row_mask:0xf bank_mask:0xf")
    A("v_rcp_f32 v9, v9")
    A("s_nop 0")
    A("v_mul_f32 v8, v8, v9")
    A("s_nop 1")
    for i in range(4): A(f"v_mov_b32_dpp v{20+i}, v8 quad_perm:[{i},{i},{i},{i}] row_mask:0xf bank_mask:0xf")
    g.stamp(5)
    A("s_lshl_b32 s49, s49, 11")
    A(f"s_add_u32 s49, s49, {WS_OP}")
    A("v_lshrrev_b32 v12, 5, v1")
    A("v_and_b32 v16, 31, v1")
    A("v_lshlrev_b32 v15, 16, v12")
    A("v_lshl_add_u32 v15, v16, 4, v15")
    A("v_add_u32 v15, s49, v15")
    A(f"v_mul_u32_u24 v12, {ACT_BS}, v12")
    A("v_bfe_u32 v16, v1, 3, 2")
    A("v_lshl_add_u32 v12, v16, 6, v12")
    A("v_and_b32 v16, 3, v1")
    A("v_lshl_add_u32 v12, v16, 4, v12")
    A("v_bfe_u32 v16, v1, 2, 1")
    A("v_lshl_add_u32 v12, v16, 3, v12")
    A("s_lshl_b32 s49, s5, 8")
    A("v_add_u32 v12, s49, v12")
    act_addr(g, 14, L_ACT, ACT_BS)
    line_out_addr(13)
    A("v_add_u32 v37, 0x2000, v13")
    A("v_mov_b32 v36, 0xff")
    A("s_branch L_join")

    adr = [15, 35, 32, 36, 33, 37, 34, 39]
    def ap_addrs():
        for i in range(1, 8): A(f"v_add_u32 v{adr[i]}, {(i >> 1) * 16384 + (i & 1) * 4096}, v15")
    def hdr_wave():
        e = g.uniq("hc")
        A("s_cmp_lg_u32 s5, 3"); A(f"s_cbranch_scc1 {e}")
        poll_lds(g, [f"ds_read_b32 v8, v38 offset:{L_QV}"], [8], 9, 32)
        check_votes(g, 10, VA)
        g.lab(e)
    def near_copy():
        poll_lds(g, [f"ds_read_b32 v11, v38 offset:{L_NR}"], [11], 9, 8)

    PG = VA + 32
    def pre_gather(addrs):
        poll_lds(g, [f"ds_read_b32 v8, v38 offset:{L_PS}"], [8], 9, 16)
        A("global_load_dwordx2 v[8:9], v31, s[16:17]")
        poll_tagged(g, [f"global_load_dwordx4 {vr(PG+4*i,4)}, v{a}, s[42:43] sc1" for i, a in enumerate(addrs)],
                    [PG + 1 + 2 * i for i in range(2 * len(addrs))], sleep=8)

    g.lab("L_pre_f1")
    hdr_wave()
    A("v_mov_b32 v31, v13")
    A("v_lshlrev_b32 v15, 4, v0")
    A(f"v_add_u32 v24, {WS_MOD+2*4096}, v15")
    A(f"v_add_u32 v25, {WS_MOD+3*4096}, v15")
    A(f"v_add_u32 v26, {WS_MOD+4*4096}, v15")
    near_copy()
    A(f"v_add_u32 v15, {WS_AP}, v15")
    A("v_add_u32 v15, v11, v15")
    ap_addrs()
    ln_addrs()
    A("v_and_b32 v14, 7, v1")
    A(f"v_mul_u32_u24 v14, {ACT_BS}, v14")
    A("v_lshrrev_b32 v3, 4, v1")
    A("v_lshl_add_u32 v14, v3, 4, v14")
    A("v_and_b32 v7, 1, v1")
    A("v_lshlrev_b32 v7, 5, v7")
    A("v_and_b32 v13, 1, v1")
    A("v_lshlrev_b32 v13, 5, v13")
    A("v_bfe_u32 v3, v1, 4, 1")
    A("v_lshl_add_u32 v13, v3, 3, v13")
    A("s_lshl_b32 s49, s5, 7")
    A("s_add_u32 s49, s49, s58")
    A("v_add_u32 v13, s49, v13")
    A("v_lshrrev_b32 v3, 5, v1")
    A("v_lshl_add_u32 v13, v3, 4, v13")
    A("v_add_u32 v4, 0x2000, v13")
    E1 = 8
    if 1:
        A("s_mov_b32 s54, 0")
        f1_lane_par("s54")
        A("v_mov_b32 v0, v2")
        A("v_lshrrev_b32 v6, 3, v1")
        A("v_lshlrev_b32 v6, 6, v6")
        A("v_bfe_u32 v3, v1, 2, 1")
        A("v_lshl_add_u32 v6, v3, 14, v6")
        A("v_and_b32 v8, 2, v1")
        A("v_or_b32 v3, v3, v8")
        A("v_xor_b32 v3, s5, v3")
        A("v_lshl_add_u32 v6, v3, 4, v6")
        A("v_lshl_add_u32 v6, v8, 14, v6")
        A("v_and_b32 v3, 1, v1")
        A("v_lshl_add_u32 v6, v3, 3, v6")
        A(f"v_add_u32 v6, {L_WT}, v6")
        A("s_and_b32 s55, s5, 1")
        A(f"s_mul_i32 s49, s55, {256*2752}")
        A("s_add_u32 s49, s49, s48")
        A("s_mul_i32 s50, s54, 2752"); A("s_add_u32 s49, s49, s50")
        A("s_lshr_b32 s50, s5, 1"); A("s_lshl_b32 s50, s50, 15")
        A("s_lshl_b32 s54, s54, 14"); A("s_add_u32 s50, s50, s54")
        A("s_lshl_b32 s55, s55, 13"); A("s_add_u32 s50, s50, s55")
        A(f"s_add_u32 s50, s50, {L_WT}")
    pre_gather([24, 25, 26])
    unpack4(g, 16, 8)
    unpack4(g, 20, PG, 2)
    unpack4(g, 28, PG+8, 2)
    for i in range(4): A(f"v_add_f32 v{28+i}, 1.0, v{28+i}")
    A("v_cvt_pk_bf16_f32 v8, v28, v29"); A("v_cvt_pk_bf16_f32 v9, v30, v31")
    A(f"v_mov_b32 v{PG+5}, v{PG+6}")
    A(f"ds_write_b64 v12, v[8:9] offset:{L_ACT+2*ACT_BS}")
    A(f"ds_write_b64 v12, {vr(PG+4,2)} offset:{L_ACT+4*ACT_BS}")
    for i in range(4): rnd(g, 28+i)
    for i in range(4): A(f"v_mul_f32 v{24+i}, v{20+i}, v{28+i}")
    for i in range(4): A(f"v_mul_f32 v{28+i}, v{16+i}, v{28+i}")
    A("s_branch L_join")

    g.lab("L_pre_f2")
    hdr_wave()
    A("v_and_b32 v12, 1, v1")
    A("v_lshrrev_b32 v14, 4, v1")
    A("s_lshl_b32 s49, s61, 5")
    A("v_lshl_add_u32 v3, v14, 3, s49")
    A("v_lshl_add_u32 v13, v12, 10, v3")
    A("v_mov_b32 v31, v13")
    A("v_lshlrev_b32 v15, 6, v12")
    A("v_lshl_add_u32 v15, v14, 4, v15")
    A("s_lshl_b32 s49, s61, 7")
    A("v_add_u32 v15, s49, v15")
    A(f"v_add_u32 v24, {WS_MOD+2*4096}, v15")
    A(f"v_add_u32 v25, {WS_MOD+5*4096}, v15")
    near_copy()
    A(f"v_add_u32 v15, {WS_AP}, v15")
    A("v_add_u32 v15, v11, v15")
    ap_addrs()
    A("s_lshl_b32 s49, s5, 14")
    A(f"s_add_u32 s49, s49, {WS_HH+2048}")
    A("v_lshl_add_u32 v28, v14, 7, s49")
    A("v_add_u32 v28, v11, v28")
    A("v_lshl_add_u32 v28, v12, 5, v28")
    A("v_and_b32 v3, 2, v1")
    A("v_lshl_add_u32 v28, v3, 3, v28")
    A("v_bfe_u32 v3, v1, 2, 2")
    A("v_lshl_add_u32 v28, v3, 9, v28")
    A("v_lshl_add_u32 v12, v14, 1, v12")
    A("v_lshlrev_b32 v12, 4, v12")
    A(f"v_add_u32 v12, {L_RED}, v12")
    A("s_lshl_b32 s49, s5, 7")
    A("v_add_u32 v30, s49, v12")
    f2_lane()
    A("v_mov_b32 v29, v2")
    A("v_lshlrev_b32 v6, 8, v14")
    A("v_bfe_u32 v3, v1, 2, 2")
    A("v_lshl_add_u32 v6, v3, 5, v6")
    A("v_and_b32 v3, 3, v1")
    A("v_lshl_add_u32 v6, v3, 3, v6")
    A("s_mul_i32 s49, s5, 11264")
    A(f"s_add_u32 s49, s49, {L_WT}")
    A("v_add_u32 v6, s49, v6")
    pre_gather([24, 25])
    unpack4(g, 16, 8)
    unpack4(g, 20, PG, 2)
    unpack4(g, 24, PG+4, 2)

    g.lab("L_join")
    if opts.get("nohelp") == 4:
        A("s_endpgm")
    A("v_lshlrev_b32 v2, 3, v1")
    A("s_lshl_b32 s56, s6, 2"); A("s_add_u32 s56, s56, s7")
    A("s_lshl_b32 s57, s56, 9"); A(f"s_add_u32 s57, s57, {WS_OP}")
    A("v_lshl_add_u32 v3, v1, 3, s57")
    A("v_and_b32 v8, 1, v1")
    A("v_lshlrev_b32 v8, 4, v8")
    A(f"v_lshrrev_b32 v8, v8, s{ST}")
    A("v_lshrrev_b32 v9, 8, v8")
    A("s_movk_i32 s56, 0xff")
    A("s_waitcnt vmcnt(0) lgkmcnt(0)")
    g.stamp(9)
    A("s_barrier")
    g.stamp(6)
    A("s_cmp_lg_u32 s5, 0")
    A("s_cbranch_scc1 L_tail")
    g.lab("L_dry_op")
    for i in range(8):
        A(f"ds_read_b64 {vr(VA+2*i,2)}, v2 offset:{L_OP+512*i}")
    for i in range(4):
        A(f"s_waitcnt lgkmcnt({6-2*i})")
        A(f"v_pk_add_f32 {vr(VA+4*i,2)}, {vr(VA+4*i,2)}, {vr(VA+4*i+2,2)}")
    A(f"v_pk_add_f32 {vr(VA,2)}, {vr(VA,2)}, {vr(VA+4,2)}")
    A(f"v_pk_add_f32 {vr(VA+8,2)}, {vr(VA+8,2)}, {vr(VA+12,2)}")
    A(f"v_pk_add_f32 {vr(VA,2)}, {vr(VA,2)}, {vr(VA+8,2)}")
    A(f"v_bfi_b32 v10, s56, v8, v{VA}")
    A(f"v_bfi_b32 v11, s56, v9, v{VA+1}")
    dry_out("L_dry_1")
    pub_local(g, "global_store_dwordx2 v3, v[10:11], s[42:43]")
    g.lab("L_tail")
    g.tail = True
    g.stamp(9, 2)
    if opts.get("nohelp") == 5:
        A("s_cmp_lg_u32 s60, 0"); A("s_cbranch_scc1 L_fin")
    if opts.get("nohelp") == 6:
        A("s_cmp_gt_u32 s60, 1"); A("s_cbranch_scc1 L_fin")
    A("s_cmp_eq_u32 s60, 1"); A("s_cbranch_scc1 L_t_wo")
    A("s_cmp_eq_u32 s60, 2"); A("s_cbranch_scc1 L_t_f1")
    A("s_cmp_eq_u32 s60, 3"); A("s_cbranch_scc1 L_t_f2")
    g.C("pull a share of the FFN weights of this group into L2 (values unused)")
    A("s_barrier")
    if not opts.get("notouch"):
        A("global_load_dword v16, v12, s[28:29]")
        A("global_load_dword v17, v12, s[30:31]")
        A("global_load_dword v18, v13, s[32:33]")
    A("s_branch L_fin")

    def sum8p(src, dst):
        for p in range(4):
            for h in range(2): A(f"v_pk_add_f32 {vr(dst+8*p+2*h,2)}, {vr(src+8*p+2*h,2)}, {vr(src+8*p+4+2*h,2)}")
        sum8q(dst)
    def sum8q(dst):
        for i in range(2):
            for h in range(2): A(f"v_pk_add_f32 {vr(dst+16*i+2*h,2)}, {vr(dst+16*i+2*h,2)}, {vr(dst+16*i+8+2*h,2)}")
        for h in range(2): A(f"v_pk_add_f32 {vr(dst+2*h,2)}, {vr(dst+2*h,2)}, {vr(dst+16+2*h,2)}")
    def x1_from(S):
        for i in range(4): rnd(g, S+i)
        for i in range(4): A(f"v_mul_f32 v{S+i}, v{S+i}, v{20+i}")
        for i in range(4): rnd(g, S+i)
        for i in range(4): A(f"v_add_f32 v{16+i}, v{16+i}, v{S+i}")
        for i in range(4): rnd(g, 16+i)

    g.lab("L_t_wo")
    A("s_mov_b32 s70, 0")
    g.lab("L_wo_p")
    for i in range(4): A(f"global_load_dwordx4 {vr(VA+4*i,4)}, v15, s[42:43] offset:{512*i} sc1")
    for k in range(16):
        if k % 4 == 0: A(f"s_waitcnt vmcnt({3-k//4})")
        A(f"v_xor_b32 v{VA+k}, s{62+k%4}, v{VA+k}")
    for k in range(5): A(f"v_or3_b32 v{28+k}, v{VA+3*k}, v{VA+3*k+1}, v{VA+3*k+2}")
    A("v_or3_b32 v28, v28, v29, v30")
    A(f"v_or3_b32 v31, v31, v32, v{VA+15}")
    A("v_or_b32 v28, v28, v31")
    A("v_lshlrev_b32 v28, 24, v28")
    A("v_cmp_ne_u32 vcc, 0, v28")
    for i in range(4):
        for h in range(2):
            f = f"{vr(20+(i&2),2)}"; sel = f"op_sel:[0,{i&1},0] op_sel_hi:[1,{i&1},1]"
            if i == 0: A(f"v_pk_mul_f32 {vr(16+2*h,2)}, {vr(VA+2*h,2)}, {f} op_sel:[0,0] op_sel_hi:[1,0]")
            else: A(f"v_pk_fma_f32 {vr(16+2*h,2)}, {vr(VA+4*i+2*h,2)}, {f}, {vr(16+2*h,2)} {sel}")
    spin_tail(g, "L_wo_p", "L_wo_ok", 0)
    g.stamp(7); g.stamp(1, 2)
    A(f"v_cvt_pk_bf16_f32 v8, v16, v17")
    A(f"v_cvt_pk_bf16_f32 v9, v18, v19")
    A(f"ds_write_b64 v12, v[8:9] offset:{L_ACT}")
    A("s_waitcnt lgkmcnt(0)")
    g.stamp(2, 2)
    tbar()
    g.stamp(3, 2)
    gemv(g, 16, 14, 8)
    g.stamp(4, 2)
    for i in range(4):
        A(f"v_bfi_b32 v{8+i}, v36, s{62+i}, v{8+i}")
    for x in EX8: A(x)
    dry_out()
    A("global_store_dwordx4 v13, v[8:11], s[42:43] sc1")
    A("global_store_dwordx4 v37, v[8:11], s[42:43] sc1")
    g.stamp(2); g.stamp(7, 2)
    A("s_branch L_fin")

    g.lab("L_t_f1")
    A("s_barrier")
    A("v_mov_b32 v2, v0")
    dma_loop(g, 8, 32*2752, WFL)
    if 1:
        A("v_xor_b32 v2, 16, v2")
        A(f"s_add_u32 s49, s49, {(2752-256*2752) & 0xffffffff}")
        A("s_add_u32 s50, s50, 8192")
        dma_loop(g, 8, 32*2752, WFL)
    for i in range(8): A(f"global_load_dwordx4 {vr(VA+4*i,4)}, v{adr[i]}, s[42:43] sc1")
    A("v_mov_b32 v2, v6")
    A("s_waitcnt vmcnt(8)")
    A("s_barrier")
    tr_reads(g, 16, 1024, 512)
    g.stamp(1)
    S = VA + 32
    A("s_mov_b32 s70, 0")
    A("s_mov_b32 s71, 15")
    A("s_branch L_f1_c")
    if 1:
        def ap_check():
            for k in range(32): A(f"v_xor_b32 v{S+k}, s{62+k%4}, v{VA+k}")
            for p in range(4): A(f"v_or3_b32 v{8+p}, v{S+8*p}, v{S+8*p+1}, v{S+8*p+2}")
            for p in range(4): A(f"v_or3_b32 v{8+p}, v{8+p}, v{S+8*p+3}, v{S+8*p+4}")
            for p in range(4): A(f"v_or3_b32 v{8+p}, v{8+p}, v{S+8*p+5}, v{S+8*p+6}")
            for p in range(4): A(f"v_or_b32 v{8+p}, v{8+p}, v{S+8*p+7}")
            A("v_or3_b32 v3, v8, v9, v10")
            A("v_or_b32 v3, v3, v11")
            A("v_lshlrev_b32 v3, 24, v3")
            A("v_cmp_ne_u32 vcc, 0, v3")
        g.lab("L_f1_p")
        A("s_add_u32 s70, s70, 1")
        A(f"s_cmp_ge_u32 s70, {SPIN_MAX}")
        A("s_cbranch_scc1 L_f1_ok")
        for p in range(4):
            l = g.uniq("fl")
            A(f"s_bitcmp1_b32 s71, {p}"); A(f"s_cbranch_scc0 {l}")
            for i in (2*p, 2*p+1): A(f"global_load_dwordx4 {vr(VA+4*i,4)}, v{adr[i]}, s[42:43] sc1")
            g.lab(l)
        g.lab("L_f1_c")
        A("s_waitcnt vmcnt(0)")
        for p in range(4):
            l = g.uniq("fc")
            A(f"s_bitcmp1_b32 s71, {p}"); A(f"s_cbranch_scc0 {l}")
            B_ = VA + 8 * p
            for k in range(8): A(f"v_xor_b32 v{B_+k}, s{62+k%4}, v{B_+k}")
            A(f"v_or3_b32 v8, v{B_}, v{B_+1}, v{B_+2}")
            A(f"v_or3_b32 v9, v{B_+3}, v{B_+4}, v{B_+5}")
            A(f"v_or3_b32 v8, v8, v{B_+6}, v{B_+7}")
            for h in range(2): A(f"v_pk_add_f32 {vr(S+8*p+2*h,2)}, {vr(B_+2*h,2)}, {vr(B_+4+2*h,2)}")
            A("v_or_b32 v8, v8, v9")
            A("v_lshlrev_b32 v8, 24, v8")
            A("v_cmp_ne_u32 vcc, 0, v8")
            A("s_cmp_lg_u64 vcc, 0"); A(f"s_cbranch_scc1 {l}")
            A(f"s_bitset0_b32 s71, {p}")
            g.lab(l)
        A("s_cmp_lg_u32 s71, 0")
        A("s_cbranch_scc1 L_f1_p")
        g.lab("L_f1_ok")
        sum8q(S)
    g.stamp(7); g.stamp(1, 2)
    if 1:
        for h in range(2): A(f"v_pk_fma_f32 {vr(8+2*h,2)}, {vr(S+2*h,2)}, {vr(24+2*h,2)}, {vr(28+2*h,2)}")
        A("v_cvt_pk_bf16_f32 v8, v8, v9")
        A("v_cvt_pk_bf16_f32 v9, v10, v11")
        A(f"ds_write_b64 v12, v[8:9] offset:{L_ACT}")
        for h in range(2): A(f"v_pk_fma_f32 {vr(16+2*h,2)}, {vr(S+2*h,2)}, {vr(20+2*h,2)}, {vr(16+2*h,2)}")
        A("s_waitcnt lgkmcnt(0)")
        g.stamp(2, 2)
        tbar()
        g.stamp(3, 2)
        q = []
        def rd(m): A(f"ds_read_b128 {vr(VA+4*m,4)}, v14 offset:{L_ACT+64*m}"); q.append(("r", m))
        def need(op):
            i = q.index(op); A(f"s_waitcnt lgkmcnt({len(q)-1-i})"); del q[:i+1]
        for m in range(12): rd(m)
        DF = 32; x = 16
        dpp = lambda r, mod: f"v_add_f32_dpp v{r}, v{r}, v{r} {mod} row_mask:0xf bank_mask:0xf"
        for t in (f"v_add_f32 v8, v{x}, v{x+1}", f"v_mul_f32 v9, v{x}, v{x}", f"v_add_f32 v10, v{x+2}, v{x+3}", f"v_mul_f32 v11, v{x+2}, v{x+2}",
                  f"v_fmac_f32 v9, v{x+1}, v{x+1}", f"v_fmac_f32 v11, v{x+3}, v{x+3}", "v_add_f32 v8, v8, v10", "v_add_f32 v9, v9, v11",
                  "s_nop 0", dpp(8, "quad_perm:[1,0,3,2]"), dpp(9, "quad_perm:[1,0,3,2]")): A(t)
        fill = {0: [dpp(8, "quad_perm:[2,3,0,1]"), dpp(9, "quad_perm:[2,3,0,1]")],
                1: [dpp(8, "row_ror:8"), dpp(9, "row_ror:8")],
                2: ["v_mov_b32 v10, v8", "v_mov_b32 v11, v9"],
                3: ["v_permlane16_swap_b32 v10, v8", "v_permlane16_swap_b32 v11, v9"],
                4: ["v_add_f32 v8, v8, v10", "v_add_f32 v9, v9, v11", "v_mov_b32 v10, v8", "v_mov_b32 v11, v9"],
                5: ["v_permlane32_swap_b32 v10, v8", "v_permlane32_swap_b32 v11, v9"],
                6: ["v_add_f32 v8, v8, v10", "v_add_f32 v9, v9, v11", "W"],
                14: ["S", "v_pk_add_f32 v[20:21], v[20:21], v[22:23]", "v_pk_add_f32 v[24:25], v[24:25], v[26:27]"],
                15: ["v_pk_add_f32 v[20:21], v[20:21], v[24:25]",
                     f"v_mul_f32 v20, 0x{f2u(-1/512):08x}, v20", f"v_mul_f32 v21, 0x{f2u(1/512):08x}, v21",
                     "v_fma_f32 v21, -v20, v20, v21", "v_max_f32 v21, 0, v21", f"v_add_f32 v21, 0x{EPS:08x}, v21", "v_rsq_f32 v21, v21",
                     "s_nop 0"]}
        for m in range(16):
            if ("r", m) in q: need(("r", m))
            c = "0" if m == 0 else vr(DF, 4)
            A(f"v_mfma_f32_16x16x32_bf16 {vr(DF,4)}, {vr(VW+4*m,4)}, {vr(VA+4*m,4)}, {c}")
            if m < 4: rd(12 + m)
            for t in fill.get(m, []):
                if t == "W": A("ds_write_b64 v5, v[8:9]"); q.append(("w", 0))
                elif t == "S": need(("s", 1))
                else: A(t)
            if m == 9:
                need(("w", 0))
                tbar()
                A(f"ds_read_b128 v[20:23], v7 offset:{L_RED}"); q.append(("s", 0))
                A(f"ds_read_b128 v[24:27], v7 offset:{L_RED+16}"); q.append(("s", 1))
        g.stamp(5, 2)
        for i in range(4): A(f"v_fmac_f32_dpp v{DF+i}, v{DF+i}, v20 row_shl:2 row_mask:0xf bank_mask:0x1")
        for i in range(4): A(f"v_mul_f32 v{8+i}, v{DF+i}, v21")
        for i in range(4): A(f"v_add_f32_dpp v{8+i}, v{DF+i}, v{8+i} row_shl:4 row_mask:0xf bank_mask:0xf")
        A("s_mov_b32 s50, 0x00030003")
        A("s_mov_b32 s51, 0x00030003")
        A("v_permlane32_swap_b32 v8, v10")
        A("v_permlane32_swap_b32 v9, v11")
        for i in range(2): A(f"v_mul_f32 v{20+i}, 0x{LOG2E ^ 0x80000000:08x}, v{8+i}")
        for i in range(2): A(f"v_exp_f32 v{20+i}, v{20+i}")
        for i in range(2): A(f"v_mul_f32 v{8+i}, v{8+i}, v{10+i}")
        for i in range(2): A(f"v_add_f32 v{20+i}, 1.0, v{20+i}")
        for i in range(2): A(f"v_rcp_f32 v{20+i}, v{20+i}")
        A("s_mov_b64 exec, s[50:51]")
        for i in range(2): A(f"v_mul_f32 v{8+i}, v{8+i}, v{20+i}")
        A("v_cvt_pk_bf16_f32 v8, v8, v9")
        A(f"v_mov_b32 v9, s{ST}")
        dry_out()
        A("global_store_dwordx2 v13, v[8:9], s[42:43] sc1")
        A("global_store_dwordx2 v4, v[8:9], s[42:43] sc1")
        g.stamp(2); g.stamp(7, 2)
        A("s_branch L_fin")

    g.lab("L_t_f2")
    A("s_barrier")
    def f2_dma():
        A("v_mov_b32 v2, v29")
        A("s_and_b32 s59, s61, 3"); A("s_mul_i32 s59, s59, 3072")
        for part in range(2):
            A(f"s_mul_i32 s49, s5, {11*32*1024}")
            A("s_add_u32 s49, s49, s48")
            A("s_mul_i32 s50, s5, 11264")
            A(f"s_add_u32 s50, s50, {L_WT}")
            if part == 0:
                A("s_lshl_b32 s52, s59, 5")
                A("s_add_u32 s49, s49, s52")
                A("s_add_u32 s50, s50, s59")
                A("s_sub_u32 s52, 11264, s59")
                dma_loop(g, "s52", 32*1024, WFL)
            else:
                dma_loop(g, "s59", 32*1024, WFL)
    f2_dma()
    A("v_mov_b32 v2, v6")
    A("s_mov_b32 s50, 0x00030003"); A("s_mov_b32 s51, 0x00030003")
    A("s_mov_b32 s53, 0x0fff0fff")
    A("s_cmp_eq_u32 s5, 3")
    A("s_cselect_b32 s52, 0x00ff00ff, s53")
    A("s_mov_b32 s53, s52")
    def ap_loads():
        A("s_mov_b64 exec, s[50:51]")
        for i in range(8): A(f"global_load_dwordx4 {vr(VA+4*i,4)}, v{adr[i]}, s[42:43] sc1")
    A("s_cmp_lg_u32 s5, 0")
    A("s_cbranch_scc1 L_f2_w")
    ap_loads()
    A("s_mov_b64 exec, -1")
    A("s_waitcnt vmcnt(8)")
    A("s_branch L_f2_w2")
    g.lab("L_f2_w")
    A("s_waitcnt vmcnt(0)")
    g.lab("L_f2_w2")
    tr_reads(g, 11, 1024, 128)
    g.stamp(1)
    e = g.uniq("f2x")
    A("s_cmp_lg_u32 s5, 0")
    A(f"s_cbranch_scc1 {e}")
    A("s_mov_b32 s70, 0")
    A("s_mov_b64 exec, s[50:51]")
    A("s_branch L_f2_ac")
    g.lab("L_f2_a")
    ap_loads()
    g.lab("L_f2_ac")
    A("s_waitcnt vmcnt(0)")
    ap_check()
    spin_tail(g, "L_f2_a", "L_f2_ad", 2)
    A("s_mov_b64 exec, -1")
    sum8p(S, S)
    x1_from(S)
    g.lab(e)
    for i in range(4): A(f"v_mov_b32 v{VA+8+i}, 0")
    DD = VA + 16
    A("s_mov_b32 s70, 0")
    g.lab("L_f2_p")
    A(f"global_load_dwordx4 {vr(VA,4)}, v28, s[42:43] offset:-2048 sc1")
    A(f"global_load_dwordx4 {vr(VA+4,4)}, v28, s[42:43] sc1")
    A("s_mov_b64 exec, s[52:53]")
    A(f"global_load_dwordx4 {vr(VA+8,4)}, v28, s[42:43] offset:2048 sc1")
    A("s_mov_b64 exec, -1")
    def mf(m):
        j, mp = divmod(m, 4)
        c = "0" if j == 0 else vr(DD+4*mp, 4)
        A(f"v_mfma_f32_16x16x32_bf16 {vr(DD+4*mp,4)}, {vr(VW+4*m,4)}, {vr(VA+4*j,4)}, {c}")
    for j in range(3):
        A(f"s_waitcnt vmcnt({2-j})")
        A(f"v_xor_b32 v{VA+4*j+1}, s{ST}, v{VA+4*j+1}")
        A(f"v_xor_b32 v{VA+4*j+3}, s{ST}, v{VA+4*j+3}")
    A(f"v_or3_b32 v31, v{VA+1}, v{VA+3}, v{VA+5}")
    A(f"v_or_b32 v3, v{VA+9}, v{VA+11}")
    A(f"v_or_b32 v31, v{VA+7}, v31")
    A("v_cmp_ne_u32 s[68:69], 0, v3")
    A("v_cmp_ne_u32 vcc, 0, v31")
    for j in range(3):
        for h in range(2): A(f"v_mov_b32_dpp v{VA+4*j+2*h+1}, v{VA+4*j+2*h} quad_perm:[2,3,2,3] row_mask:0xf bank_mask:0xf")
    A("s_and_b64 s[68:69], s[68:69], s[52:53]")
    A("s_or_b64 vcc, vcc, s[68:69]")
    for m in range(4): mf(m)
    spin_tail(g, "L_f2_p", "L_f2_ok", 0)
    for m in range(4, 11): mf(m)
    A("s_nop 6")
    for i in range(4): A(f"v_add_f32_dpp v{8+i}, v{DD+4+i}, v{DD+i} row_shl:4 row_mask:0xf bank_mask:0xf")
    for i in range(4): A(f"v_add_f32_dpp v{DD+8+i}, v{DD+12+i}, v{DD+8+i} row_shl:4 row_mask:0xf bank_mask:0xf")
    for i in range(4): A(f"v_add_f32_dpp v{8+i}, v{DD+8+i}, v{8+i} row_shl:8 row_mask:0xf bank_mask:0xf")
    A("s_mov_b64 exec, s[50:51]")
    g.stamp(7); g.stamp(1, 2)
    A("ds_write_b128 v30, v[8:11]")
    A("s_waitcnt lgkmcnt(0)")
    g.stamp(2, 2)
    tbar()
    g.stamp(3, 2)
    A("s_cmp_lg_u32 s5, s77")
    A("s_cbranch_scc1 L_fin")
    for i in range(3):
        A(f"ds_read_b128 {vr(VA+4*i,4)}, v12 offset:{128*(i+1)}")
    A("s_waitcnt lgkmcnt(2)")
    for h in range(2): A(f"v_pk_add_f32 {vr(8+2*h,2)}, {vr(8+2*h,2)}, {vr(VA+2*h,2)}")
    A("s_waitcnt lgkmcnt(0)")
    for h in range(2): A(f"v_pk_add_f32 {vr(VA+4+2*h,2)}, {vr(VA+4+2*h,2)}, {vr(VA+8+2*h,2)}")
    for h in range(2): A(f"v_pk_add_f32 {vr(8+2*h,2)}, {vr(8+2*h,2)}, {vr(VA+4+2*h,2)}")
    for h in range(2): A(f"v_pk_fma_f32 {vr(8+2*h,2)}, {vr(8+2*h,2)}, {vr(24+2*h,2)}, {vr(16+2*h,2)}")
    A("v_cvt_pk_bf16_f32 v8, v8, v9")
    A("v_cvt_pk_bf16_f32 v9, v10, v11")
    dry_out()
    A("global_store_dwordx2 v13, v[8:9], s[38:39]")
    A("s_mov_b64 exec, 1")
    A("s_cmp_lg_u32 s61, 0")
    A("s_cbranch_scc1 L_noep")
    A(f"v_mov_b32 v10, s{ST}")
    A(f"global_store_dword v38, v10, s[42:43] offset:{WS_E}")
    if opts.get("amp"):
        A("s_waitcnt vmcnt(0)")
        A("s_memrealtime s[66:67]"); A("s_waitcnt lgkmcnt(0)")
        A("s_sub_u32 s66, s66, s78"); A(f"s_mul_i32 s66, s66, {opts['amp']}")
        g.lab("L_xa")
        A("s_sleep 1")
        A("s_memrealtime s[64:65]"); A("s_waitcnt lgkmcnt(0)")
        A("s_sub_u32 s64, s64, s78"); A("s_cmp_lt_u32 s64, s66"); A("s_cbranch_scc1 L_xa")
    g.lab("L_noep")
    g.stamp(2); g.stamp(7, 2)

    g.lab("L_fin")
    if opts.get("stamps"):
        A("s_mov_b64 exec, -1")
        A("s_waitcnt vmcnt(0)")
        g.stamp(8)
        A(f"s_cmp_lg_u32 s5, {opts.get('swave', 0)}")
        A("s_cbranch_scc1 L_end")
        A("s_lshl_b32 s3, s2, 7")
        A(f"s_add_u32 s3, s3, {WS_STAMP}")
        A("v_mov_b32 v2, s3")
        A("s_waitcnt lgkmcnt(0)")
        for i in (range(10) if opts["stamps"] != 3 else (0, 6, 8)):
            A(f"v_mov_b32 v3, s{80+2*i}")
            A(f"global_store_dword v2, v3, s[42:43] offset:{4*i}")
        A(f"v_mov_b32 v3, s{SLOC}")
        A(f"global_store_dword v2, v3, s[42:43] offset:40")
    g.lab("L_end")
    A("s_endpgm")
    g.L.append(".p2align 7")
    g.lab("L_table")
    for w in range(0, 256, 8):
        A(".long " + ", ".join(f"0x{RM[v][0] | (RM[v][1] << 3) | (SP[v][1] << 9) | (SP[v][0] << 16) | (RK[v] << 26):08x}" for v in range(w, w + 8)))
    g.lab("L_gtab")
    for x in range(8):
        f1 = sorted(t for w, (r, t) in enumerate(RM) if r == C_F1 and w % 8 == x)
        f2 = sorted(set(t // 4 for w, (r, t) in enumerate(RM) if r == C_F2 and w % 8 == x))
        assert f1 == list(range(f1[0], f1[0] + len(f1))) and len(f1) <= 7 and len(f2) == 1
        A(f".long 0x{64*f1[0] | ((64*(f1[-1]+1)-4) << 16):08x}, 0x{128*f2[0]:08x}")
    g.L.append(f'''.section .rodata,"a"
.p2align 6
.amdhsa_kernel {KNAME}
  .amdhsa_next_free_vgpr 168
  .amdhsa_next_free_sgpr 102
  .amdhsa_accum_offset 168
  .amdhsa_group_segment_fixed_size 0
  .amdhsa_kernarg_size 112
  .amdhsa_user_sgpr_count 2
  .amdhsa_user_sgpr_kernarg_segment_ptr 1
  .amdhsa_system_sgpr_workgroup_id_x 1
.end_amdhsa_kernel''')
    return "\n".join(g.L) + "\n"

if __name__ == "__main__":
    import json, os
    here = os.path.dirname(os.path.abspath(__file__))
    opts = {"ref": os.path.join(here, "..", KNAME[:-7] + ".s.ref")}
    out = sys.argv[1]
    for kv in sys.argv[2:]:
        k, v = kv.split("=")
        try: v = int(v)
        except ValueError: pass
        opts[k] = v
    open(out, "w").write(gen(opts))
```

```python
import sys, struct

KNAME = "adaLN_cond__sliding_block_cached__glu_gated_swiglu__decode_kernel"

def f2u(x): return struct.unpack("<I", struct.pack("<f", x))[0]
LOG2E = f2u(1.4426950408889634)
SCALE = f2u(128 ** -0.5)
EPS = f2u(1e-5)

WS_E   = 0x00000
WS_HDR = 0x00400
WS_MOD = 0x01000
WS_Q   = 0x08000
WS_ST  = 0x10000
WS_OP  = 0x20000
WS_HH  = 0x40000
WS_AP  = 0x50000
WS_PRB = 0x80000
WS_STAMP = 0x100000
ACT_BS = 1056
L_ACT = 0
L_QV  = L_ACT + 6400
L_ML  = L_QV + 256
L_PG  = L_ML + 8
L_NR  = L_ML + 12
L_PQ  = L_ML + 16
L_PS  = L_ML + 20
L_MB  = L_ML + 32
L_CNT = L_ML + 64
L_OP  = L_CNT + 64 + 128
L_RED = L_OP + 4096
L_SC  = L_RED + 1024
L_WT  = 20480
L_VX  = L_WT + 65536
assert L_SC + 8192 <= L_WT and L_OP % 16 == 0 and L_SC % 16 == 0

C_NONE, C_WO, C_F1, C_F2, C_MODB, C_MODA, C_Q = 0, 1, 2, 3, 4, 5, 6
RN = {0: "none", 1: "WO", 2: "F1", 3: "F2", 4: "MODB", 5: "MODA", 6: "Q"}
def cls(r, t):
    n = RN[r]
    if r in (C_WO, C_MODB, C_MODA, C_Q) and t % 8 == 3: n += "3"
    if r == C_F2 and t // 4 == 3: n += "3"
    return n
COST = {"Q": 620, "Q3": 900, "WO": 560, "WO3": 840, "MODA": 560, "MODA3": 860, "MODB": 560, "MODB3": 860, "F1": 500, "F2": 150, "F23": 250, "none": 100}
def role_map(mode=3, cost=COST):
    import itertools, random
    mod = lambda t: (C_MODA if t < 16 else C_MODB, t)
    h3 = [(C_Q, t) for t in range(64) if t % 8 == 3] + [mod(t) for t in range(48) if t % 8 == 3]
    hn = [mod(t) for t in range(16) if t % 8 != 3] + [(C_Q, t) for t in range(64) if t % 8 != 3] + [mod(t) for t in range(16, 48) if t % 8 != 3]
    nf1, nn, n3 = {3: ([4, 7, 4, 7, 4, 7, 4, 6], [0, 1, 0, 1, 0, 1, 0, 2], [2, 2, 2, 1, 2, 1, 2, 2]),
                   4: ([6, 5, 6, 5, 6, 5, 5, 5], [0, 1, 0, 1, 0, 1, 1, 1], [2, 2, 2, 1, 2, 1, 2, 2]),
                   5: ([5, 6, 5, 6, 5, 6, 5, 5], [0, 1, 0, 1, 0, 1, 0, 2], [2, 2, 2, 1, 2, 1, 2, 2])}[mode]
    X = []; f = 0
    for x in range(8):
        l = [(C_F2, 4 * x + i) for i in range(4)] + [(C_F1, f + i) for i in range(nf1[x])] + [(C_NONE, 0)] * nn[x]; f += nf1[x]
        X.append(l)
    for i in range(2):
        for x in range(8):
            if i < n3[x]: X[x].append(h3.pop(0))
    while hn:
        for x in range(8):
            if len(X[x]) < 24 and hn: X[x].append(hn.pop(0))
    c = lambda rt: cost[cls(*rt)]
    order = {C_MODA: 0, C_Q: 1, C_WO: 2, C_MODB: 3, C_F1: 4, C_F2: 5, C_NONE: 6}
    R = [None] * 256
    rnd_ = random.Random(1)
    for x in range(8):
        l = X[x]; assert len(l) == 24
        tot = lambda g: c((C_WO, g)) + sum(c(rt) for rt in l[3*g:3*g+3])
        bad = lambda: sum(tot(g) ** 2 for g in range(8))
        for _ in range(4000):
            a, b = rnd_.randrange(24), rnd_.randrange(24); o = bad()
            l[a], l[b] = l[b], l[a]
            if bad() > o: l[a], l[b] = l[b], l[a]
        for g in range(8):
            for s, rt in enumerate(sorted([(C_WO, g)] + l[3*g:3*g+3], key=lambda rt: order[rt[0]])): R[8 * (g + 8 * s) + x] = rt
    for c_, n in ((C_MODA, range(16)), (C_MODB, range(16, 48)), (C_F1, range(43)), (C_F2, range(32)), (C_Q, range(64))):
        assert sorted(t for r, t in R if r == c_) == list(n), c_
    return R
def split_table(RM, cost):
    T = [None] * 256
    for x in range(8):
        for g in range(8):
            ws = [8 * (g + 8 * s) + x for s in range(4)]
            c = [cost[w] if isinstance(cost, list) else cost[cls(*RM[w])] for w in ws]
            n = [256 + (sum(c) / 4 - ci) / 16 for ci in c]
            for _ in range(4):
                lo = [min(288, max(224, v)) for v in n]; d = 1024 - sum(lo)
                fr = [i for i in range(4) if (d > 0 and lo[i] < 288) or (d < 0 and lo[i] > 224)]
                n = [v + (d / len(fr) if i in fr else 0) for i, v in enumerate(lo)] if fr else lo
            a = [0]
            for v in n: a.append(a[-1] + v)
            a = [int(round(v)) for v in a]; assert a[4] == 1024
            for s, w in enumerate(ws):
                T[w] = (896 + a[s] - 224 * s, a[s + 1] - a[s] - 224); assert 0 <= T[w][1] <= 64
    return T
SPIN_MAX = 1 << 18
ST, SLOC, SXCC = 74, 75, 76

NOTES = {
    "L_nb1": "streaming waves: K then V of this workgroup's keys (range from L_table), 1 KB per load, at most 4 loads in flight per wave",
    "L_helper": "helper waves: LDS sentinels, launch tag, role dispatch",
    "L_r_moda": "roles MODA / MODB: 64 columns of silu(c) @ w_mod",
    "L_r_q": "role Q: LayerNorm + modulation + 64 columns of h @ wq",
    "L_r_wo": "role WO: 512 x 64 tile of wo",
    "L_r_f1": "role F1: 32 columns of w1 and w3",
    "L_r_f2": "role F2: 16 columns of w2",
    "L_svc1": "wave 0: fetch q for the streaming waves",
    "L_svc2": "wave 0: max / sum of this split's scores, for the streaming waves (LDS) and for the WO workgroups",
    "L_disp3": "idle-time preparation of the tail",
    "L_join": "the barrier opens when the streaming waves have ended",
    "L_t_wo": "tail WO: gather the group's partial outputs, project, publish",
    "L_t_f1": "tail F1: residual, LayerNorm (applied after the product), gate/up, SwiGLU, publish",
    "L_t_f2": "tail F2: down projection, gated residual, output; advances the epoch word",
    "L_gtab": "per group: byte columns of w1/w3 and of w2 that its workgroups will read",
    "L_table": "per workgroup: role | tile << 3 | extra chunks << 9 | first extra chunk << 16 (chunk = 4 keys) | prefetch share << 26",
}
class G:
    def __init__(s, opts):
        s.L = []; s.o = opts; s.n = 0; s.tail = False; s.help = False
    def A(s, t):
        s.L.append("  " + t)
    def lab(s, t):
        if t in NOTES: s.L.append("; ---- " + NOTES[t])
        s.L.append(t + ":")
    def C(s, t): s.L.append("; ---- " + t)
    def uniq(s, p): s.n += 1; return f"L_{p}_{s.n}"
    def stamp(s, idx, lvl=1):
        m = s.o.get("stamps", 0)
        if m == 3 and idx not in (0, 6, 8): return
        if s.o.get("cnt") and s.help and not s.tail and idx in (3, 5, 7) and lvl == 1:
            s.A(f"s_mov_b32 s{80+2*idx}, s70"); return
        if m and (m == lvl or idx in (0, 6, 8)) and not (lvl == 2 and m == 1):
            s.A(f"s_memrealtime s[{80+2*idx}:{81+2*idx}]")

def vr(a, n): return f"v[{a}:{a+n-1}]"

def wave_allreduce(g, op, v, t):
    A = g.A
    for r in (8, 4, 2, 1):
        A("s_nop 1")
        A(f"{op}_dpp v{v}, v{v}, v{v} row_ror:{r} row_mask:0xf bank_mask:0xf")
    A(f"v_mov_b32 v{t}, v{v}")
    A("s_nop 1")
    A(f"v_permlane16_swap_b32 v{t}, v{v}")
    A(f"{op} v{v}, v{v}, v{t}")
    A(f"v_mov_b32 v{t}, v{v}")
    A("s_nop 1")
    A(f"v_permlane32_swap_b32 v{t}, v{v}")
    A(f"{op} v{v}, v{v}, v{t}")

def rnd(g, d, s=None):
    g.A(f"v_cvt_pk_bf16_f32 v{d}, 0, v{s if s is not None else d}")

def spin_tail(g, l, e, sleep, mult=1):
    A = g.A
    A("s_cmp_eq_u64 vcc, 0")
    A(f"s_cbranch_scc1 {e}")
    if sleep: A(f"s_sleep {sleep}")
    A("s_add_u32 s70, s70, 1")
    A(f"s_cmp_lt_u32 s70, {SPIN_MAX*mult}")
    A(f"s_cbranch_scc1 {l}")
    g.lab(e)

def chk_sentinel(g, regs, tmp):
    A = g.A
    rs = list(regs)
    if len(rs) == 1:
        A(f"v_cmp_eq_u32 vcc, -1, v{rs[0]}")
        return
    if len(rs) == 2:
        A(f"v_max_u32 v{tmp}, v{rs[0]}, v{rs[1]}"); rs = []
    else:
        A(f"v_max3_u32 v{tmp}, v{rs[0]}, v{rs[1]}, v{rs[2]}"); rs = rs[3:]
    while len(rs) >= 2:
        A(f"v_max3_u32 v{tmp}, v{tmp}, v{rs[0]}, v{rs[1]}"); rs = rs[2:]
    if rs: A(f"v_max_u32 v{tmp}, v{tmp}, v{rs[0]}")
    A(f"v_cmp_eq_u32 vcc, -1, v{tmp}")

def poll_tagged(g, loads, tagregs, sleep=0):
    A = g.A
    l = g.uniq("polt"); e = g.uniq("poltd")
    A("s_mov_b32 s70, 0")
    g.lab(l)
    for x in loads: A(x)
    A("s_waitcnt vmcnt(0)")
    for i, r in enumerate(tagregs):
        if i == 0: A(f"v_cmp_ne_u32 vcc, s{ST}, v{r}")
        else:
            A(f"v_cmp_ne_u32 s[68:69], s{ST}, v{r}")
            A("s_or_b64 vcc, vcc, s[68:69]")
    spin_tail(g, l, e, sleep)

def poll_lds(g, loads, regs, tmp, sleep):
    A = g.A
    l = g.uniq("pl"); e = g.uniq("pld")
    A("s_mov_b32 s70, 0")
    g.lab(l)
    for x in loads: A(x)
    A("s_waitcnt lgkmcnt(0)")
    chk_sentinel(g, regs, tmp)
    spin_tail(g, l, e, sleep, 4)

def check_votes(g, va, vt):
    A = g.A
    A(f"v_lshlrev_b32 v{vt+6}, 5, v1")
    A(f"global_load_dword v{vt+5}, v{vt+6}, s[42:43] offset:{WS_HDR+4} sc1")
    A("s_waitcnt vmcnt(0)")
    A(f"v_subrev_u32 v{vt+5}, s{ST}, v{vt+5}")
    A(f"v_cmp_eq_u32 vcc, 1, v{vt+5}")
    A("s_bcnt1_i32_b64 s70, vcc")
    A(f"v_cmp_eq_u32 vcc, 0, v{vt+5}")
    A("s_bcnt1_i32_b64 s71, vcc")
    A("s_cmp_gt_u32 s70, s71")
    A("s_cselect_b32 s71, 4, 0")
    if "near" in g.o: A(f"s_mov_b32 s71, {4*g.o['near']}")
    A(f"s_sub_u32 s68, s{SXCC}, s{ST}")
    A("s_xor_b32 s71, s71, s68"); A("s_and_b32 s71, s71, 4"); A("s_lshl_b32 s71, s71, 11")
    A(f"v_mov_b32 v{vt}, s71")
    A(f"ds_write_b32 v38, v{vt} offset:{L_NR}")

def pub_local(g, ins):
    A = g.A
    l = g.uniq("pf"); e = g.uniq("pe")
    A(f"s_cmp_eq_u32 s{SLOC}, 1")
    A(f"s_cbranch_scc0 {l}")
    A(ins)
    A(f"s_branch {e}")
    g.lab(l)
    A(ins + " sc1")
    g.lab(e)

def hs_signal(g, vt, vt2):
    A = g.A
    A(f"v_mov_b32 v{vt2}, 1")
    A("s_mov_b64 exec, 1")
    A(f"ds_add_u32 v38, v{vt2} offset:{L_CNT}")
    A("s_mov_b64 exec, -1")
def hs_wait(g, target, vt2, sleep=1):
    A = g.A
    l = g.uniq("hs"); e = g.uniq("hsd")
    A("s_mov_b32 s70, 0")
    g.lab(l)
    A(f"ds_read_b32 v{vt2}, v38 offset:{L_CNT}")
    A("s_waitcnt lgkmcnt(0)")
    A(f"v_cmp_gt_u32 vcc, {target}, v{vt2}")
    spin_tail(g, l, e, sleep, 8)
def dma_loop(g, n, step, flags, pace=0):
    A = g.A
    l = g.uniq("dma"); e = g.uniq("dmae")
    if isinstance(n, int):
        A(f"s_add_u32 s51, s50, {n*1024}")
    else:
        A(f"s_add_u32 s51, s50, {n}")
        A("s_cmp_lt_u32 s50, s51")
        A(f"s_cbranch_scc0 {e}")
    g.lab(l)
    A("s_mov_b32 m0, s50")
    A("s_add_u32 s50, s50, 1024")
    if not g.o.get("nodma"):
        A(f"buffer_load_dwordx4 v2, s[44:47], s49 offen {flags} lds")
    A(f"s_add_u32 s49, s49, {step}")
    if pace: A(f"s_waitcnt vmcnt({pace-1})")
    A("s_cmp_lt_u32 s50, s51")
    A(f"s_cbranch_scc1 {l}")
    g.lab(e)

VW, VA = 40, 104

def srd(g, d, base, nbytes):
    A = g.A
    A(f"s_mov_b32 s{d}, s{base}")
    A(f"s_mov_b32 s{d+1}, s{base+1}")
    A(f"s_mov_b32 s{d+2}, {nbytes}")
    A(f"s_mov_b32 s{d+3}, 0x20000")

def tr64_addr(g):
    A = g.A
    A("v_lshrrev_b32 v2, 2, v1")
    A("v_bfe_u32 v3, v1, 1, 1")
    A("s_lshl_b32 s49, s5, 1")
    A("v_or_b32 v3, s49, v3")
    A("v_and_b32 v10, 6, v2")
    A("v_xor_b32 v3, v3, v10")
    A("v_lshlrev_b32 v2, 7, v2")
    A("v_lshl_add_u32 v2, v3, 4, v2")
    A("v_and_b32 v3, 1, v1")
    A("v_lshl_add_u32 v2, v3, 3, v2")
    A(f"v_add_u32 v2, {L_WT}, v2")
def tr_reads(g, nk, mstep, hstep, rot=False):
    A = g.A
    for m in range(nk):
        if rot and m % 4 == 0:
            A(f"s_add_u32 s49, s5, {m//4}"); A("s_and_b32 s49, s49, 3"); A(f"s_mul_i32 s49, s49, {4*mstep}")
            A("v_add_u32 v3, s49, v2")
        for h in range(2):
            if rot: A(f"ds_read_b64_tr_b16 {vr(VW+4*m+2*h,2)}, v3 offset:{(m%4)*mstep+h*hstep}")
            else: A(f"ds_read_b64_tr_b16 {vr(VW+4*m+2*h,2)}, v2 offset:{m*mstep+h*hstep}")
        if m >= 5: A("s_waitcnt lgkmcnt(10)")
    A("s_waitcnt lgkmcnt(0)")
def tr_tile64(g):
    tr64_addr(g)
    tr_reads(g, 16, 4096, 2048)
def gemv_fused(g, vaddr, D):
    A = g.A
    def rd(m):
        for h in range(2):
            A(f"ds_read_b64_tr_b16 {vr(VW+4*m+2*h,2)}, v2 offset:{m*4096+h*2048}")
        A(f"ds_read_b128 {vr(VA+4*m,4)}, v{vaddr} offset:{64*m}")
    for m in range(5): rd(m)
    for m in range(16):
        A(f"s_waitcnt lgkmcnt({3*(min(m+5,16)-m-1)})")
        c = "0" if m == 0 else vr(D, 4)
        A(f"v_mfma_f32_16x16x32_bf16 {vr(D,4)}, {vr(VW+4*m,4)}, {vr(VA+4*m,4)}, {c}")
        if m + 5 < 16: rd(m + 5)
    A("s_nop 7")

def batch_reduce2(g, va, vb, ta, tb):
    A = g.A
    A("s_nop 0")
    for m in ("quad_perm:[1,0,3,2]", "quad_perm:[2,3,0,1]", "row_ror:8"):
        A(f"v_add_f32_dpp v{va}, v{va}, v{va} {m} row_mask:0xf bank_mask:0xf")
        A(f"v_add_f32_dpp v{vb}, v{vb}, v{vb} {m} row_mask:0xf bank_mask:0xf")
        A("s_nop 0")
    for sw in ("v_permlane16_swap_b32", "v_permlane32_swap_b32"):
        A(f"v_mov_b32 v{ta}, v{va}")
        A(f"v_mov_b32 v{tb}, v{vb}")
        A("s_nop 0")
        A(f"{sw} v{ta}, v{va}")
        A(f"{sw} v{tb}, v{vb}")
        A(f"v_add_f32 v{va}, v{va}, v{ta}")
        A(f"v_add_f32 v{vb}, v{vb}, v{tb}")

def ln_partial(g, x):
    A = g.A
    A(f"v_add_f32 v8, v{x}, v{x+1}"); A(f"v_mul_f32 v9, v{x}, v{x}")
    A(f"v_add_f32 v10, v{x+2}, v{x+3}"); A(f"v_mul_f32 v11, v{x+2}, v{x+2}")
    A(f"v_fmac_f32 v9, v{x+1}, v{x+1}"); A(f"v_fmac_f32 v11, v{x+3}, v{x+3}")
    A("v_add_f32 v8, v8, v10"); A("v_add_f32 v9, v9, v11")
    batch_reduce2(g, 8, 9, 10, 11)
    A("ds_write_b64 v5, v[8:9]")
def ln_apply(g, x, t):
    A = g.A
    A(f"ds_read_b128 {vr(t,4)}, v6")
    A(f"ds_read_b128 {vr(t+4,4)}, v6 offset:16")
    A("s_waitcnt lgkmcnt(0)")
    A(f"v_pk_add_f32 {vr(t,2)}, {vr(t,2)}, {vr(t+2,2)}")
    A(f"v_pk_add_f32 {vr(t+4,2)}, {vr(t+4,2)}, {vr(t+6,2)}")
    A(f"v_pk_add_f32 {vr(t,2)}, {vr(t,2)}, {vr(t+4,2)}")
    A(f"v_mul_f32 v8, 0x{f2u(1/512):08x}, v{t}")
    A(f"v_mul_f32 v9, 0x{f2u(1/512):08x}, v{t+1}")
    A("v_fma_f32 v9, -v8, v8, v9")
    rnd(g, 8)
    A("v_max_f32 v9, 0, v9")
    rnd(g, 9)
    for i in range(2): A(f"v_sub_f32 v{x+i}, v{x+i}, v8")
    A(f"v_add_f32 v9, 0x{EPS:08x}, v9")
    for i in range(2, 4): A(f"v_sub_f32 v{x+i}, v{x+i}, v8")
    rnd(g, 9)
    rnd(g, x)
    A("v_sqrt_f32 v9, v9")
    rnd(g, x+1)
    rnd(g, 9)
    rnd(g, x+2)
    A("v_rcp_f32 v9, v9")
    rnd(g, x+3)
    for i in range(4): A(f"v_mul_f32 v{x+i}, v{x+i}, v9")
    for i in range(4): rnd(g, x+i)

def act_addr(g, v, base, bstride):
    A = g.A
    A(f"v_and_b32 v{v}, 1, v1")
    A(f"v_mul_u32_u24 v{v}, {bstride}, v{v}")
    A(f"v_lshrrev_b32 v3, 4, v1")
    A(f"v_lshl_add_u32 v{v}, v3, 4, v{v}")
    if base: A(f"v_add_u32 v{v}, {base}, v{v}")

def gemv(g, nk, vaddr, D):
    A = g.A
    first = min(nk, 12)
    for m in range(first):
        A(f"ds_read_b128 {vr(VA+4*m,4)}, v{vaddr} offset:{64*m}")
    issued = first
    for m in range(nk):
        A(f"s_waitcnt lgkmcnt({issued-m-1})")
        c = "0" if m == 0 else vr(D, 4)
        A(f"v_mfma_f32_16x16x32_bf16 {vr(D,4)}, {vr(VW+4*m,4)}, {vr(VA+4*m,4)}, {c}")
        if issued < nk:
            A(f"ds_read_b128 {vr(VA+4*issued,4)}, v{vaddr} offset:{64*issued}")
            issued += 1
    A("s_nop 7")

def guard(g, r):
    g.A(f"v_min_u32 v{r}, s72, v{r}")

def unpack2(g, d, s):
    g.A(f"v_lshlrev_b32 v{d}, 16, v{s}")
    g.A(f"v_and_b32 v{d+1}, s73, v{s}")
def unpack4(g, d, s, step=1):
    unpack2(g, d, s); unpack2(g, d+2, s+step)

def silu4(g, x, t):
    A = g.A
    for i in range(4): A(f"v_mul_f32 v{t+i}, 0x{LOG2E ^ 0x80000000:08x}, v{x+i}")
    for i in range(4): A(f"v_exp_f32 v{t+i}, v{t+i}")
    A("s_nop 0")
    for i in range(4): A(f"v_add_f32 v{t+i}, 1.0, v{t+i}")
    for i in range(4): A(f"v_rcp_f32 v{t+i}, v{t+i}")
    A("s_nop 0")
    for i in range(4): A(f"v_mul_f32 v{x+i}, v{x+i}, v{t+i}")

EX8 = ["s_mov_b32 exec_lo, 0x00030003", "s_mov_b32 exec_hi, 0x00030003"]

def gen(opts):
    g = G(opts); A = g.A
    D = opts.get("D", 4); NS = 36; NO = 8; NL = opts.get("NL", 8)
    LDS_BYTES = L_VX + 8192 * NL
    cost = dict(COST)
    for k in list(cost):
        if "c" + k in opts: cost[k] = opts["c" + k]
    RM = role_map(opts.get("rmode", 4), cost)
    opts["_RM"] = RM
    if opts.get("even"): cost = {k: 0 for k in cost}
    SP = split_table(RM, opts.get("ctab", cost))
    free = lambda w: RM[w][0] in (C_NONE, C_MODA, C_MODB, C_Q)
    RK = [sum(1 for v in range(w % 8, w, 8) if free(v)) & 15 for w in range(256)]
    opts.setdefault("wburst", 1)
    XD = opts.get("xd", 0)
    SKIP = opts.get("skip", 0)
    WFL = opts.get("wflags", "nt").replace("_", " ")
    hdr = open(opts["ref"]).read().split("; Override launch")[0]
    g.L.append(hdr.rstrip("\n"))
    g.L.append(""";
;    answers faster) and the sizes of the key ranges only affect speed.""")
    g.L.append(f"; @launch grid=(256,1,1) block=(768,1,1) lds={LDS_BYTES}")
    g.L.append('.amdgcn_target "amdgcn-amd-amdhsa--gfx950"\n.text')
    g.L.append(f".globl {KNAME}\n.p2align 8\n.type {KNAME},@function\n{KNAME}:")
    A("s_cmpk_ge_u32 s2, 256")
    A("s_cbranch_scc1 L_end")
    A("s_load_dwordx2 s[44:45], s[0:1], 8")
    g.stamp(0)
    A("v_readfirstlane_b32 s5, v0")
    A("s_and_b32 s6, s2, 63")
    A("s_lshr_b32 s7, s2, 6")
    A("s_lshr_b32 s5, s5, 6")
    A("v_and_b32 v1, 63, v0")
    A("s_cmp_lt_u32 s5, 4")
    A("s_cbranch_scc1 L_helper")

    RB = 24
    def slot(j): return RB + 4 * j
    ROTM = opts.get("rot", 5)
    if opts.get("cp2"):
        A(f"s_cmp_ge_u32 s2, {8*opts['cp2']}"); A("s_cbranch_scc1 L_nop2")
        A("s_getpc_b64 s[56:57]")
        g.lab("L_pc0")
        A("v_subrev_u32 v3, 256, v0")
        A("v_lshlrev_b32 v3, 6, v3")
        A("v_min_u32 v3, L_gtab-L_pc0, v3")
        A("global_load_dword v3, v3, s[56:57]")
        g.lab("L_nop2")
    A("s_lshl_b32 s10, s6, 22")
    A(f"s_mul_i32 s58, s7, {224*1024}")
    A(f"s_add_u32 s11, s10, {0x300000-4*1024}")
    A("v_lshl_add_u32 v2, v0, 4, s11")
    A("s_lshl_b32 s46, 1, 28"); A("s_lshl_b32 s47, 1, 17")
    if opts.get("rot2"):
        A(f"s_mul_i32 s12, s2, {opts['rot2']}"); A("s_and_b32 s12, s12, 0x78"); A("s_lshl_b32 s12, s12, 10")
        A("s_add_u32 s12, s12, s58")
    elif ROTM:
        A(f"s_mul_i32 s12, s6, {ROTM}"); A("s_and_b32 s12, s12, 15"); A("s_lshl_b32 s12, s12, 13")
        A("s_add_u32 s12, s12, s58")
    else: A("s_mov_b32 s12, s58")
    A("s_waitcnt lgkmcnt(0)")
    def sched(txt):
        out = []
        for part in str(txt).split(","):
            p, _, u = part.partition(".")
            out.append(([int(c) for c in p], int(u) if u else 999))
        return lambda j: next(p[j % len(p)] for p, u in out if j < u)
    SCH = sched(opts.get("sch", D)); SCE = sched(opts.get("sce", "3.40,4")); XM = opts.get("xm", 0x55)
    EB = opts.get("eb", 1)
    D0 = opts.get("D0", 5); JB = NO - 1 + opts.get("jb", max(D0, 4))
    step = [D0]
    def throttle(_=None):
        j = step[0]; step[0] += 1
        d = SCH(j); e = SCE(j)
        A(f"s_waitcnt vmcnt({d-1})")
        if opts.get("tau"):
            l = g.uniq("ta")
            A("s_waitcnt lgkmcnt(0)")
            A("s_lshl_b32 s16, s16, 3"); A("s_sub_u32 s16, s16, s18"); A(f"s_add_u32 s18, s18, {opts['tau']*8//10}")
            A("s_cmp_ge_i32 s16, 0"); A(f"s_cbranch_scc1 {l}")
            A(f"s_waitcnt vmcnt({opts.get('td', 2)-1})")
            g.lab(l)
            A("s_memrealtime s[16:17]")
        if e < d:
            l = g.uniq("th")
            A("s_bitcmp0_b32 s68, 0")
            A(f"s_cbranch_scc1 {l}")
            A(f"s_waitcnt vmcnt({e-1})")
            g.lab(l)
    def issue(t, i, lds=None):
        if i < NO:
            A(f"buffer_load_dwordx4 {vr(slot(i),4)}, v2, s[{44+4*t}:{47+4*t}], s13 offen nt")
            A("s_addk_i32 s13, 0x2000")
            return
        if lds is not None:
            A(f"s_add_u32 m0, s15, {lds*1024}")
            A("s_nop 0")
            A(f"buffer_load_dwordx4 v2, s[{44+4*t}:{47+4*t}], s12 offen nt lds")
        else:
            A(f"buffer_load_dwordx4 {vr(slot(i),4)}, v2, s[{44+4*t}:{47+4*t}], s12 offen nt")
        if (t, i) == (1, NS - 1): return
        if not ROTM and i == NS - 1: A("s_mov_b32 s12, s58"); return
        A("s_addk_i32 s12, 0x2000")
        if ROTM and i >= NO + 12:
            A("s_cmp_ge_u32 s12, s59")
            A("s_cselect_b32 s12, s58, s12")
    def optional(i, body):
        l = g.uniq("opt")
        A(f"s_cmp_gt_u32 s60, {i}")
        A(f"s_cbranch_scc1 {l}")
        body()
        g.lab(l)
    def optionals(t, between=None):
        l = g.uniq("opts")
        A("s_mov_b32 s13, s61")
        for i in range(NO - 1, -1, -1):
            A(f"s_cmp_gt_u32 s60, {i}")
            A(f"s_cbranch_scc1 {l}")
            throttle(99); issue(t, i)
        g.lab(l)
    g.lab("L_nb1")
    for j in range(NO, NS):
        if j >= NO + D0: throttle(j)
        issue(0, j)
        if j == NO + min(D0, 4) - 1:
            if opts.get("pst"): g.stamp(2)
            A("s_getpc_b64 s[56:57]")
            g.lab("L_pc")
            A("s_lshl_b32 s3, s2, 2")
            A("s_add_u32 s3, s3, L_table-L_pc")
            A("s_load_dword s14, s[56:57], s3")
            A("s_load_dwordx2 s[48:49], s[0:1], 16")
            A("s_load_dwordx4 s[20:23], s[0:1], 24")
            A("s_load_dwordx2 s[28:29], s[0:1], 80")
            A("s_load_dwordx2 s[42:43], s[0:1], 104")
            if opts.get("tau"):
                A("s_memrealtime s[16:17]"); A("s_waitcnt lgkmcnt(0)")
                A("s_lshl_b32 s18, s16, 3"); A(f"s_add_u32 s18, s18, {(opts.get('toff', 0)*8//10) & 0xffffffff}")
            A("s_getreg_b32 s68, hwreg(HW_REG_XCC_ID, 0, 3)"); A(f"s_lshr_b32 s68, {XM}, s68")
        if j == (NO + D0 - 1 if EB else JB): A("s_barrier")
        if j == JB:
            A("s_sub_u32 s9, s5, 4")
            A("s_mov_b64 s[50:51], s[46:47]")
            A("s_mov_b32 s52, 0xcccccccc"); A("s_mov_b32 s53, 0xcccccccc")
            A("s_mov_b32 s54, 0xaaaaaaaa"); A("s_mov_b32 s55, 0xaaaaaaaa")
            A(f"s_mul_i32 s15, s9, {NL*1024}")
            A(f"s_add_u32 s15, s15, {L_VX}")
            A(f"s_add_u32 s59, s58, {28*8192}")
            A("v_mov_b32 v4, 0")
            A("v_lshrrev_b32 v5, 3, v1")
            A("v_and_b32 v6, 6, v5")
            A("v_xor_b32 v6, v6, v1")
            A("v_and_b32 v6, 7, v6")
            A("s_lshl_b32 s33, s9, 6")
            A("s_movk_i32 s26, 6144"); A(f"s_mov_b32 s30, {512*6144}"); A("s_mov_b32 s31, s47")
            A("s_lshl_b32 s34, s9, 13"); A(f"s_add_u32 s34, s34, {L_WT}"); A("s_add_u32 s35, s34, 8192")
            A("s_and_b32 s36, s2, 7"); A("s_lshl_b32 s36, s36, 1"); A("s_and_b32 s37, s9, 1"); A("s_add_u32 s36, s36, s37")
            A("s_lshr_b32 s37, s9, 1"); A("s_lshl_b32 s37, s37, 4"); A("s_add_u32 s36, s36, s37"); A("s_lshl_b32 s36, s36, 6")
            A("s_waitcnt lgkmcnt(0)")
            A("s_and_b32 s27, s14, 7")
            A(f"s_cmp_eq_u32 s27, {C_Q}")
            A("s_cselect_b64 s[28:29], s[20:21], s[28:29]"); A("s_cselect_b32 s26, 0x2000, s26"); A("s_cselect_b32 s30, 0x400000, s30")
            A(f"s_cmp_eq_u32 s27, {C_WO}")
            A("s_cselect_b64 s[28:29], s[22:23], s[28:29]"); A("s_cselect_b32 s26, 0x400, s26"); A("s_cselect_b32 s30, 0x400000, s30")
            A("s_cselect_b32 s33, s36, s33")
            A(f"s_cselect_b32 s27, {C_MODB}, s27")
            A("v_mul_u32_u24 v5, s26, v5")
            A("v_lshl_add_u32 v5, v6, 4, v5")
            A("v_mov_b32 v6, 1")
            A("s_mul_i32 s33, s33, s26")
            A("s_bfe_u32 s32, s14, 0x60003"); A("s_lshl_b32 s32, s32, 7"); A("s_add_u32 s33, s33, s32")
            A("s_lshl_b32 s26, s26, 3")
        JW = opts.get("JW", JB)
        for pos, cond in ((JB, f"s_cmp_lt_u32 s27, {C_MODA if JW != JB else C_MODB}"), (JW, f"s_cmp_lg_u32 s27, {C_MODB}"))[:1 + (JW != JB)]:
            if j == pos:
                l = g.uniq("wl"); e = g.uniq("we")
                A(cond); A(f"s_cbranch_scc1 {e}")
                g.lab(l)
                A("s_mov_b32 m0, s34")
                if opts.get("wburst"):
                    l2 = g.uniq("wb")
                    A(f"s_cmp_ge_u32 s27, {opts['wburst']}" if opts['wburst'] != 1 else f"s_cmp_eq_u32 s27, {C_MODA}"); A(f"s_cbranch_scc1 {l2}")
                throttle(); step[0] -= 1
                if opts.get("wburst"): g.lab(l2)
                if not opts.get("nodma"): A(f"buffer_load_dwordx4 v5, s[28:31], s33 offen {WFL} lds")
                A("s_add_u32 s33, s33, s26")
                A("s_addk_i32 s34, 1024")
                A("s_cmp_lt_u32 s34, s35"); A(f"s_cbranch_scc1 {l}")
                g.lab(e)
            if j == pos + D:
                e = g.uniq("ws")
                A(cond); A(f"s_cbranch_scc1 {e}")
                A("s_mov_b64 exec, 1")
                A(f"ds_add_u32 v4, v6 offset:{L_CNT}")
                A("s_mov_b64 exec, -1")
                g.lab(e)
        if j == NO + 11:
            A("s_bfe_u32 s61, s14, 0xa0010"); A("s_lshl_b32 s61, s61, 10")
            A("s_bfe_u32 s60, s14, 0x70009")
            A("s_sub_u32 s60, s9, s60"); A("s_add_u32 s60, s60, 64"); A("s_lshr_b32 s60, s60, 3")
            A("v_bfrev_b32 v3, v1")
            A("v_lshrrev_b32 v3, 28, v3")
            A("v_cmp_gt_u32 s[66:67], s60, v3")
            A("v_and_b32 v3, 15, v1")
            A("v_lshlrev_b32 v3, 4, v3")
            optionals(0)
        if j == opts.get("JQ", 23): A(f"ds_write_b32 v4, v4 offset:{L_PQ}")
        if j == opts.get("JG", 38): A(f"ds_write_b32 v4, v4 offset:{L_PG}")
    for k in range(NL):
        throttle(NS + k)
        issue(1, NO + k, lds=k)
        if NS + k == opts.get("JG", 38): A(f"ds_write_b32 v4, v4 offset:{L_PG}")
    g.stamp(1)
    T, X = 8, 16
    NOCOMP = opts.get("nocomp", 0)
    if not NOCOMP:
        poll_lds(g, [f"ds_read_b128 v[4:7], v3 offset:{L_QV}"], [4, 5, 6, 7], 8, 2)
    if not opts.get("pst"): g.stamp(2)
    A(f"s_waitcnt vmcnt({NL})")
    nxt = NO + NL
    for G_ in (1, 2, 3, 4, 0):
        ne = 4 if G_ == 4 else 8
        if not NOCOMP:
            for tt in range(4):
                for e in range(ne):
                    c = "0" if tt == 0 else f"v{T+e}"
                    A(f"v_dot2_f32_bf16 v{T+e}, v{slot(8*G_+e)+tt}, v{4+tt}, {c}")
        if str(G_) in str(opts.get("qki", 30)) and nxt < 8 * ((G_ or 4) + 1):
            if NOCOMP or opts.get("qkt"): throttle(99)
            issue(1, nxt); nxt += 1
        if NOCOMP: continue
        for e in range(0, ne, 2):
            A(f"v_add_f32_dpp v{T+e}, v{T+e}, v{T+e} row_ror:8 row_mask:0xf bank_mask:0x3")
            A(f"v_add_f32_dpp v{T+e}, v{T+e+1}, v{T+e+1} row_ror:8 row_mask:0xf bank_mask:0xc")
        if ne == 4: A("s_nop 0")
        for h in range(ne // 4):
            d = 3 if G_ == 4 else X + 2 * G_ + h
            A(f"v_add_f32_dpp v{d}, v{T+4*h}, v{T+4*h} row_shl:4 row_mask:0xf bank_mask:0x5")
            A(f"v_add_f32_dpp v{d}, v{T+4*h+2}, v{T+4*h+2} row_shr:4 row_mask:0xf bank_mask:0xa")
    PR = [4, 6, 20]
    if NOCOMP:
        for n in range(4): A(f"v_mov_b32 v{X+n}, 1.0")
    else:
        A("v_add_f32_dpp v3, v3, v3 quad_perm:[2,3,0,1] row_mask:0xf bank_mask:0xf")
        for n in (2, 3, 4, 5, 6, 7, 0, 1):
            A(f"v_add_f32_dpp v{X+n}, v{X+n}, v{X+n} quad_perm:[2,3,0,1] row_mask:0xf bank_mask:0xf")
        for n in range(4):
            A(f"v_cndmask_b32 v{T+n}, v{X+2*n}, v{X+2*n+1}, s[52:53]")
        A(f"v_add_f32_dpp v{X+2}, v3, v3 quad_perm:[1,0,3,2] row_mask:0xf bank_mask:0xf")
        for n in range(4):
            A(f"v_add_f32_dpp v{T+n}, v{T+n}, v{T+n} quad_perm:[1,0,3,2] row_mask:0xf bank_mask:0xf")
        for n in range(2):
            A(f"v_cndmask_b32 v{X+n}, v{T+2*n}, v{T+2*n+1}, s[54:55]")
        for n in range(3): rnd(g, X+n)
        for n in range(3): A(f"v_mul_f32 v{X+n}, 0x{SCALE:08x}, v{X+n}")
        for n in range(3): rnd(g, X+n)
        A(f"v_mov_b32 v{X+3}, 0xff800000")
        A("s_mov_b32 s52, 0xeeeeeeee"); A("s_mov_b32 s53, 0xeeeeeeee")
        A(f"v_cndmask_b32 v{X}, v{X}, v{X+3}, s[66:67]")
        A(f"v_cndmask_b32 v{X+2}, v{X+2}, v{X+3}, s[52:53]")
    A("s_lshl_b32 s11, s9, 10")
    A("v_lshl_add_u32 v3, v1, 4, s11")
    A(f"ds_write_b128 v3, v[{X}:{X+3}] offset:{L_SC}")
    g.stamp(3)
    while True:
        throttle(99); issue(1, nxt); nxt += 1
        if nxt - NO - NL >= D: break
    A("v_lshl_add_u32 v3, v1, 4, s15")
    for k in range(NL):
        A(f"ds_read_b128 {vr(slot(NO+k),4)}, v3 offset:{k*1024}")
    A(f"v_max3_f32 v22, v{X}, v{X+1}, v{X+2}")
    wave_allreduce(g, "v_max_f32", 22, 23)
    for n in range(3): A(f"v_sub_f32 v{X+n}, v{X+n}, v22")
    for n in range(3): A(f"v_mul_f32 v{X+n}, 0x{LOG2E:08x}, v{X+n}")
    for n in range(3): A(f"v_exp_f32 v{X+n}, v{X+n}")
    A("s_nop 0")
    for n in range(3):
        A(f"v_cvt_pk_bf16_f32 v{PR[n]}, v{X+n}, 0")
        A(f"v_cvt_pk_bf16_f32 v{PR[n]+1}, 0, v{X+n}")
    for e in range(8): A(f"v_mov_b32 v{T+e}, 0")
    A("s_lshl_b32 s11, s9, 9")
    A("v_and_b32 v3, 15, v1")
    A("v_lshlrev_b32 v3, 5, v3")
    A("v_lshrrev_b32 v16, 4, v1")
    A("v_lshl_add_u32 v3, v16, 3, v3")
    A("v_add_u32 v3, s11, v3")
    A(f"v_mov_b32 v16, {L_ML}")
    def pv(i):
        if NOCOMP: return
        c = ((i & 1) << 3) | (((i >> 1) & 1) << 2) | (((i >> 2) & 1) << 1) | ((i >> 3) & 1)
        pr = PR[i >> 4]
        for tt in range(4):
            for hf in range(2):
                A(f"v_dot2c_f32_bf16_dpp v{T+2*tt+hf}, v{pr+hf}, v{slot(i)+tt} row_newbcast:{c} row_mask:0xf bank_mask:0xf")
    def pvx(i):
        if i < NO: optional(i, lambda: pv(i))
        else: pv(i)
    A("s_waitcnt lgkmcnt(0)")
    per = opts.get("pvper", 3)
    BURST = opts.get("burst", 5)
    order = list(range(NO, nxt)); done = 0
    nm = lambda k: sum(1 for s_ in order[k+1:] if s_ >= NO)
    optionals(1)
    order += list(range(NO - 1, -1, -1))
    rest = list(range(nxt, NS))
    for r, i in enumerate(rest):
        if len(rest) - r > BURST: throttle(99)
        ok = [k for k in range(done, len(order)) if nm(k) >= D - 1] if len(rest) - r > BURST else []
        issue(1, i); order.append(i)
        if i == opts.get("JS", 24): A(f"ds_write_b32 v16, v16 offset:{L_PS-L_ML}")
        for k in ok[:per]: pvx(order[k]); done += 1
    g.stamp(7)
    if not NOCOMP:
        poll_lds(g, ["ds_read_b32 v18, v16"], [18], 17, 2)
    g.stamp(4)
    A("v_sub_f32 v22, v22, v18")
    A(f"v_mul_f32 v22, 0x{LOG2E:08x}, v22")
    A("v_exp_f32 v22, v22")
    A(f"ds_read_b64 v[18:19], v16 offset:{L_MB-L_ML}")
    A("s_lshl_b32 s56, s6, 2"); A("s_add_u32 s56, s56, s7")
    A("s_lshl_b32 s57, s56, 9"); A(f"s_add_u32 s57, s57, {WS_OP}")
    A("v_lshl_add_u32 v2, v1, 3, s57")
    if XD:
        A("s_load_dwordx4 s[20:23], s[0:1], 48")
        A("s_lshr_b32 s36, s9, 2"); A("s_and_b32 s37, s9, 1"); A("s_bfe_u32 s38, s9, 0x10001")
        A("s_lshl_b32 s39, s36, 1"); A("s_or_b32 s39, s39, s37")
        A("v_lshrrev_b32 v23, 2, v1")
        A("v_mul_u32_u24 v23, 5504, v23")
        A("v_xor_b32 v17, s39, v1")
        A("v_and_b32 v17, 3, v17")
        A("v_lshl_add_u32 v23, v17, 4, v23")
        A("s_lshl_b32 s34, s39, 14"); A("s_lshl_b32 s35, s38, 13"); A("s_add_u32 s34, s34, s35"); A(f"s_add_u32 s34, s34, {L_WT}")
        A("s_add_u32 s35, s34, 8192")
        A("s_lshl_b32 s33, s38, 8"); A("s_add_u32 s33, s33, s37"); A("s_mul_i32 s33, s33, 2752")
        A("s_lshr_b32 s32, s32, 1"); A("s_add_u32 s33, s33, s32")
        A(f"s_mov_b32 s30, {512*2752}")
    A("v_and_b32 v17, 1, v1")
    A("v_lshlrev_b32 v17, 4, v17")
    A("v_lshlrev_b32 v1, 3, v1")
    A("v_mov_b32 v0, 1")
    A("s_movk_i32 s56, 0xff")
    A("s_waitcnt lgkmcnt(0)")
    A(f"v_readfirstlane_b32 s{SLOC}, v19")
    if XD:
        A("s_cmp_eq_u32 s36, 0")
        A("s_cselect_b64 s[28:29], s[20:21], s[22:23]")
    A("v_lshrrev_b32 v18, v17, v18")
    A("v_lshrrev_b32 v19, 8, v18")
    while done < NS:
        if nm(done) < D + BURST: A(f"s_waitcnt vmcnt({nm(done)})")
        pvx(order[done]); done += 1
    g.stamp(5); g.stamp(5, 2)
    A("s_nop 2")
    for j in range(4):
        A(f"v_permlane32_swap_b32 v{T+j}, v{T+j+4}")
    for j in range(4):
        A(f"v_add_f32 v{T+j}, v{T+j}, v{T+j+4}")
    A("s_nop 0")
    for j in range(2):
        A(f"v_permlane16_swap_b32 v{T+j}, v{T+j+2}")
    for j in range(2):
        A(f"v_add_f32 v{T+j}, v{T+j}, v{T+j+2}")
    for j in range(2):
        A(f"v_mul_f32 v{T+j}, v{T+j}, v22")
    A(f"ds_write_b64 v3, v[{T}:{T+1}] offset:{L_OP}")
    A("s_mov_b64 exec, 1")
    A(f"ds_add_rtn_u32 v17, v16, v0 offset:{L_CNT+4-L_ML}")
    A("s_mov_b64 exec, -1")
    PA = slot(NO)
    for i in range(8):
        A(f"ds_read_b64 {vr(PA+2*i,2)}, v1 offset:{L_OP+512*i}")
    for i in range(4):
        A(f"s_waitcnt lgkmcnt({6-2*i})")
        if i == 0: A("v_readfirstlane_b32 s57, v17")
        A(f"v_pk_add_f32 {vr(PA+4*i,2)}, {vr(PA+4*i,2)}, {vr(PA+4*i+2,2)}")
    A(f"v_pk_add_f32 {vr(PA,2)}, {vr(PA,2)}, {vr(PA+4,2)}")
    A(f"v_pk_add_f32 {vr(PA+8,2)}, {vr(PA+8,2)}, {vr(PA+12,2)}")
    A("s_cmp_lg_u32 s57, 7")
    A(f"v_pk_add_f32 {vr(PA,2)}, {vr(PA,2)}, {vr(PA+8,2)}")
    A(f"v_bfi_b32 v18, s56, v18, v{PA}")
    A(f"v_bfi_b32 v19, s56, v19, v{PA+1}")
    A("s_cbranch_scc1 L_send")
    if not opts.get("nohelp") in (1, 2) and not SKIP & 16: pub_local(g, "global_store_dwordx2 v2, v[18:19], s[42:43]")
    g.lab("L_send")
    if opts.get("stamps") in (1, 2): g.stamp(6)
    A("s_barrier")
    if XD:
        g.C("F1 workgroups: these waves stage the weight tile (wave = matrix, row half, row parity) while the helper waves gather")
        A(f"s_cmp_lg_u32 s27, {C_F1}"); A("s_cbranch_scc1 L_sfin")
        g.lab("L_xd")
        A("s_mov_b32 m0, s34")
        A("s_addk_i32 s34, 1024")
        if not opts.get("nodma"): A("buffer_load_dwordx4 v23, s[28:31], s33 offen lds")
        A(f"s_add_u32 s33, s33, {32*2752}")
        A("s_cmp_lt_u32 s34, s35"); A("s_cbranch_scc1 L_xd")
        A("s_mov_b64 exec, 1")
        A("s_waitcnt vmcnt(0)")
        A(f"ds_add_u32 v16, v0 offset:{L_CNT-L_ML}")
        A("s_mov_b64 exec, -1")
        g.lab("L_sfin")
    if opts.get("stamps") in (1, 2):
        A("s_lshl_b32 s3, s2, 7")
        A("s_lshl_b32 s4, s9, 2")
        A("s_add_u32 s4, s4, s3")
        A(f"s_add_u32 s4, s4, {WS_STAMP+96}")
        A("v_mov_b32 v2, s4")
        A("s_waitcnt lgkmcnt(0)")
        A("v_mov_b32 v3, s92")
        A("global_store_dword v2, v3, s[42:43]")
        A("s_cmp_lg_u32 s5, 4")
        A("s_cbranch_scc1 L_end")
        A(f"s_add_u32 s3, s3, {WS_STAMP+64}")
        A("v_mov_b32 v2, s3")
        A("s_waitcnt lgkmcnt(0)")
        for i in range(8):
            A(f"v_mov_b32 v3, s{80+2*i}")
            A(f"global_store_dword v2, v3, s[42:43] offset:{4*i}")
    A("s_endpgm")

    g.lab("L_helper")
    g.help = True
    if opts.get("nohelp") == 1: A("s_endpgm")
    def h_loads():
        A("s_getpc_b64 s[56:57]")
        g.lab("L_pc2")
        A("s_lshl_b32 s3, s2, 2")
        A("s_add_u32 s3, s3, L_table-L_pc2")
        A("s_load_dwordx16 s[16:31], s[0:1], 0")
        A("s_load_dword s14, s[56:57], s3")
        A("s_load_dwordx8 s[32:39], s[0:1], 64")
        A("s_load_dwordx4 s[40:43], s[0:1], 96")
        A("s_and_b32 s8, s2, 7")
        A("s_mov_b64 s[100:101], s[56:57]")
        if opts.get("cpf", 0):
            A(f"s_cmpk_lt_u32 s2, {256 - 8*opts.get('cpf', 1)}"); A("s_cbranch_scc1 L_nopf")
            A("s_sub_u32 s58, s56, L_pc2-L_nb1"); A("s_subb_u32 s59, s57, 0")
            A("v_lshlrev_b32 v2, 7, v0")
            A("v_min_u32 v2, L_end-L_nb1, v2")
            A("global_load_dword v167, v2, s[58:59]")
            g.lab("L_nopf")
        if opts.get("amp"): A("s_memrealtime s[78:79]")
        A("s_mov_b32 s72, 0xfffffffe")
        A("s_mov_b32 s73, 0xffff0000")
    def h_init():
        A("v_mov_b32 v4, -1"); A("v_mov_b32 v5, -1"); A("v_mov_b32 v6, -1"); A("v_mov_b32 v7, -1")
        A("v_lshlrev_b32 v2, 4, v0")
        A(f"ds_write_b128 v2, v[4:7] offset:{L_SC}")
        A(f"ds_write_b128 v2, v[4:7] offset:{L_SC+4096}")
        A("v_lshlrev_b32 v2, 2, v1")
        A(f"ds_write_b32 v2, v4 offset:{L_QV}")
        A("v_mov_b32 v38, 0")
        A(f"ds_write_b128 v38, v[4:7] offset:{L_ML}")
        A(f"ds_write_b128 v38, v[4:7] offset:{L_PQ}")
        A("v_mov_b32 v39, 0")
        A(f"ds_write_b64 v38, v[38:39] offset:{L_CNT}")
    if EB:
        h_init()
        A("s_waitcnt lgkmcnt(0)")
        A("s_barrier")
        h_loads()
    else:
        h_loads(); h_init()
    A(f"s_getreg_b32 s{SXCC}, hwreg(HW_REG_XCC_ID, 0, 4)")
    A("v_lshrrev_b32 v12, 3, v0")
    A("v_lshlrev_b32 v12, 5, v12")
    A("v_bfe_u32 v3, v1, 2, 1")
    A("v_lshl_add_u32 v12, v3, 10, v12")
    A("v_and_b32 v8, 3, v1")
    A("v_lshl_add_u32 v13, v8, 3, v12")
    A("v_and_b32 v12, 0xffffffdf, v12")
    A("v_lshl_add_u32 v12, v8, 4, v12")
    A("v_bfe_u32 v8, v1, 3, 1")
    A("v_lshl_add_u32 v12, v8, 3, v12")
    A("v_lshl_add_u32 v12, v3, 5, v12")
    A("s_waitcnt lgkmcnt(0)")
    if not EB: A("s_barrier")
    A(f"s_load_dword s{ST}, s[42:43], {WS_E}")
    A("s_and_b32 s13, s14, 7")
    A("s_bfe_u32 s61, s14, 0x60003")
    A(f"s_cmp_eq_u32 s13, {C_Q}"); A("s_cbranch_scc1 L_r_q")
    A(f"s_cmp_ge_u32 s13, {C_MODB}"); A("s_cbranch_scc1 L_r_moda")
    A(f"s_cmp_eq_u32 s13, {C_WO}"); A("s_cbranch_scc1 L_r_wo")
    A(f"s_cmp_eq_u32 s13, {C_F1}"); A("s_cbranch_scc1 L_r_f1")
    A(f"s_cmp_eq_u32 s13, {C_F2}"); A("s_cbranch_scc1 L_r_f2")
    A("s_branch L_r_none")

    def make_tag():
        A("s_waitcnt lgkmcnt(0)")
        A(f"s_mul_i32 s{ST}, s{ST}, 0x9e3779b1")
        A(f"s_add_u32 s{ST}, s{ST}, 0x7f4a7c15")
        A(f"s_add_u32 s{SXCC}, s{SXCC}, s{ST}")
    def line_out_addr(v, bsh=6, ush=7):
        A(f"v_and_b32 v{v}, 1, v1")
        A(f"v_lshlrev_b32 v{v}, {bsh}, v{v}")
        A("v_lshrrev_b32 v3, 4, v1")
        A(f"v_lshl_add_u32 v{v}, v3, 4, v{v}")
        A(f"s_lshl_b32 s49, s5, {ush}")
        A("s_add_u32 s49, s49, s58")
        A(f"v_add_u32 v{v}, s49, v{v}")
    def pack_tagged():
        A("v_cvt_pk_bf16_f32 v8, v8, v9")
        A("v_cvt_pk_bf16_f32 v10, v10, v11")
        A(f"v_mov_b32 v9, s{ST}")
        A(f"v_mov_b32 v11, s{ST}")
    def ln_addrs():
        A("v_bfe_u32 v6, v1, 2, 1")
        A("v_lshlrev_b32 v6, 5, v6")
        A(f"v_add_u32 v6, {L_RED}, v6")
        A("s_lshl_b32 s49, s5, 3")
        A("v_add_u32 v5, s49, v6")

    def mod_params():
        A("s_lshl_b32 s58, s61, 9")
        A(f"s_add_u32 s58, s58, {WS_MOD}")
    def mod_act():
        unpack4(g, 16, 14)
        silu4(g, 16, 20)
        A("v_cvt_pk_bf16_f32 v14, v16, v17")
        A("v_cvt_pk_bf16_f32 v15, v18, v19")
        A(f"ds_write_b64 v12, v[14:15] offset:{L_ACT}")
    def mod_finish():
        line_out_addr(13)
        act_addr(g, 14, L_ACT, ACT_BS)
        tr64_addr(g)
        A("s_waitcnt lgkmcnt(0)")
        hs_signal(g, 8, 9); hs_wait(g, 12, 9, 2)
        g.stamp(1)
        gemv_fused(g, 14, 8)
        pack_tagged()
        for x in EX8: A(x)
        if SKIP & 1:
            A(f"s_cmp_eq_u32 s13, {C_MODB}"); A("s_cbranch_scc1 L_sk1")
        if not SKIP & 32: A("global_store_dwordx4 v13, v[8:11], s[42:43] sc1")
        g.lab("L_sk1")
        A("s_mov_b64 exec, -1")
        g.stamp(2)

    g.lab("L_r_moda")
    mod_params()
    A("global_load_dwordx2 v[14:15], v13, s[34:35]")
    make_tag()
    A("s_waitcnt vmcnt(0)")
    mod_act()
    mod_finish()
    A("s_mov_b32 s60, 0")
    A("s_branch L_svc1")

    g.lab("L_r_q")
    A("s_lshl_b32 s58, s61, 9")
    A(f"s_add_u32 s58, s58, {WS_Q}")
    A("global_load_dwordx2 v[14:15], v13, s[16:17]")
    make_tag()
    A("s_waitcnt vmcnt(0)")
    ln_addrs()
    unpack4(g, 20, 14)
    ln_partial(g, 20)
    A("s_waitcnt lgkmcnt(0)")
    hs_signal(g, 8, 9); hs_wait(g, 12, 9, 4)
    ln_apply(g, 20, 24)
    tr_tile64(g)
    line_out_addr(13)
    act_addr(g, 14, L_ACT, ACT_BS)
    A("v_lshlrev_b32 v15, 4, v0")
    A(f"v_add_u32 v15, {WS_MOD}, v15")
    A("v_add_u32 v36, 0x1000, v15")
    poll_lds(g, [f"ds_read_b32 v8, v38 offset:{L_PQ}"], [8], 9, 8)
    g.stamp(1)
    A("s_mov_b64 s[64:65], -1"); A("s_mov_b64 s[66:67], -1")
    A("s_mov_b32 s70, 0")
    g.lab("L_q_p")
    A("s_mov_b64 exec, s[64:65]")
    A("global_load_dwordx4 v[16:19], v15, s[42:43] sc1")
    A("s_mov_b64 exec, s[66:67]")
    A("global_load_dwordx4 v[32:35], v36, s[42:43] sc1")
    A("s_mov_b64 exec, -1")
    A("s_waitcnt vmcnt(0)")
    A(f"v_cmp_ne_u32 s[64:65], s{ST}, v17"); A(f"v_cmp_ne_u32 s[68:69], s{ST}, v19"); A("s_or_b64 s[64:65], s[64:65], s[68:69]")
    A(f"v_cmp_ne_u32 s[66:67], s{ST}, v33"); A(f"v_cmp_ne_u32 s[68:69], s{ST}, v35"); A("s_or_b64 s[66:67], s[66:67], s[68:69]")
    A("s_or_b64 vcc, s[64:65], s[66:67]")
    if SKIP & 32: A("s_mov_b64 vcc, 0")
    spin_tail(g, "L_q_p", "L_q_ok", opts.get("msleep", 0))
    g.stamp(7)
    unpack4(g, 28, 32, 2)
    unpack4(g, 24, 16, 2)
    for i in range(4): A(f"v_add_f32 v{28+i}, 1.0, v{28+i}")
    for i in range(4): rnd(g, 28+i)
    for i in range(4): A(f"v_mul_f32 v{20+i}, v{20+i}, v{28+i}")
    for i in range(4): rnd(g, 20+i)
    for i in range(4): A(f"v_add_f32 v{20+i}, v{20+i}, v{24+i}")
    A("v_cvt_pk_bf16_f32 v16, v20, v21")
    A("v_cvt_pk_bf16_f32 v17, v22, v23")
    A(f"ds_write_b64 v12, v[16:17] offset:{L_ACT}")
    hs_signal(g, 8, 9); hs_wait(g, 16, 9, 0)
    gemv(g, 16, 14, 8)
    pack_tagged()
    guard(g, 8); guard(g, 10)
    for x in EX8: A(x)
    if not SKIP & 2: A("global_store_dwordx4 v13, v[8:11], s[42:43] " + opts.get("qf", "sc1").replace("_", ""))
    A("s_mov_b64 exec, -1")
    g.stamp(2)
    A("s_mov_b32 s60, 0")
    A("s_branch L_svc1")

    g.lab("L_r_wo")
    A("s_and_b32 s66, s2, 7")
    A("s_lshr_b32 s58, s66, 1"); A("s_lshl_b32 s58, s58, 14")
    A("s_and_b32 s49, s66, 1"); A("s_lshl_b32 s49, s49, 12"); A("s_add_u32 s58, s58, s49")
    A("s_lshl_b32 s49, s61, 9")
    A("s_add_u32 s58, s58, s49")
    A(f"s_add_u32 s58, s58, {WS_AP}")
    make_tag()
    g.C("wave 3 times two fresh lines on either memory side and votes which hand-off copy its die should read (speed only)")
    e = g.uniq("nr"); l = g.uniq("nrl")
    A("s_cmp_lg_u32 s5, 3"); A(f"s_cbranch_scc1 {e}")
    if SKIP & 4: A(f"s_branch {e}")
    A("s_lshl_b32 s49, s61, 14")
    A("s_lshl_b32 s50, s8, 10"); A("s_add_u32 s49, s49, s50"); A(f"s_add_u32 s49, s49, {WS_PRB}")
    A(f"s_add_u32 s50, s49, {opts.get('nprobe', 2)*128}")
    A("s_mov_b32 s54, -1"); A("s_mov_b32 s55, -1")
    g.lab(l)
    for c in range(2):
        A("s_memtime s[64:65]")
        A("s_waitcnt lgkmcnt(0)")
        A("s_load_dword s51, s[42:43], s49")
        A("s_waitcnt lgkmcnt(0)")
        A("s_memtime s[68:69]")
        A("s_waitcnt lgkmcnt(0)")
        A("s_sub_u32 s68, s68, s64")
        A(f"s_min_u32 s{54+c}, s{54+c}, s68")
        A("s_xor_b32 s49, s49, 0x2000")
    A("s_add_u32 s49, s49, 128")
    A("s_cmp_lt_u32 s49, s50"); A(f"s_cbranch_scc1 {l}")
    A("s_cmp_lt_u32 s55, s54")
    A("s_cselect_b32 s54, 1, 0")
    A(f"s_sub_u32 s55, s{SXCC}, s{ST}"); A("s_lshr_b32 s55, s55, 2")
    A("s_xor_b32 s54, s54, s55"); A("s_and_b32 s54, s54, 1")
    A(f"s_add_u32 s54, s54, s{ST}")
    A("s_lshl_b32 s55, s8, 3"); A("s_add_u32 s55, s55, s61"); A("s_lshl_b32 s55, s55, 5")
    A("v_mov_b32 v8, s55"); A(f"v_mov_b32 v10, s{SXCC}"); A("v_mov_b32 v11, s54")
    A("s_mov_b64 exec, 1")
    A(f"global_store_dwordx2 v8, v[10:11], s[42:43] offset:{WS_HDR} sc1")
    A("s_mov_b64 exec, -1")
    g.lab(e)
    A("s_mov_b32 s60, 1")
    A("s_branch L_svc1")

    def f1_lane_par(sp):
        A("v_lshrrev_b32 v2, 2, v1")
        A("v_mul_u32_u24 v2, 5504, v2")
        A("s_and_b32 s49, s5, 2")
        A(f"s_or_b32 s49, s49, {sp}")
        A("v_xor_b32 v3, s49, v1")
        A("v_and_b32 v3, 3, v3")
        A("v_lshl_add_u32 v2, v3, 4, v2")
    def f2_lane():
        A("v_lshrrev_b32 v2, 1, v1")
        A("v_lshlrev_b32 v2, 10, v2")
        A("v_and_b32 v3, 1, v1")
        A("v_lshl_add_u32 v2, v3, 4, v2")

    g.lab("L_r_f1")
    A("s_lshl_b32 s48, s61, 6")
    A("s_mul_i32 s49, s61, 47"); A("s_lshr_b32 s49, s49, 9")
    A(f"s_mul_i32 s49, s49, {16384-11*512}")
    A("s_lshl_b32 s58, s61, 9")
    A("s_add_u32 s58, s58, s49")
    A(f"s_add_u32 s58, s58, {WS_HH}")
    A("s_cmp_lt_u32 s5, 2")
    A("s_cselect_b32 s44, s28, s30")
    A("s_cselect_b32 s45, s29, s31")
    A(f"s_mov_b32 s46, {512*2752}"); A("s_mov_b32 s47, 0x20000")
    A("s_mov_b32 s60, 2")
    make_tag()
    A("s_branch L_svc1")

    g.lab("L_r_f2")
    srd(g, 44, 32, 1376*1024)
    make_tag()
    A("s_mov_b32 s60, 3")
    A("s_lshl_b32 s48, s61, 5")
    A("global_load_dword v167, v38, s[38:39]")
    A("s_branch L_svc1")

    g.lab("L_r_none")
    A("s_mov_b32 s60, 0")
    make_tag()

    g.lab("L_svc1")
    if opts.get("nohelp") == 2:
        A("s_endpgm")
    A("s_cmp_lg_u32 s5, 0")
    A("s_cbranch_scc1 L_disp3")
    A("s_and_b32 s64, s6, 31"); A("s_lshl_b32 s64, s64, 10")
    A("s_and_b32 s65, s6, 32"); A("s_lshl_b32 s65, s65, 1"); A("s_add_u32 s64, s64, s65")
    A(f"s_add_u32 s64, s64, {WS_Q}")
    A("v_bfe_u32 v16, v1, 2, 3")
    A("v_lshl_add_u32 v16, v16, 7, s64")
    A("v_and_b32 v17, 3, v1")
    A("v_lshl_add_u32 v16, v17, 4, v16")
    A("v_and_b32 v17, 31, v1")
    A("v_lshlrev_b32 v17, 3, v17")
    A("s_lshl_b32 s71, s8, 8")
    A("v_and_b32 v18, 7, v1")
    A("v_lshl_add_u32 v18, v18, 5, s71")
    poll_lds(g, [f"ds_read_b32 v8, v38 offset:{L_PG}"], [8], 9, 8)
    A(f"global_load_dword v19, v18, s[42:43] offset:{WS_HDR} sc1")
    poll_tagged(g, ["global_load_dwordx4 v[20:23], v16, s[42:43] sc1"], [21, 23], sleep=opts.get("qsleep", 0))
    A("v_mov_b32 v21, v22")
    A(f"ds_write_b64 v17, v[20:21] offset:{L_QV}")
    A(f"v_cmp_ne_u32 vcc, s{SXCC}, v19")
    A("s_cmp_eq_u64 vcc, 0")
    A(f"s_cselect_b32 s{SLOC}, 1, 0")
    if opts.get("nolocal"): A(f"s_mov_b32 s{SLOC}, 0")
    A(f"v_mov_b32 v20, s{ST}"); A(f"v_mov_b32 v21, s{SLOC}")
    A(f"ds_write_b64 v38, v[20:21] offset:{L_MB}")
    g.stamp(3)

    g.lab("L_svc2")
    if opts.get("nohelp") == 3: A("s_endpgm")
    A("v_lshlrev_b32 v16, 4, v1")
    A("s_lshl_b32 s64, s6, 9"); A(f"s_add_u32 s64, s64, {WS_ST}")
    A("s_lshl_b32 s65, s7, 7"); A("s_add_u32 s65, s65, s64")
    A("v_mov_b32 v18, s65")
    SR = [VA + 4 * i + k for i in range(8) for k in range(3)]
    poll_lds(g, [f"ds_read_b128 {vr(VA+4*i,4)}, v16 offset:{L_SC+1024*i}" for i in range(8)], SR, 8, 4)
    A(f"v_max3_f32 v8, v{SR[0]}, v{SR[1]}, v{SR[2]}")
    for i in range(3, 23, 2): A(f"v_max3_f32 v8, v8, v{SR[i]}, v{SR[i+1]}")
    A(f"v_max_f32 v8, v8, v{SR[23]}")
    wave_allreduce(g, "v_max_f32", 8, 11)
    A("v_min_u32 v9, s72, v8")
    A(f"ds_write_b32 v38, v9 offset:{L_ML}")
    for r in SR: A(f"v_sub_f32 v{r}, v{r}, v8")
    for r in SR: A(f"v_mul_f32 v{r}, 0x{LOG2E:08x}, v{r}")
    for r in SR: A(f"v_exp_f32 v{r}, v{r}")
    A("s_nop 0")
    for st in (12, 6, 3):
        for i in range(st): A(f"v_add_f32 v{SR[i]}, v{SR[i]}, v{SR[i+st]}")
    A(f"v_add_f32 v10, v{SR[0]}, v{SR[1]}")
    A(f"v_add_f32 v10, v10, v{SR[2]}")
    wave_allreduce(g, "v_add_f32", 10, 11)
    A(f"v_mov_b32 v9, s{ST}"); A(f"v_mov_b32 v11, s{ST}")
    A("s_mov_b64 exec, 1")
    if not SKIP & 8: pub_local(g, "global_store_dwordx4 v18, v[8:11], s[42:43]")
    A("s_mov_b64 exec, -1")
    g.stamp(4)

    g.lab("L_disp3")
    if opts.get("nohelp") in (3, 7): A("s_endpgm")
    DRY = opts.get("dry", 0)
    A("s_mov_b32 s77, 0")
    for i in range(4): A(f"s_bfe_u32 s{62+i}, s{ST}, 0x{(8 << 16) | (8 * i):x}")
    if DRY:
        A("s_cmp_lg_u32 s5, 1"); A("s_cbranch_scc1 L_dry_ret")
        A("s_mov_b32 s77, 1")
        for r in (6, 14, 30): A(f"v_mov_b32 v{r}, {L_RED}")
        A("v_mov_b32 v39, v0")
        for r in (0, 2, 3, 7): A(f"v_mov_b32 v{r}, 0")
        A(f"v_mov_b32 v5, {L_WT-8-L_SC}")
        A("s_mov_b64 s[50:51], -1")
        A("s_cmp_eq_u32 s60, 1"); A("s_cbranch_scc1 L_wo_ok")
        A("s_cmp_eq_u32 s60, 2"); A("s_cbranch_scc1 L_f1_ok")
        A("s_cmp_eq_u32 s60, 3"); A("s_cbranch_scc1 L_f2_ok")
        g.lab("L_dry_end")
        A("s_mov_b64 exec, -1")
        A("v_mov_b32 v0, v39")
        A("s_mov_b64 exec, -1")
        A("s_mov_b32 s77, 0")
        g.lab("L_dry_ret")
    def tbar():
        if DRY:
            l = g.uniq("nb")
            A("s_cmp_eq_u32 s77, 1"); A(f"s_cbranch_scc1 {l}")
            A("s_barrier")
            g.lab(l)
        else: A("s_barrier")
    def dry_out(lbl="L_dry_end"):
        if DRY:
            A("s_cmp_eq_u32 s77, 1"); A(f"s_cbranch_scc1 {lbl}")
    RA = [14, 0, 2, 3]
    def rot_addrs():
        for j in (1, 2, 3, 0):
            A(f"s_add_u32 s49, s5, {j}"); A("s_and_b32 s49, s49, 3"); A("s_lshl_b32 s49, s49, 8")
            A(f"v_add_u32 v{RA[j]}, s49, v14")
    if opts.get("optouch", 1):
        e = g.uniq("opt")
        A("s_cmp_lg_u32 s5, 2"); A(f"s_cbranch_scc1 {e}")
        poll_lds(g, [f"ds_read_b32 v8, v38 offset:{L_ML}"], [8], 9, 32)
        A("s_lshl_b32 s56, s6, 2"); A("s_add_u32 s56, s56, s7")
        A("s_lshl_b32 s57, s56, 9"); A(f"s_add_u32 s57, s57, {WS_OP}")
        A("v_lshl_add_u32 v3, v1, 3, s57")
        A("global_load_dword v167, v3, s[42:43] sc1")
        g.lab(e)
    A("s_cmp_eq_u32 s60, 2"); A("s_cbranch_scc1 L_pre_f1")
    A("s_cmp_eq_u32 s60, 3"); A("s_cbranch_scc1 L_pre_f2")
    A("s_cmp_eq_u32 s60, 1"); A("s_cbranch_scc1 L_pre_wo")
    A("s_lshr_b32 s68, s14, 29"); A(f"s_mul_i32 s68, s68, {opts.get('xt', 1)}"); A("s_xor_b32 s68, s68, s8")
    A("s_lshl_b32 s68, s68, 3"); A("s_add_u32 s68, s68, L_gtab-L_pc2")
    A("s_load_dwordx2 s[100:101], s[100:101], s68")
    A("s_waitcnt lgkmcnt(0)")
    A("s_lshr_b32 s68, s14, 26"); A("s_lshl_b32 s68, s68, 2"); A("s_add_u32 s68, s68, s5"); A("s_and_b32 s68, s68, 31")
    A("s_and_b32 s69, s100, 0xffff"); A("s_lshr_b32 s100, s100, 16")
    A("v_and_b32 v12, 3, v1")
    A("v_lshl_add_u32 v12, v12, 7, s69")
    A("v_min_u32 v12, s100, v12")
    A("v_lshrrev_b32 v13, 2, v1")
    A("v_mul_u32_u24 v13, 2752, v13")
    A(f"s_mul_i32 s69, s68, {16*2752}")
    A("v_add3_u32 v12, v12, v13, s69")
    A("v_min_u32 v13, 42, v1")
    A(f"s_mul_i32 s68, s68, {43*1024}")
    A("s_add_u32 s68, s68, s101")
    A("v_lshl_add_u32 v13, v13, 10, s68")
    if opts.get("tlb2", 0):
        poll_lds(g, [f"ds_read_b32 v8, v38 offset:{L_PS}"], [8], 9, 16)
        A("s_mov_b64 exec, 1")
        A("global_load_dword v16, v12, s[28:29]")
        A("global_load_dword v17, v12, s[30:31]")
        A("global_load_dword v18, v13, s[32:33]")
        A("s_mov_b64 exec, -1")
    A("s_branch L_join")
    g.lab("L_pre_wo")
    hs_wait(g, 8, 9, 8)
    tr64_addr(g)
    tr_reads(g, 16, 4096, 2048, True)
    A("s_lshl_b32 s49, s5, 3"); A("s_add_u32 s49, s49, s66")
    A("s_lshl_b32 s50, s49, 9"); A(f"s_add_u32 s50, s50, {WS_ST}")
    A("v_lshrrev_b32 v12, 5, v1")
    A("v_lshl_add_u32 v15, v12, 14, s50")
    A("v_and_b32 v16, 3, v1")
    A("v_lshl_add_u32 v15, v16, 7, v15")
    poll_lds(g, [f"ds_read_b32 v8, v38 offset:{L_PS}"], [8], 9, 16)
    poll_tagged(g, ["global_load_dwordx4 v[16:19], v15, s[42:43] sc1"], [17, 19], sleep=opts.get("ssleep", 8))
    A("v_max_f32_dpp v10, v16, v16 quad_perm:[1,0,3,2] row_mask:0xf bank_mask:0xf")
    A("s_nop 1")
    A("v_max_f32_dpp v10, v10, v10 quad_perm:[2,3,0,1] row_mask:0xf bank_mask:0xf")
    A("v_sub_f32 v8, v16, v10")
    A(f"v_mul_f32 v8, 0x{LOG2E:08x}, v8")
    A("v_exp_f32 v8, v8")
    A("s_nop 0")
    A("v_mul_f32 v9, v18, v8")
    A("s_nop 1")
    A("v_add_f32_dpp v9, v9, v9 quad_perm:[1,0,3,2] row_mask:0xf bank_mask:0xf")
    A("s_nop 1")
    A("v_add_f32_dpp v9, v9, v9 quad_perm:[2,3,0,1] row_mask:0xf bank_mask:0xf")
    A("v_rcp_f32 v9, v9")
    A("s_nop 0")
    A("v_mul_f32 v8, v8, v9")
    A("s_nop 1")
    for i in range(4): A(f"v_mov_b32_dpp v{20+i}, v8 quad_perm:[{i},{i},{i},{i}] row_mask:0xf bank_mask:0xf")
    g.stamp(5)
    A("s_lshl_b32 s49, s49, 11")
    A(f"s_add_u32 s49, s49, {WS_OP}")
    A("v_lshrrev_b32 v12, 5, v1")
    A("v_and_b32 v16, 31, v1")
    A("v_lshlrev_b32 v15, 16, v12")
    A("v_lshl_add_u32 v15, v16, 4, v15")
    A("v_add_u32 v15, s49, v15")
    A(f"v_mul_u32_u24 v12, {ACT_BS}, v12")
    A("v_bfe_u32 v16, v1, 3, 2")
    A("v_lshl_add_u32 v12, v16, 6, v12")
    A("v_and_b32 v16, 3, v1")
    A("v_lshl_add_u32 v12, v16, 4, v12")
    A("v_bfe_u32 v16, v1, 2, 1")
    A("v_lshl_add_u32 v12, v16, 3, v12")
    A("s_lshl_b32 s49, s5, 8")
    A("v_add_u32 v12, s49, v12")
    act_addr(g, 14, L_ACT, ACT_BS)
    line_out_addr(13)
    A("v_add_u32 v37, 0x2000, v13")
    A("v_mov_b32 v36, 0xff")
    rot_addrs()
    A("s_branch L_join")

    adr = [15, 35, 32, 36, 33, 37, 34, 39]
    def ap_addrs():
        for i in range(1, 8): A(f"v_add_u32 v{adr[i]}, {(i >> 1) * 16384 + (i & 1) * 4096}, v15")
    def hdr_wave(bases):
        e = g.uniq("hc")
        A("s_cmp_lg_u32 s5, 3"); A(f"s_cbranch_scc1 {e}")
        poll_lds(g, [f"ds_read_b32 v8, v38 offset:{L_QV}"], [8], 9, 32)
        if opts.get("tlb", 0):
            A(f"v_lshlrev_b32 v10, {opts['tlb']}, v1")
            A(f"v_min_u32 v10, {512*2752-4}, v10")
            for b in bases: A(f"global_load_dword v167, v10, s[{b}:{b+1}]")
        check_votes(g, 10, VA)
        g.lab(e)
    def near_copy():
        poll_lds(g, [f"ds_read_b32 v11, v38 offset:{L_NR}"], [11], 9, 8)

    PG = VA + 32
    def pre_gather(addrs):
        poll_lds(g, [f"ds_read_b32 v8, v38 offset:{L_PS}"], [8], 9, 16)
        A("global_load_dwordx2 v[8:9], v31, s[16:17]")
        poll_tagged(g, [f"global_load_dwordx4 {vr(PG+4*i,4)}, v{a}, s[42:43] sc1" for i, a in enumerate(addrs)],
                    [PG + 1 + 2 * i for i in range(2 * len(addrs))], sleep=8)

    g.lab("L_pre_f1")
    hdr_wave((28, 30))
    A("v_mov_b32 v31, v13")
    A("v_lshlrev_b32 v15, 4, v0")
    A(f"v_add_u32 v24, {WS_MOD+2*4096}, v15")
    A(f"v_add_u32 v25, {WS_MOD+3*4096}, v15")
    A(f"v_add_u32 v26, {WS_MOD+4*4096}, v15")
    near_copy()
    A(f"v_add_u32 v15, {WS_AP}, v15")
    A("v_add_u32 v15, v11, v15")
    ap_addrs()
    A("v_bfe_u32 v5, v1, 2, 1")
    A(f"v_mul_u32_u24 v5, {ACT_BS}, v5")
    A("v_lshrrev_b32 v3, 3, v0")
    A("v_lshl_add_u32 v5, v3, 5, v5")
    A("v_and_b32 v3, 3, v1")
    A("v_lshl_add_u32 v5, v3, 3, v5")
    A("v_and_b32 v14, 7, v1")
    A(f"v_mul_u32_u24 v14, {ACT_BS}, v14")
    A("v_lshrrev_b32 v3, 4, v1")
    A("v_lshl_add_u32 v14, v3, 4, v14")
    A("v_and_b32 v7, 1, v1")
    A(f"v_mul_u32_u24 v7, {ACT_BS}, v7")
    A("v_lshrrev_b32 v3, 1, v1")
    A("v_lshl_add_u32 v7, v3, 5, v7")
    A("v_and_b32 v13, 3, v1")
    A("v_lshlrev_b32 v13, 5, v13")
    A("v_bfe_u32 v3, v1, 4, 1")
    A("v_lshl_add_u32 v13, v3, 3, v13")
    A("s_lshl_b32 s49, s5, 7")
    A("s_add_u32 s49, s49, s58")
    A("v_add_u32 v13, s49, v13")
    A("v_lshrrev_b32 v3, 5, v1")
    A("v_lshl_add_u32 v13, v3, 4, v13")
    A("v_add_u32 v4, 0x2000, v13")
    E1 = 8
    if 1:
        A("s_and_b32 s54, s61, 1" if opts.get("fpar", 1) else "s_mov_b32 s54, 0")
        A("s_mul_i32 s52, s54, -2"); A("s_add_u32 s52, s52, 1")
        A("s_mul_i32 s53, s52, 16384"); A("s_sub_u32 s53, s53, 8192")
        A("s_mul_i32 s52, s52, 2752"); A(f"s_sub_u32 s52, s52, {256*2752}")
        f1_lane_par("s54")
        A("v_mov_b32 v0, v2")
        if XD:
            A("v_and_b32 v0, 3, v1")
            A("v_lshlrev_b32 v0, 14, v0")
            A("v_bfe_u32 v3, v1, 2, 1")
            A("v_lshl_add_u32 v0, v3, 12, v0")
            A("s_lshl_b32 s49, s5, 10"); A(f"s_add_u32 s49, s49, {WS_AP}")
            A("v_add3_u32 v0, v0, v11, s49")
        A("v_lshrrev_b32 v6, 3, v1")
        A("v_lshlrev_b32 v6, 6, v6")
        A("v_bfe_u32 v3, v1, 2, 1")
        A("v_lshl_add_u32 v6, v3, 14, v6")
        A("v_and_b32 v8, 2, v1")
        A("v_or_b32 v3, v3, v8")
        A("v_xor_b32 v3, s5, v3")
        A("v_lshl_add_u32 v6, v3, 4, v6")
        A("v_lshl_add_u32 v6, v8, 14, v6")
        A("v_and_b32 v3, 1, v1")
        A("v_lshl_add_u32 v6, v3, 3, v6")
        A(f"v_add_u32 v6, {L_WT}, v6")
        A("s_and_b32 s55, s5, 1")
        A(f"s_mul_i32 s49, s55, {256*2752}")
        A("s_add_u32 s49, s49, s48")
        A("s_mul_i32 s50, s54, 2752"); A("s_add_u32 s49, s49, s50")
        A("s_lshr_b32 s50, s5, 1"); A("s_lshl_b32 s50, s50, 15")
        A("s_lshl_b32 s54, s54, 14"); A("s_add_u32 s50, s50, s54")
        A("s_lshl_b32 s55, s55, 13"); A("s_add_u32 s50, s50, s55")
        A(f"s_add_u32 s50, s50, {L_WT}")
    pre_gather([24, 25, 26])
    unpack4(g, 16, 8)
    unpack4(g, 20, PG, 2)
    unpack4(g, 28, PG+8, 2)
    for i in range(4): A(f"v_add_f32 v{28+i}, 1.0, v{28+i}")
    A("v_cvt_pk_bf16_f32 v8, v28, v29"); A("v_cvt_pk_bf16_f32 v9, v30, v31")
    A(f"v_mov_b32 v{PG+5}, v{PG+6}")
    A(f"ds_write_b64 v12, v[8:9] offset:{L_ACT+2*ACT_BS}")
    A(f"ds_write_b64 v12, {vr(PG+4,2)} offset:{L_ACT+4*ACT_BS}")
    for i in range(4): rnd(g, 28+i)
    for i in range(4): A(f"v_mul_f32 v{24+i}, v{20+i}, v{28+i}")
    for i in range(4): A(f"v_mul_f32 v{28+i}, v{16+i}, v{28+i}")
    A("s_branch L_join")

    g.lab("L_pre_f2")
    hdr_wave((32,))
    A("v_and_b32 v12, 1, v1")
    A("v_lshrrev_b32 v14, 4, v1")
    A("s_lshl_b32 s49, s61, 5")
    A("v_lshl_add_u32 v3, v14, 3, s49")
    A("v_lshl_add_u32 v13, v12, 10, v3")
    A("v_mov_b32 v31, v13")
    A("v_lshlrev_b32 v15, 6, v12")
    A("v_lshl_add_u32 v15, v14, 4, v15")
    A("s_lshl_b32 s49, s61, 7")
    A("v_add_u32 v15, s49, v15")
    A(f"v_add_u32 v24, {WS_MOD+2*4096}, v15")
    A(f"v_add_u32 v25, {WS_MOD+5*4096}, v15")
    near_copy()
    A(f"v_add_u32 v15, {WS_AP}, v15")
    A("v_add_u32 v15, v11, v15")
    ap_addrs()
    A("s_lshl_b32 s49, s5, 14")
    A(f"s_add_u32 s49, s49, {WS_HH+2048}")
    A("v_lshl_add_u32 v28, v14, 7, s49")
    A("v_add_u32 v28, v11, v28")
    A("v_lshl_add_u32 v28, v12, 5, v28")
    A("v_and_b32 v3, 2, v1")
    A("v_lshl_add_u32 v28, v3, 3, v28")
    A("v_bfe_u32 v3, v1, 2, 2")
    A("v_lshl_add_u32 v28, v3, 9, v28")
    A("v_lshl_add_u32 v12, v14, 1, v12")
    A("v_lshlrev_b32 v12, 4, v12")
    A(f"v_add_u32 v12, {L_RED}, v12")
    A("s_lshl_b32 s49, s5, 7")
    A("v_add_u32 v30, s49, v12")
    f2_lane()
    A("v_mov_b32 v29, v2")
    A("v_lshlrev_b32 v6, 8, v14")
    A("v_bfe_u32 v3, v1, 2, 2")
    A("v_lshl_add_u32 v6, v3, 5, v6")
    A("v_and_b32 v3, 3, v1")
    A("v_lshl_add_u32 v6, v3, 3, v6")
    A("s_mul_i32 s49, s5, 11264")
    A(f"s_add_u32 s49, s49, {L_WT}")
    A("v_add_u32 v6, s49, v6")
    pre_gather([24, 25])
    if opts.get("apw", 1):
        e = g.uniq("apw")
        A("s_cmp_lg_u32 s5, 2"); A(f"s_cbranch_scc1 {e}")
        A("s_and_b32 s49, s61, 3"); A("s_lshl_b32 s49, s49, 14"); A(f"s_add_u32 s49, s49, {WS_AP}")
        A("v_lshl_add_u32 v3, v1, 7, s49")
        A("v_add_u32 v3, v11, v3")
        A("global_load_dword v167, v3, s[42:43] sc1")
        g.lab(e)
    unpack4(g, 16, 8)
    unpack4(g, 20, PG, 2)
    unpack4(g, 24, PG+4, 2)

    g.lab("L_join")
    if opts.get("nohelp") == 4:
        A("s_endpgm")
    A("s_waitcnt vmcnt(0) lgkmcnt(0)")
    g.stamp(9)
    A("s_barrier")
    g.stamp(6)
    g.tail = True
    g.stamp(9, 2)
    if opts.get("nohelp") == 5:
        A("s_cmp_lg_u32 s60, 0"); A("s_cbranch_scc1 L_fin")
    if opts.get("nohelp") == 6:
        A("s_cmp_gt_u32 s60, 1"); A("s_cbranch_scc1 L_fin")
    A("s_cmp_eq_u32 s60, 1"); A("s_cbranch_scc1 L_t_wo")
    A("s_cmp_eq_u32 s60, 2"); A("s_cbranch_scc1 L_t_f1")
    A("s_cmp_eq_u32 s60, 3"); A("s_cbranch_scc1 L_t_f2")
    g.C("pull a share of the FFN weights of this group into L2 (values unused)")
    if not opts.get("notouch"):
        A("global_load_dword v16, v12, s[28:29]")
        A("global_load_dword v17, v12, s[30:31]")
        if opts.get("f2d", 0): A("s_waitcnt vmcnt(0)")
        A("global_load_dword v18, v13, s[32:33]")
    A("s_branch L_fin")

    def sum8p(src, dst):
        for p in range(4):
            for h in range(2): A(f"v_pk_add_f32 {vr(dst+8*p+2*h,2)}, {vr(src+8*p+2*h,2)}, {vr(src+8*p+4+2*h,2)}")
        sum8q(dst)
    def sum8q(dst):
        for i in range(2):
            for h in range(2): A(f"v_pk_add_f32 {vr(dst+16*i+2*h,2)}, {vr(dst+16*i+2*h,2)}, {vr(dst+16*i+8+2*h,2)}")
        for h in range(2): A(f"v_pk_add_f32 {vr(dst+2*h,2)}, {vr(dst+2*h,2)}, {vr(dst+16+2*h,2)}")
    def x1_from(S):
        for i in range(4): rnd(g, S+i)
        for i in range(4): A(f"v_mul_f32 v{S+i}, v{S+i}, v{20+i}")
        for i in range(4): rnd(g, S+i)
        for i in range(4): A(f"v_add_f32 v{16+i}, v{16+i}, v{S+i}")
        for i in range(4): rnd(g, 16+i)

    g.lab("L_t_wo")
    A("s_mov_b32 s70, 0")
    g.lab("L_wo_p")
    for i in range(4): A(f"global_load_dwordx4 {vr(VA+4*i,4)}, v15, s[42:43] offset:{512*i} sc1")
    for k in range(16):
        if k % 4 == 0: A(f"s_waitcnt vmcnt({3-k//4})")
        A(f"v_xor_b32 v{VA+k}, s{62+k%4}, v{VA+k}")
    for k in range(4): A(f"v_or3_b32 v{28+k}, v{VA+3*k}, v{VA+3*k+1}, v{VA+3*k+2}")
    A("v_or3_b32 v28, v28, v29, v30")
    A(f"v_or3_b32 v31, v31, v{VA+12}, v{VA+13}")
    A(f"v_or3_b32 v28, v28, v{VA+14}, v{VA+15}")
    A("v_or_b32 v28, v28, v31")
    A("v_lshlrev_b32 v28, 24, v28")
    A("v_cmp_ne_u32 vcc, 0, v28")
    for i in range(4):
        for h in range(2):
            f = f"{vr(20+(i&2),2)}"; sel = f"op_sel:[0,{i&1},0] op_sel_hi:[1,{i&1},1]"
            if i == 0: A(f"v_pk_mul_f32 {vr(16+2*h,2)}, {vr(VA+2*h,2)}, {f} op_sel:[0,0] op_sel_hi:[1,0]")
            else: A(f"v_pk_fma_f32 {vr(16+2*h,2)}, {vr(VA+4*i+2*h,2)}, {f}, {vr(16+2*h,2)} {sel}")
    spin_tail(g, "L_wo_p", "L_wo_ok", 0)
    g.stamp(7); g.stamp(1, 2)
    A(f"v_cvt_pk_bf16_f32 v16, v16, v17")
    A(f"v_cvt_pk_bf16_f32 v17, v18, v19")
    A(f"ds_write_b64 v12, v[16:17] offset:{L_ACT}")
    wrd = lambda m: A(f"ds_read_b128 {vr(VA+4*m,4)}, v{RA[m//4]} offset:{L_ACT+64*(m%4)}")
    wmf = lambda m: A(f"v_mfma_f32_16x16x32_bf16 v[8:11], {vr(VW+4*m,4)}, {vr(VA+4*m,4)}, " + ("0" if m == 0 else "v[8:11]"))
    for m in range(4): wrd(m)
    A("s_waitcnt lgkmcnt(4)")
    g.stamp(2, 2)
    tbar()
    g.stamp(3, 2)
    for m in range(4, 8): wrd(m)
    if opts.get("stamps") == 2: A("s_waitcnt lgkmcnt(0)")
    A("s_waitcnt lgkmcnt(4)")
    for m in range(4):
        wmf(m); wrd(8 + 2*m); wrd(9 + 2*m)
    for m in range(4, 16):
        A(f"s_waitcnt lgkmcnt({15-m})")
        wmf(m)
    A("s_nop 3" if DRY else "s_nop 5")
    dry_out()
    for x in EX8: A(x)
    g.stamp(4, 2)
    for i in range(4):
        A(f"v_bfi_b32 v{8+i}, v36, s{62+i}, v{8+i}")
    A("global_store_dwordx4 v13, v[8:11], s[42:43] sc1")
    A("global_store_dwordx4 v37, v[8:11], s[42:43] sc1")
    if opts.get("wb", 0):
        A("s_or_b32 s49, s61, s5"); A("s_cmp_lg_u32 s49, 0"); A("s_cbranch_scc1 L_fin")
        A("s_waitcnt vmcnt(0)")
        if opts["wb"] > 1: A(f"s_sleep {opts['wb']}")
        A("buffer_wbl2 sc1")
        A("s_waitcnt vmcnt(0)")
    g.stamp(2); g.stamp(7, 2)
    A("s_branch L_fin")

    g.lab("L_t_f1")
    def pair_loads():
        for p in range(4):
            l = g.uniq("fl")
            A(f"s_bitcmp1_b32 s71, {p}"); A(f"s_cbranch_scc0 {l}")
            for i in (2*p, 2*p+1): A(f"global_load_dwordx4 {vr(VA+4*i,4)}, v{adr[i]}, s[42:43] sc1")
            g.lab(l)
    def pair_checks():
        S = VA + 32
        A("s_waitcnt vmcnt(0)")
        for p in range(4):
            l = g.uniq("fc")
            A(f"s_bitcmp1_b32 s71, {p}"); A(f"s_cbranch_scc0 {l}")
            B_ = VA + 8 * p
            for k in range(8): A(f"v_xor_b32 v{B_+k}, s{62+k%4}, v{B_+k}")
            A(f"v_or3_b32 v8, v{B_}, v{B_+1}, v{B_+2}")
            A(f"v_or3_b32 v9, v{B_+3}, v{B_+4}, v{B_+5}")
            A(f"v_or3_b32 v8, v8, v{B_+6}, v{B_+7}")
            for h in range(2): A(f"v_pk_add_f32 {vr(S+8*p+2*h,2)}, {vr(B_+2*h,2)}, {vr(B_+4+2*h,2)}")
            A("v_or_b32 v8, v8, v9")
            A("v_lshlrev_b32 v8, 24, v8")
            A("v_cmp_ne_u32 vcc, 0, v8")
            A("s_cmp_lg_u64 vcc, 0"); A(f"s_cbranch_scc1 {l}")
            A(f"s_bitset0_b32 s71, {p}")
            g.lab(l)
    FFL = opts.get("fflags", "").replace("_", " ")
    S = VA + 32
    if XD:
        A("s_mov_b32 s70, 0")
        A("s_mov_b32 s71, 15")
        A("v_mov_b32 v2, v6")
        g.lab("L_f1_w")
        A("s_mov_b64 exec, 255")
        A("global_load_dword v9, v0, s[42:43] sc1")
        A("s_mov_b64 exec, -1")
        A(f"ds_read_b32 v8, v38 offset:{L_CNT}")
        A("s_waitcnt lgkmcnt(0)")
        A("v_readfirstlane_b32 s68, v8")
        A("s_cmp_ge_u32 s68, 8"); A("s_cbranch_scc1 L_f1_wd")
        A("s_waitcnt vmcnt(0)")
        A("v_and_b32 v9, 0xff, v9")
        A("v_cmp_eq_u32 vcc, s62, v9")
        A("s_lshr_b32 s68, vcc_lo, 4"); A("s_and_b32 s68, s68, vcc_lo")
        A("s_and_b32 s69, s68, s71")
        A("s_cbranch_scc0 L_f1_wn")
        A("s_andn2_b32 s52, s71, s69")
        A("s_mov_b32 s71, s69")
        pair_loads(); pair_checks()
        A("s_or_b32 s71, s71, s52")
        g.lab("L_f1_wn")
        A("s_add_u32 s70, s70, 1")
        A(f"s_cmp_lt_u32 s70, {SPIN_MAX}"); A("s_cbranch_scc1 L_f1_w")
        g.lab("L_f1_wd")
        pair_loads()
        tr_reads(g, 16, 1024, 512, True)
        rot_addrs()
        g.stamp(1)
        A("s_branch L_f1_c")
    else:
        A("v_mov_b32 v2, v0")
        dma_loop(g, 8, 32*2752, FFL)
        A("v_xor_b32 v2, 16, v2")
        A("s_add_u32 s49, s49, s52")
        A("s_add_u32 s50, s50, s53")
        dma_loop(g, 8, 32*2752, FFL)
        def look():
            for i in range(8): A(f"global_load_dwordx4 {vr(VA+4*i,4)}, v{adr[i]}, s[42:43] sc1")
        LOOK = opts.get("look", 3)
        if LOOK == 1: look()
        A("v_mov_b32 v2, v6")
        A(f"s_waitcnt vmcnt({8 if LOOK == 1 else 0})")
        if LOOK == 2: look()
        A("s_barrier")
        if LOOK == 3: look()
        tr_reads(g, 16, 1024, 512, True)
        rot_addrs()
        g.stamp(1)
        A("s_mov_b32 s70, 0")
        A("s_mov_b32 s71, 15")
        A("s_branch L_f1_c")
    if 1:
        def ap_check():
            for k in range(32): A(f"v_xor_b32 v{S+k}, s{62+k%4}, v{VA+k}")
            for p in range(4): A(f"v_or3_b32 v{8+p}, v{S+8*p}, v{S+8*p+1}, v{S+8*p+2}")
            for p in range(4): A(f"v_or3_b32 v{8+p}, v{8+p}, v{S+8*p+3}, v{S+8*p+4}")
            for p in range(4): A(f"v_or3_b32 v{8+p}, v{8+p}, v{S+8*p+5}, v{S+8*p+6}")
            for p in range(4): A(f"v_or_b32 v{8+p}, v{8+p}, v{S+8*p+7}")
            A("v_or3_b32 v3, v8, v9, v10")
            A("v_or_b32 v3, v3, v11")
            A("v_lshlrev_b32 v3, 24, v3")
            A("v_cmp_ne_u32 vcc, 0, v3")
        g.lab("L_f1_p")
        A("s_add_u32 s70, s70, 1")
        A(f"s_cmp_ge_u32 s70, {SPIN_MAX}")
        A("s_cbranch_scc1 L_f1_ok")
        pair_loads()
        g.lab("L_f1_c")
        pair_checks()
        A("s_cmp_lg_u32 s71, 0")
        A("s_cbranch_scc1 L_f1_p")
        g.lab("L_f1_ok")
        sum8q(S)
    g.stamp(7); g.stamp(1, 2)
    if 1:
        for h in range(2): A(f"v_pk_fma_f32 {vr(8+2*h,2)}, {vr(S+2*h,2)}, {vr(24+2*h,2)}, {vr(28+2*h,2)}")
        A("v_cvt_pk_bf16_f32 v8, v8, v9")
        A("v_cvt_pk_bf16_f32 v9, v10, v11")
        A(f"ds_write_b64 v12, v[8:9] offset:{L_ACT}")
        q = []
        def rd(m): A(f"ds_read_b128 {vr(VA+4*m,4)}, v{RA[m//4]} offset:{L_ACT+64*(m%4)}"); q.append(("r", m))
        def need(op):
            i = q.index(op); A(f"s_waitcnt lgkmcnt({len(q)-1-i})"); del q[:i+1]
        for m in range(4): rd(m)
        for h in range(2): A(f"v_pk_fma_f32 {vr(16+2*h,2)}, {vr(S+2*h,2)}, {vr(20+2*h,2)}, {vr(16+2*h,2)}")
        A("v_pk_mul_f32 v[10:11], v[16:17], v[16:17]")
        A("v_pk_add_f32 v[20:21], v[16:17], v[18:19]")
        A("v_pk_fma_f32 v[10:11], v[18:19], v[18:19], v[10:11]")
        A("v_add_f32 v20, v20, v21")
        A("v_add_f32 v21, v10, v11")
        A(f"ds_write_b64 v5, v[20:21] offset:{L_SC}")
        A("s_waitcnt lgkmcnt(0)"); del q[:]
        g.stamp(2, 2)
        tbar()
        g.stamp(3, 2)
        for m in range(4, 8): rd(m)
        A(f"ds_read_b128 v[20:23], v7 offset:{L_SC}"); q.append(("s", 0))
        A(f"ds_read_b128 v[24:27], v7 offset:{L_SC+16}"); q.append(("s", 1))
        DF = 32
        dpp = lambda r, mod: f"v_add_f32_dpp v{r}, v{r}, v{r} {mod} row_mask:0xf bank_mask:0xf"
        fill = {5: ["S", "v_pk_add_f32 v[20:21], v[20:21], v[22:23]", "v_pk_add_f32 v[24:25], v[24:25], v[26:27]"],
                6: ["v_pk_add_f32 v[20:21], v[20:21], v[24:25]", "s_nop 0"],
                7: [dpp(20, "quad_perm:[2,3,0,1]"), dpp(21, "quad_perm:[2,3,0,1]")],
                8: [dpp(20, "row_ror:4"), dpp(21, "row_ror:4")],
                9: [dpp(20, "row_ror:8"), dpp(21, "row_ror:8")],
                10: ["v_mov_b32 v22, v20", "v_mov_b32 v23, v21"],
                11: ["v_permlane16_swap_b32 v22, v20", "v_permlane16_swap_b32 v23, v21"],
                12: ["v_add_f32 v20, v20, v22", "v_add_f32 v21, v21, v23", "v_mov_b32 v22, v20", "v_mov_b32 v23, v21"],
                13: ["v_permlane32_swap_b32 v22, v20", "v_permlane32_swap_b32 v23, v21"],
                14: ["v_add_f32 v20, v20, v22", "v_add_f32 v21, v21, v23"],
                15: [f"v_mul_f32 v20, 0x{f2u(-1/512):08x}, v20", f"v_mul_f32 v21, 0x{f2u(1/512):08x}, v21",
                     "v_fma_f32 v21, -v20, v20, v21", "v_max_f32 v21, 0, v21", f"v_add_f32 v21, 0x{EPS:08x}, v21", "v_rsq_f32 v21, v21",
                     "s_nop 1"]}
        for m in range(16):
            if ("r", m) in q: need(("r", m))
            c = "0" if m == 0 else vr(DF, 4)
            A(f"v_mfma_f32_16x16x32_bf16 {vr(DF,4)}, {vr(VW+4*m,4)}, {vr(VA+4*m,4)}, {c}")
            if m < 4: rd(8 + 2*m); rd(9 + 2*m)
            for t in fill.get(m, []):
                if t == "S": need(("s", 1))
                else: A(t)
        g.stamp(5, 2)
        for i in range(4): A(f"v_fmac_f32_dpp v{DF+i}, v{DF+i}, v20 row_shl:2 row_mask:0xf bank_mask:0x1")
        for i in range(4): A(f"v_mul_f32 v{8+i}, v{DF+i}, v21")
        for i in range(4): A(f"v_add_f32_dpp v{8+i}, v{DF+i}, v{8+i} row_shl:4 row_mask:0xf bank_mask:0xf")
        HM = "0x000f000f" if opts.get("hfull", 1) else "0x00030003"
        A(f"s_mov_b32 s50, {HM}")
        A(f"s_mov_b32 s51, {HM}")
        A("v_permlane32_swap_b32 v8, v10")
        A("v_permlane32_swap_b32 v9, v11")
        for i in range(2): A(f"v_mul_f32 v{20+i}, 0x{LOG2E ^ 0x80000000:08x}, v{8+i}")
        for i in range(2): A(f"v_exp_f32 v{20+i}, v{20+i}")
        for i in range(2): A(f"v_mul_f32 v{8+i}, v{8+i}, v{10+i}")
        for i in range(2): A(f"v_add_f32 v{20+i}, 1.0, v{20+i}")
        for i in range(2): A(f"v_rcp_f32 v{20+i}, v{20+i}")
        A("s_mov_b64 exec, s[50:51]")
        for i in range(2): A(f"v_mul_f32 v{8+i}, v{8+i}, v{20+i}")
        A("v_cvt_pk_bf16_f32 v8, v8, v9")
        A(f"v_mov_b32 v9, s{ST}")
        dry_out()
        A("global_store_dwordx2 v13, v[8:9], s[42:43] sc1")
        A("global_store_dwordx2 v4, v[8:9], s[42:43] sc1")
        g.stamp(2); g.stamp(7, 2)
        A("s_branch L_fin")

    g.lab("L_t_f2")
    def f2_dma():
        A("v_mov_b32 v2, v29")
        A("s_and_b32 s59, s61, 3"); A("s_mul_i32 s59, s59, 3072")
        for part in range(2):
            A(f"s_mul_i32 s49, s5, {11*32*1024}")
            A("s_add_u32 s49, s49, s48")
            A("s_mul_i32 s50, s5, 11264")
            A(f"s_add_u32 s50, s50, {L_WT}")
            if part == 0:
                A("s_lshl_b32 s52, s59, 5")
                A("s_add_u32 s49, s49, s52")
                A("s_add_u32 s50, s50, s59")
                A("s_sub_u32 s52, 11264, s59")
                dma_loop(g, "s52", 32*1024, FFL)
            else:
                dma_loop(g, "s59", 32*1024, FFL)
    if opts.get("f2d", 0):
        A("s_lshr_b32 s49, s8, 1"); A("s_lshl_b32 s49, s49, 14"); A("s_and_b32 s50, s8, 1"); A("s_lshl_b32 s50, s50, 12"); A("s_add_u32 s49, s49, s50")
        A("v_add_u32 v8, s49, v15")
        A("s_mov_b64 exec, 1")
        A("s_mov_b32 s70, 0")
        g.lab("L_f2_h")
        A("global_load_dword v9, v8, s[42:43] sc1")
        A("s_waitcnt vmcnt(0)")
        A("v_and_b32 v9, 0xff, v9")
        A("v_cmp_ne_u32 vcc, s62, v9")
        spin_tail(g, "L_f2_h", "L_f2_hd", 2)
        A("s_mov_b64 exec, -1")
    f2_dma()
    A("v_mov_b32 v2, v6")
    A("s_mov_b32 s50, 0x00030003"); A("s_mov_b32 s51, 0x00030003")
    A("s_mov_b32 s53, 0x0fff0fff")
    A("s_cmp_eq_u32 s5, 3")
    A("s_cselect_b32 s52, 0x00ff00ff, s53")
    A("s_mov_b32 s53, s52")
    def ap_loads():
        A("s_mov_b64 exec, s[50:51]")
        for i in range(8): A(f"global_load_dwordx4 {vr(VA+4*i,4)}, v{adr[i]}, s[42:43] sc1")
    A("s_cmp_lg_u32 s5, 0")
    A("s_cbranch_scc1 L_f2_w")
    ap_loads()
    A("s_mov_b64 exec, -1")
    A("s_waitcnt vmcnt(8)")
    A("s_branch L_f2_w2")
    g.lab("L_f2_w")
    A("s_waitcnt vmcnt(0)")
    g.lab("L_f2_w2")
    tr_reads(g, 11, 1024, 128)
    g.stamp(1)
    e = g.uniq("f2x")
    A("s_cmp_lg_u32 s5, 0")
    A(f"s_cbranch_scc1 {e}")
    A("s_mov_b32 s70, 0")
    A("s_mov_b64 exec, s[50:51]")
    A("s_branch L_f2_ac")
    g.lab("L_f2_a")
    ap_loads()
    g.lab("L_f2_ac")
    A("s_waitcnt vmcnt(0)")
    ap_check()
    F2S = opts.get("f2s", 0)
    spin_tail(g, "L_f2_a", "L_f2_ad", 0 if F2S else 2)
    A("s_mov_b64 exec, -1")
    if F2S: A("s_barrier")
    sum8p(S, S)
    x1_from(S)
    if F2S:
        A(f"s_sleep {F2S-3}")
        A("s_branch L_f2_go")
    g.lab(e)
    if F2S:
        A("s_barrier")
        A(f"s_sleep {F2S}")
        g.lab("L_f2_go")
    for i in range(4): A(f"v_mov_b32 v{VA+8+i}, 0")
    DD = VA + 16
    A("s_mov_b32 s70, 0")
    g.lab("L_f2_p")
    A(f"global_load_dwordx4 {vr(VA,4)}, v28, s[42:43] offset:-2048 sc1")
    A(f"global_load_dwordx4 {vr(VA+4,4)}, v28, s[42:43] sc1")
    A("s_mov_b64 exec, s[52:53]")
    A(f"global_load_dwordx4 {vr(VA+8,4)}, v28, s[42:43] offset:2048 sc1")
    A("s_mov_b64 exec, -1")
    def mf(m):
        j, mp = divmod(m, 4)
        c = "0" if j == 0 else vr(DD+4*mp, 4)
        A(f"v_mfma_f32_16x16x32_bf16 {vr(DD+4*mp,4)}, {vr(VW+4*m,4)}, {vr(VA+4*j,4)}, {c}")
    for j in range(3):
        A(f"s_waitcnt vmcnt({2-j})")
        A(f"v_xor_b32 v{VA+4*j+1}, s{ST}, v{VA+4*j+1}")
        A(f"v_xor_b32 v{VA+4*j+3}, s{ST}, v{VA+4*j+3}")
    A(f"v_or3_b32 v31, v{VA+1}, v{VA+3}, v{VA+5}")
    A(f"v_or_b32 v3, v{VA+9}, v{VA+11}")
    A(f"v_or_b32 v31, v{VA+7}, v31")
    A("v_cmp_ne_u32 s[68:69], 0, v3")
    A("v_cmp_ne_u32 vcc, 0, v31")
    for j in range(3):
        for h in range(2): A(f"v_mov_b32_dpp v{VA+4*j+2*h+1}, v{VA+4*j+2*h} quad_perm:[2,3,2,3] row_mask:0xf bank_mask:0xf")
    A("s_and_b64 s[68:69], s[68:69], s[52:53]")
    A("s_or_b64 vcc, vcc, s[68:69]")
    for m in range(4): mf(m)
    spin_tail(g, "L_f2_p", "L_f2_ok", 0)
    for m in range(4, 11): mf(m)
    A("s_nop 6")
    for i in range(4): A(f"v_add_f32_dpp v{8+i}, v{DD+4+i}, v{DD+i} row_shl:4 row_mask:0xf bank_mask:0xf")
    for i in range(4): A(f"v_add_f32_dpp v{DD+8+i}, v{DD+12+i}, v{DD+8+i} row_shl:4 row_mask:0xf bank_mask:0xf")
    for i in range(4): A(f"v_add_f32_dpp v{8+i}, v{DD+8+i}, v{8+i} row_shl:8 row_mask:0xf bank_mask:0xf")
    A("s_mov_b64 exec, s[50:51]")
    g.stamp(7); g.stamp(1, 2)
    A("ds_write_b128 v30, v[8:11]")
    A("s_waitcnt lgkmcnt(0)")
    g.stamp(2, 2)
    tbar()
    g.stamp(3, 2)
    A("s_cmp_lg_u32 s5, s77")
    A("s_cbranch_scc1 L_fin")
    for i in range(3):
        A(f"ds_read_b128 {vr(VA+4*i,4)}, v12 offset:{128*(i+1)}")
    A("s_waitcnt lgkmcnt(2)")
    for h in range(2): A(f"v_pk_add_f32 {vr(8+2*h,2)}, {vr(8+2*h,2)}, {vr(VA+2*h,2)}")
    A("s_waitcnt lgkmcnt(0)")
    for h in range(2): A(f"v_pk_add_f32 {vr(VA+4+2*h,2)}, {vr(VA+4+2*h,2)}, {vr(VA+8+2*h,2)}")
    for h in range(2): A(f"v_pk_add_f32 {vr(8+2*h,2)}, {vr(8+2*h,2)}, {vr(VA+4+2*h,2)}")
    for h in range(2): A(f"v_pk_fma_f32 {vr(8+2*h,2)}, {vr(8+2*h,2)}, {vr(24+2*h,2)}, {vr(16+2*h,2)}")
    A("v_cvt_pk_bf16_f32 v8, v8, v9")
    A("v_cvt_pk_bf16_f32 v9, v10, v11")
    dry_out()
    A("global_store_dwordx2 v13, v[8:9], s[38:39] " + opts.get("of", "").replace("_", " "))
    A("s_mov_b64 exec, 1")
    A("s_cmp_lg_u32 s61, 0")
    A("s_cbranch_scc1 L_noep")
    A(f"v_mov_b32 v10, s{ST}")
    A(f"global_store_dword v38, v10, s[42:43] offset:{WS_E} " + opts.get("of", "").replace("_", " "))
    if opts.get("amp"):
        A("s_waitcnt vmcnt(0)")
        A("s_memrealtime s[66:67]"); A("s_waitcnt lgkmcnt(0)")
        A("s_sub_u32 s66, s66, s78"); A(f"s_mul_i32 s66, s66, {opts['amp']}")
        g.lab("L_xa")
        A("s_sleep 1")
        A("s_memrealtime s[64:65]"); A("s_waitcnt lgkmcnt(0)")
        A("s_sub_u32 s64, s64, s78"); A("s_cmp_lt_u32 s64, s66"); A("s_cbranch_scc1 L_xa")
    g.lab("L_noep")
    g.stamp(2); g.stamp(7, 2)

    g.lab("L_fin")
    if opts.get("stamps"):
        A("s_mov_b64 exec, -1")
        A("s_waitcnt vmcnt(0)")
        g.stamp(8)
        A(f"s_cmp_lg_u32 s5, {opts.get('swave', 0)}")
        A("s_cbranch_scc1 L_end")
        A("s_lshl_b32 s3, s2, 7")
        A(f"s_add_u32 s3, s3, {WS_STAMP}")
        A("v_mov_b32 v2, s3")
        A("s_waitcnt lgkmcnt(0)")
        for i in (range(10) if opts["stamps"] != 3 else (0, 6, 8)):
            A(f"v_mov_b32 v3, s{80+2*i}")
            A(f"global_store_dword v2, v3, s[42:43] offset:{4*i}")
        A(f"v_mov_b32 v3, s{SLOC}")
        A(f"global_store_dword v2, v3, s[42:43] offset:40")
        if opts.get("dbgt"):
            A("s_lshr_b32 s3, s2, 3"); A(f"s_cmp_lg_u32 s3, {opts['dbgt']}"); A("s_cbranch_scc1 L_end")
            A("s_lshl_b32 s3, s8, 2"); A("v_mov_b32 v2, s3")
            A("s_and_b32 s80, s80, 0xffff"); A("s_and_b32 s92, s92, 0xffff")
            A("s_getreg_b32 s3, hwreg(HW_REG_XCC_ID, 0, 4)"); A("s_mul_i32 s3, s3, 100000"); A("s_add_u32 s80, s80, s3")
            A("v_mov_b32 v3, s80"); A("global_store_dword v2, v3, s[40:41]")
            A("v_mov_b32 v3, s92"); A("global_store_dword v2, v3, s[40:41] offset:32")
    g.lab("L_end")
    A("s_endpgm")
    g.L.append(".p2align 7")
    g.lab("L_table")
    for w in range(0, 256, 8):
        A(".long " + ", ".join(f"0x{RM[v][0] | (RM[v][1] << 3) | (SP[v][1] << 9) | (SP[v][0] << 16) | (RK[v] << 26):08x}" for v in range(w, w + 8)))
    g.lab("L_gtab")
    for x in range(8):
        f1 = sorted(t for w, (r, t) in enumerate(RM) if r == C_F1 and w % 8 == x)
        f2 = sorted(set(t // 4 for w, (r, t) in enumerate(RM) if r == C_F2 and w % 8 == x))
        assert f1 == list(range(f1[0], f1[0] + len(f1))) and len(f1) <= 7 and len(f2) == 1
        A(f".long 0x{64*f1[0] | ((64*(f1[-1]+1)-4) << 16):08x}, 0x{128*f2[0]:08x}")
    g.L.append(f'''.section .rodata,"a"
.p2align 6
.amdhsa_kernel {KNAME}
  .amdhsa_next_free_vgpr 168
  .amdhsa_next_free_sgpr 102
  .amdhsa_accum_offset 168
  .amdhsa_group_segment_fixed_size 0
  .amdhsa_kernarg_size 112
  .amdhsa_user_sgpr_count 2
  .amdhsa_user_sgpr_kernarg_segment_ptr 1
  .amdhsa_system_sgpr_workgroup_id_x 1
.end_amdhsa_kernel''')
    return "\n".join(g.L) + "\n"

if __name__ == "__main__":
    import json, os
    here = os.path.dirname(os.path.abspath(__file__))
    opts = {"ref": os.path.join(here, "..", KNAME[:-7] + ".s.ref")}
    out = sys.argv[1]
    for kv in sys.argv[2:]:
        k, v = kv.split("=")
        try: v = int(v)
        except ValueError: pass
        opts[k] = v
    open(out, "w").write(gen(opts))
```

```python
import sys, struct

KNAME = "adaLN_cond__sliding_block_cached__glu_gated_swiglu__decode_kernel"

def f2u(x): return struct.unpack("<I", struct.pack("<f", x))[0]
LOG2E = f2u(1.4426950408889634)
SCALE = f2u(128 ** -0.5)
EPS = f2u(1e-5)

WS_E   = 0x00000
WS_HDR = 0x00400
WS_MOD = 0x01000
WS_Q   = 0x08000
WS_ST  = 0x10000
WS_OP  = 0x20000
WS_HH  = 0x40000
WS_AP  = 0x50000
WS_PRB = 0x80000
WS_STAMP = 0x100000
ACT_BS = 1056
L_ACT = 0
L_QV  = L_ACT + 6400
L_ML  = L_QV + 256
L_PG  = L_ML + 8
L_NR  = L_ML + 12
L_PQ  = L_ML + 16
L_PS  = L_ML + 20
L_MB  = L_ML + 32
L_CNT = L_ML + 64
L_OP  = L_CNT + 64 + 128
L_RED = L_OP + 4096
L_SC  = L_RED + 1024
L_WT  = 20480
L_VX  = L_WT + 65536
assert L_SC + 8192 <= L_WT and L_OP % 16 == 0 and L_SC % 16 == 0

C_NONE, C_WO, C_F1, C_F2, C_MODB, C_MODA, C_Q = 0, 1, 2, 3, 4, 5, 6
RN = {0: "none", 1: "WO", 2: "F1", 3: "F2", 4: "MODB", 5: "MODA", 6: "Q"}
def cls(r, t):
    n = RN[r]
    if r in (C_WO, C_MODB, C_MODA, C_Q) and t % 8 == 3: n += "3"
    if r == C_F2 and t // 4 == 3: n += "3"
    return n
COST = {"Q": 620, "Q3": 900, "WO": 560, "WO3": 840, "MODA": 560, "MODA3": 860, "MODB": 560, "MODB3": 860, "F1": 500, "F2": 150, "F23": 250, "none": 100}
def role_map(mode=3, cost=COST):
    import itertools, random
    mod = lambda t: (C_MODA if t < 16 else C_MODB, t)
    h3 = [(C_Q, t) for t in range(64) if t % 8 == 3] + [mod(t) for t in range(48) if t % 8 == 3]
    hn = [mod(t) for t in range(16) if t % 8 != 3] + [(C_Q, t) for t in range(64) if t % 8 != 3] + [mod(t) for t in range(16, 48) if t % 8 != 3]
    nf1, nn, n3 = {3: ([4, 7, 4, 7, 4, 7, 4, 6], [0, 1, 0, 1, 0, 1, 0, 2], [2, 2, 2, 1, 2, 1, 2, 2]),
                   4: ([6, 5, 6, 5, 6, 5, 5, 5], [0, 1, 0, 1, 0, 1, 1, 1], [2, 2, 2, 1, 2, 1, 2, 2]),
                   5: ([5, 6, 5, 6, 5, 6, 5, 5], [0, 1, 0, 1, 0, 1, 0, 2], [2, 2, 2, 1, 2, 1, 2, 2])}[mode]
    X = []; f = 0
    for x in range(8):
        l = [(C_F2, 4 * x + i) for i in range(4)] + [(C_F1, f + i) for i in range(nf1[x])] + [(C_NONE, 0)] * nn[x]; f += nf1[x]
        X.append(l)
    for i in range(2):
        for x in range(8):
            if i < n3[x]: X[x].append(h3.pop(0))
    while hn:
        for x in range(8):
            if len(X[x]) < 24 and hn: X[x].append(hn.pop(0))
    c = lambda rt: cost[cls(*rt)]
    order = {C_MODA: 0, C_Q: 1, C_WO: 2, C_MODB: 3, C_F1: 4, C_F2: 5, C_NONE: 6}
    R = [None] * 256
    rnd_ = random.Random(1)
    for x in range(8):
        l = X[x]; assert len(l) == 24
        tot = lambda g: c((C_WO, g)) + sum(c(rt) for rt in l[3*g:3*g+3])
        bad = lambda: sum(tot(g) ** 2 for g in range(8))
        for _ in range(4000):
            a, b = rnd_.randrange(24), rnd_.randrange(24); o = bad()
            l[a], l[b] = l[b], l[a]
            if bad() > o: l[a], l[b] = l[b], l[a]
        for g in range(8):
            for s, rt in enumerate(sorted([(C_WO, g)] + l[3*g:3*g+3], key=lambda rt: order[rt[0]])): R[8 * (g + 8 * s) + x] = rt
    for c_, n in ((C_MODA, range(16)), (C_MODB, range(16, 48)), (C_F1, range(43)), (C_F2, range(32)), (C_Q, range(64))):
        assert sorted(t for r, t in R if r == c_) == list(n), c_
    return R
def split_table(RM, cost):
    T = [None] * 256
    for x in range(8):
        for g in range(8):
            ws = [8 * (g + 8 * s) + x for s in range(4)]
            c = [cost[w] if isinstance(cost, list) else cost[cls(*RM[w])] for w in ws]
            n = [256 + (sum(c) / 4 - ci) / 16 for ci in c]
            for _ in range(4):
                lo = [min(288, max(224, v)) for v in n]; d = 1024 - sum(lo)
                fr = [i for i in range(4) if (d > 0 and lo[i] < 288) or (d < 0 and lo[i] > 224)]
                n = [v + (d / len(fr) if i in fr else 0) for i, v in enumerate(lo)] if fr else lo
            a = [0]
            for v in n: a.append(a[-1] + v)
            a = [int(round(v)) for v in a]; assert a[4] == 1024
            for s, w in enumerate(ws):
                T[w] = (896 + a[s] - 224 * s, a[s + 1] - a[s] - 224); assert 0 <= T[w][1] <= 64
    return T
SPIN_MAX = 1 << 18
ST, SLOC, SXCC = 74, 75, 76

NOTES = {
    "L_nb1": "streaming waves: K then V of this workgroup's keys (range from L_table), 1 KB per load, at most 4 loads in flight per wave",
    "L_helper": "helper waves: LDS sentinels, launch tag, role dispatch",
    "L_r_moda": "roles MODA / MODB: 64 columns of silu(c) @ w_mod",
    "L_r_q": "role Q: LayerNorm + modulation + 64 columns of h @ wq",
    "L_r_wo": "role WO: 512 x 64 tile of wo",
    "L_r_f1": "role F1: 32 columns of w1 and w3",
    "L_r_f2": "role F2: 16 columns of w2",
    "L_svc1": "wave 0: fetch q for the streaming waves",
    "L_svc2": "wave 0: max / sum of this split's scores, for the streaming waves (LDS) and for the WO workgroups",
    "L_disp3": "idle-time preparation; wave 1 walks the tail code once (no barrier, no global access) to warm the instruction cache",
    "L_join": "the barrier opens when the streaming waves have ended",
    "L_t_wo": "tail WO: gather the group's partial outputs, project, publish",
    "L_t_f1": "tail F1: residual, LayerNorm (applied after the product), gate/up, SwiGLU, publish",
    "L_t_f2": "tail F2: down projection, gated residual, output; advances the epoch word",
    "L_gtab": "per group: byte columns of w1/w3 and of w2 that its workgroups will read",
    "L_table": "per workgroup: role | tile << 3 | extra chunks << 9 | first extra chunk << 16 (chunk = 4 keys) | prefetch share << 26",
}
class G:
    def __init__(s, opts):
        s.L = []; s.o = opts; s.n = 0; s.tail = False; s.help = False
    def A(s, t):
        s.L.append("  " + t)
    def lab(s, t):
        if t in NOTES: s.L.append("; ---- " + NOTES[t])
        s.L.append(t + ":")
    def C(s, t): s.L.append("; ---- " + t)
    def uniq(s, p): s.n += 1; return f"L_{p}_{s.n}"
    def stamp(s, idx, lvl=1):
        m = s.o.get("stamps", 0)
        if m == 3 and idx not in (0, 6, 8): return
        if m and (m == lvl or idx in (0, 6, 8)) and not (lvl == 2 and m == 1):
            s.A(f"s_memrealtime s[{80+2*idx}:{81+2*idx}]")

def vr(a, n): return f"v[{a}:{a+n-1}]"

def wave_allreduce(g, op, v, t):
    A = g.A
    for r in (8, 4, 2, 1):
        A("s_nop 1")
        A(f"{op}_dpp v{v}, v{v}, v{v} row_ror:{r} row_mask:0xf bank_mask:0xf")
    A(f"v_mov_b32 v{t}, v{v}")
    A("s_nop 1")
    A(f"v_permlane16_swap_b32 v{t}, v{v}")
    A(f"{op} v{v}, v{v}, v{t}")
    A(f"v_mov_b32 v{t}, v{v}")
    A("s_nop 1")
    A(f"v_permlane32_swap_b32 v{t}, v{v}")
    A(f"{op} v{v}, v{v}, v{t}")

def rnd(g, d, s=None):
    g.A(f"v_cvt_pk_bf16_f32 v{d}, 0, v{s if s is not None else d}")

def spin_tail(g, l, e, sleep, mult=1):
    A = g.A
    A("s_cmp_eq_u64 vcc, 0")
    A(f"s_cbranch_scc1 {e}")
    if sleep: A(f"s_sleep {sleep}")
    A("s_add_u32 s70, s70, 1")
    A(f"s_cmp_lt_u32 s70, {SPIN_MAX*mult}")
    A(f"s_cbranch_scc1 {l}")
    g.lab(e)

def chk_sentinel(g, regs, tmp):
    A = g.A
    rs = list(regs)
    if len(rs) == 1:
        A(f"v_cmp_eq_u32 vcc, -1, v{rs[0]}")
        return
    if len(rs) == 2:
        A(f"v_max_u32 v{tmp}, v{rs[0]}, v{rs[1]}"); rs = []
    else:
        A(f"v_max3_u32 v{tmp}, v{rs[0]}, v{rs[1]}, v{rs[2]}"); rs = rs[3:]
    while len(rs) >= 2:
        A(f"v_max3_u32 v{tmp}, v{tmp}, v{rs[0]}, v{rs[1]}"); rs = rs[2:]
    if rs: A(f"v_max_u32 v{tmp}, v{tmp}, v{rs[0]}")
    A(f"v_cmp_eq_u32 vcc, -1, v{tmp}")

def poll_tagged(g, loads, tagregs, sleep=0):
    A = g.A
    l = g.uniq("polt"); e = g.uniq("poltd")
    A("s_mov_b32 s70, 0")
    g.lab(l)
    for x in loads: A(x)
    A("s_waitcnt vmcnt(0)")
    for i, r in enumerate(tagregs):
        if i == 0: A(f"v_cmp_ne_u32 vcc, s{ST}, v{r}")
        else:
            A(f"v_cmp_ne_u32 s[68:69], s{ST}, v{r}")
            A("s_or_b64 vcc, vcc, s[68:69]")
    spin_tail(g, l, e, sleep)

def poll_lds(g, loads, regs, tmp, sleep):
    A = g.A
    l = g.uniq("pl"); e = g.uniq("pld")
    A("s_mov_b32 s70, 0")
    g.lab(l)
    for x in loads: A(x)
    A("s_waitcnt lgkmcnt(0)")
    chk_sentinel(g, regs, tmp)
    spin_tail(g, l, e, sleep, 4)

def check_votes(g, va, vt):
    A = g.A
    A(f"v_lshlrev_b32 v{vt+6}, 5, v1")
    A(f"global_load_dword v{vt+5}, v{vt+6}, s[42:43] offset:{WS_HDR+4} sc1")
    A("s_waitcnt vmcnt(0)")
    A(f"v_subrev_u32 v{vt+5}, s{ST}, v{vt+5}")
    A(f"v_cmp_eq_u32 vcc, 1, v{vt+5}")
    A("s_bcnt1_i32_b64 s70, vcc")
    A(f"v_cmp_eq_u32 vcc, 0, v{vt+5}")
    A("s_bcnt1_i32_b64 s71, vcc")
    A("s_cmp_gt_u32 s70, s71")
    A("s_cselect_b32 s71, 4, 0")
    if "near" in g.o: A(f"s_mov_b32 s71, {4*g.o['near']}")
    A(f"s_sub_u32 s68, s{SXCC}, s{ST}")
    A("s_xor_b32 s71, s71, s68"); A("s_and_b32 s71, s71, 4"); A("s_lshl_b32 s71, s71, 11")
    A(f"v_mov_b32 v{vt}, s71")
    A(f"ds_write_b32 v38, v{vt} offset:{L_NR}")

def pub_local(g, ins):
    A = g.A
    l = g.uniq("pf"); e = g.uniq("pe")
    A(f"s_cmp_eq_u32 s{SLOC}, 1")
    A(f"s_cbranch_scc0 {l}")
    A(ins)
    A(f"s_branch {e}")
    g.lab(l)
    A(ins + " sc1")
    g.lab(e)

def hs_signal(g, vt, vt2):
    A = g.A
    A(f"v_mov_b32 v{vt2}, 1")
    A("s_mov_b64 exec, 1")
    A(f"ds_add_u32 v38, v{vt2} offset:{L_CNT}")
    A("s_mov_b64 exec, -1")
def hs_wait(g, target, vt2, sleep=1):
    A = g.A
    l = g.uniq("hs"); e = g.uniq("hsd")
    A("s_mov_b32 s70, 0")
    g.lab(l)
    A(f"ds_read_b32 v{vt2}, v38 offset:{L_CNT}")
    A("s_waitcnt lgkmcnt(0)")
    A(f"v_cmp_gt_u32 vcc, {target}, v{vt2}")
    spin_tail(g, l, e, sleep, 8)
def dma_loop(g, n, step, flags, pace=0):
    A = g.A
    l = g.uniq("dma"); e = g.uniq("dmae")
    if isinstance(n, int):
        A(f"s_add_u32 s51, s50, {n*1024}")
    else:
        A(f"s_add_u32 s51, s50, {n}")
        A("s_cmp_lt_u32 s50, s51")
        A(f"s_cbranch_scc0 {e}")
    g.lab(l)
    A("s_mov_b32 m0, s50")
    A("s_add_u32 s50, s50, 1024")
    if not g.o.get("nodma"):
        A(f"buffer_load_dwordx4 v2, s[44:47], s49 offen {flags} lds")
    A(f"s_add_u32 s49, s49, {step}")
    if pace: A(f"s_waitcnt vmcnt({pace-1})")
    A("s_cmp_lt_u32 s50, s51")
    A(f"s_cbranch_scc1 {l}")
    g.lab(e)

VW, VA = 40, 104

def srd(g, d, base, nbytes):
    A = g.A
    A(f"s_mov_b32 s{d}, s{base}")
    A(f"s_mov_b32 s{d+1}, s{base+1}")
    A(f"s_mov_b32 s{d+2}, {nbytes}")
    A(f"s_mov_b32 s{d+3}, 0x20000")

def tr64_addr(g):
    A = g.A
    A("v_lshrrev_b32 v2, 2, v1")
    A("v_bfe_u32 v3, v1, 1, 1")
    A("s_lshl_b32 s49, s5, 1")
    A("v_or_b32 v3, s49, v3")
    A("v_and_b32 v10, 6, v2")
    A("v_xor_b32 v3, v3, v10")
    A("v_lshlrev_b32 v2, 7, v2")
    A("v_lshl_add_u32 v2, v3, 4, v2")
    A("v_and_b32 v3, 1, v1")
    A("v_lshl_add_u32 v2, v3, 3, v2")
    A(f"v_add_u32 v2, {L_WT}, v2")
def tr_reads(g, nk, mstep, hstep, rot=False):
    A = g.A
    for m in range(nk):
        if rot and m % 4 == 0:
            A(f"s_add_u32 s49, s5, {m//4}"); A("s_and_b32 s49, s49, 3"); A(f"s_mul_i32 s49, s49, {4*mstep}")
            A("v_add_u32 v3, s49, v2")
        for h in range(2):
            if rot: A(f"ds_read_b64_tr_b16 {vr(VW+4*m+2*h,2)}, v3 offset:{(m%4)*mstep+h*hstep}")
            else: A(f"ds_read_b64_tr_b16 {vr(VW+4*m+2*h,2)}, v2 offset:{m*mstep+h*hstep}")
        if m >= 5: A("s_waitcnt lgkmcnt(10)")
    A("s_waitcnt lgkmcnt(0)")
def tr_tile64(g):
    tr64_addr(g)
    tr_reads(g, 16, 4096, 2048)
def gemv_fused(g, vaddr, D):
    A = g.A
    def rd(m):
        for h in range(2):
            A(f"ds_read_b64_tr_b16 {vr(VW+4*m+2*h,2)}, v2 offset:{m*4096+h*2048}")
        A(f"ds_read_b128 {vr(VA+4*m,4)}, v{vaddr} offset:{64*m}")
    for m in range(5): rd(m)
    for m in range(16):
        A(f"s_waitcnt lgkmcnt({3*(min(m+5,16)-m-1)})")
        c = "0" if m == 0 else vr(D, 4)
        A(f"v_mfma_f32_16x16x32_bf16 {vr(D,4)}, {vr(VW+4*m,4)}, {vr(VA+4*m,4)}, {c}")
        if m + 5 < 16: rd(m + 5)
    A("s_nop 7")

def batch_reduce2(g, va, vb, ta, tb):
    A = g.A
    A("s_nop 0")
    for m in ("quad_perm:[1,0,3,2]", "quad_perm:[2,3,0,1]", "row_ror:8"):
        A(f"v_add_f32_dpp v{va}, v{va}, v{va} {m} row_mask:0xf bank_mask:0xf")
        A(f"v_add_f32_dpp v{vb}, v{vb}, v{vb} {m} row_mask:0xf bank_mask:0xf")
        A("s_nop 0")
    for sw in ("v_permlane16_swap_b32", "v_permlane32_swap_b32"):
        A(f"v_mov_b32 v{ta}, v{va}")
        A(f"v_mov_b32 v{tb}, v{vb}")
        A("s_nop 0")
        A(f"{sw} v{ta}, v{va}")
        A(f"{sw} v{tb}, v{vb}")
        A(f"v_add_f32 v{va}, v{va}, v{ta}")
        A(f"v_add_f32 v{vb}, v{vb}, v{tb}")

def ln_partial(g, x):
    A = g.A
    A(f"v_add_f32 v8, v{x}, v{x+1}"); A(f"v_mul_f32 v9, v{x}, v{x}")
    A(f"v_add_f32 v10, v{x+2}, v{x+3}"); A(f"v_mul_f32 v11, v{x+2}, v{x+2}")
    A(f"v_fmac_f32 v9, v{x+1}, v{x+1}"); A(f"v_fmac_f32 v11, v{x+3}, v{x+3}")
    A("v_add_f32 v8, v8, v10"); A("v_add_f32 v9, v9, v11")
    batch_reduce2(g, 8, 9, 10, 11)
    A("ds_write_b64 v5, v[8:9]")
def ln_apply(g, x, t):
    A = g.A
    A(f"ds_read_b128 {vr(t,4)}, v6")
    A(f"ds_read_b128 {vr(t+4,4)}, v6 offset:16")
    A("s_waitcnt lgkmcnt(0)")
    A(f"v_pk_add_f32 {vr(t,2)}, {vr(t,2)}, {vr(t+2,2)}")
    A(f"v_pk_add_f32 {vr(t+4,2)}, {vr(t+4,2)}, {vr(t+6,2)}")
    A(f"v_pk_add_f32 {vr(t,2)}, {vr(t,2)}, {vr(t+4,2)}")
    A(f"v_mul_f32 v8, 0x{f2u(1/512):08x}, v{t}")
    A(f"v_mul_f32 v9, 0x{f2u(1/512):08x}, v{t+1}")
    A("v_fma_f32 v9, -v8, v8, v9")
    rnd(g, 8)
    A("v_max_f32 v9, 0, v9")
    rnd(g, 9)
    for i in range(2): A(f"v_sub_f32 v{x+i}, v{x+i}, v8")
    A(f"v_add_f32 v9, 0x{EPS:08x}, v9")
    for i in range(2, 4): A(f"v_sub_f32 v{x+i}, v{x+i}, v8")
    rnd(g, 9)
    rnd(g, x)
    A("v_sqrt_f32 v9, v9")
    rnd(g, x+1)
    rnd(g, 9)
    rnd(g, x+2)
    A("v_rcp_f32 v9, v9")
    rnd(g, x+3)
    for i in range(4): A(f"v_mul_f32 v{x+i}, v{x+i}, v9")
    for i in range(4): rnd(g, x+i)

def act_addr(g, v, base, bstride):
    A = g.A
    A(f"v_and_b32 v{v}, 1, v1")
    A(f"v_mul_u32_u24 v{v}, {bstride}, v{v}")
    A(f"v_lshrrev_b32 v3, 4, v1")
    A(f"v_lshl_add_u32 v{v}, v3, 4, v{v}")
    if base: A(f"v_add_u32 v{v}, {base}, v{v}")

def gemv(g, nk, vaddr, D):
    A = g.A
    first = min(nk, 12)
    for m in range(first):
        A(f"ds_read_b128 {vr(VA+4*m,4)}, v{vaddr} offset:{64*m}")
    issued = first
    for m in range(nk):
        A(f"s_waitcnt lgkmcnt({issued-m-1})")
        c = "0" if m == 0 else vr(D, 4)
        A(f"v_mfma_f32_16x16x32_bf16 {vr(D,4)}, {vr(VW+4*m,4)}, {vr(VA+4*m,4)}, {c}")
        if issued < nk:
            A(f"ds_read_b128 {vr(VA+4*issued,4)}, v{vaddr} offset:{64*issued}")
            issued += 1
    A("s_nop 7")

def guard(g, r):
    g.A(f"v_min_u32 v{r}, s72, v{r}")

def unpack2(g, d, s):
    g.A(f"v_lshlrev_b32 v{d}, 16, v{s}")
    g.A(f"v_and_b32 v{d+1}, s73, v{s}")
def unpack4(g, d, s, step=1):
    unpack2(g, d, s); unpack2(g, d+2, s+step)

def silu4(g, x, t):
    A = g.A
    for i in range(4): A(f"v_mul_f32 v{t+i}, 0x{LOG2E ^ 0x80000000:08x}, v{x+i}")
    for i in range(4): A(f"v_exp_f32 v{t+i}, v{t+i}")
    A("s_nop 0")
    for i in range(4): A(f"v_add_f32 v{t+i}, 1.0, v{t+i}")
    for i in range(4): A(f"v_rcp_f32 v{t+i}, v{t+i}")
    A("s_nop 0")
    for i in range(4): A(f"v_mul_f32 v{x+i}, v{x+i}, v{t+i}")

EX8 = ["s_mov_b32 exec_lo, 0x00030003", "s_mov_b32 exec_hi, 0x00030003"]

def gen(opts):
    g = G(opts); A = g.A
    D = opts.get("D", 4); NS = 36; NO = 8; NL = opts.get("NL", 8)
    LDS_BYTES = L_VX + 8192 * NL
    cost = dict(COST)
    for k in list(cost):
        if "c" + k in opts: cost[k] = opts["c" + k]
    RM = role_map(opts.get("rmode", 4), cost)
    opts["_RM"] = RM
    if opts.get("even"): cost = {k: 0 for k in cost}
    SP = split_table(RM, opts.get("ctab", cost))
    free = lambda w: RM[w][0] in (C_NONE, C_MODA, C_MODB, C_Q)
    RK = [sum(1 for v in range(w % 8, w, 8) if free(v)) & 15 for w in range(256)]
    WFL = opts.get("wflags", "nt").replace("_", " ")
    hdr = open(opts["ref"]).read().split("; Override launch")[0]
    g.L.append(hdr.rstrip("\n"))
    g.L.append(""";
;    answers faster) and the sizes of the key ranges only affect speed.""")
    g.L.append(f"; @launch grid=(256,1,1) block=(768,1,1) lds={LDS_BYTES}")
    g.L.append('.amdgcn_target "amdgcn-amd-amdhsa--gfx950"\n.text')
    g.L.append(f".globl {KNAME}\n.p2align 8\n.type {KNAME},@function\n{KNAME}:")
    A("s_cmpk_ge_u32 s2, 256")
    A("s_cbranch_scc1 L_end")
    A("s_load_dwordx2 s[44:45], s[0:1], 8")
    g.stamp(0)
    A("v_readfirstlane_b32 s5, v0")
    A("s_and_b32 s6, s2, 63")
    A("s_lshr_b32 s7, s2, 6")
    A("s_lshr_b32 s5, s5, 6")
    A("v_and_b32 v1, 63, v0")
    A("s_cmp_lt_u32 s5, 4")
    A("s_cbranch_scc1 L_helper")

    RB = 24
    def slot(j): return RB + 4 * j
    ROTM = opts.get("rot", 5)
    A("s_lshl_b32 s10, s6, 22")
    A(f"s_mul_i32 s58, s7, {224*1024}")
    A(f"s_add_u32 s11, s10, {0x300000-4*1024}")
    A("v_lshl_add_u32 v2, v0, 4, s11")
    A("s_lshl_b32 s46, 1, 28"); A("s_lshl_b32 s47, 1, 17")
    if opts.get("rot2"):
        A(f"s_mul_i32 s12, s2, {opts['rot2']}"); A("s_and_b32 s12, s12, 0x78"); A("s_lshl_b32 s12, s12, 10")
        A("s_add_u32 s12, s12, s58")
    elif ROTM:
        A(f"s_mul_i32 s12, s6, {ROTM}"); A("s_and_b32 s12, s12, 15"); A("s_lshl_b32 s12, s12, 13")
        A("s_add_u32 s12, s12, s58")
    else: A("s_mov_b32 s12, s58")
    A("s_waitcnt lgkmcnt(0)")
    def sched(txt):
        out = []
        for part in str(txt).split(","):
            p, _, u = part.partition(".")
            out.append(([int(c) for c in p], int(u) if u else 999))
        return lambda j: next(p[j % len(p)] for p, u in out if j < u)
    SCH = sched(opts.get("sch", D)); SCE = sched(opts.get("sce", "3.40,4")); XM = opts.get("xm", 0x55)
    step = [D]
    def throttle(_=None):
        j = step[0]; step[0] += 1
        d = SCH(j); e = SCE(j)
        A(f"s_waitcnt vmcnt({d-1})")
        if e < d:
            l = g.uniq("th")
            A("s_bitcmp0_b32 s68, 0")
            A(f"s_cbranch_scc1 {l}")
            A(f"s_waitcnt vmcnt({e-1})")
            g.lab(l)
    def issue(t, i, lds=None):
        if i < NO:
            A(f"buffer_load_dwordx4 {vr(slot(i),4)}, v2, s[{44+4*t}:{47+4*t}], s13 offen nt")
            A("s_addk_i32 s13, 0x2000")
            return
        if lds is not None:
            A(f"s_add_u32 m0, s15, {lds*1024}")
            A("s_nop 0")
            A(f"buffer_load_dwordx4 v2, s[{44+4*t}:{47+4*t}], s12 offen nt lds")
        else:
            A(f"buffer_load_dwordx4 {vr(slot(i),4)}, v2, s[{44+4*t}:{47+4*t}], s12 offen nt")
        if (t, i) == (1, NS - 1): return
        if not ROTM and i == NS - 1: A("s_mov_b32 s12, s58"); return
        A("s_addk_i32 s12, 0x2000")
        if ROTM and i >= NO + 12:
            A("s_cmp_ge_u32 s12, s59")
            A("s_cselect_b32 s12, s58, s12")
    def optional(i, body):
        l = g.uniq("opt")
        A(f"s_cmp_gt_u32 s60, {i}")
        A(f"s_cbranch_scc1 {l}")
        body()
        g.lab(l)
    def optionals(t, between=None):
        l = g.uniq("opts")
        A("s_mov_b32 s13, s61")
        for i in range(NO - 1, -1, -1):
            A(f"s_cmp_gt_u32 s60, {i}")
            A(f"s_cbranch_scc1 {l}")
            throttle(99); issue(t, i)
        g.lab(l)
    g.lab("L_nb1")
    assert D <= 4
    for j in range(NO, NS):
        if j >= NO + D: throttle(j)
        issue(0, j)
        if j == NO + D - 1:
            if opts.get("pst"): g.stamp(2)
            A("s_getpc_b64 s[56:57]")
            g.lab("L_pc")
            A("s_lshl_b32 s3, s2, 2")
            A("s_add_u32 s3, s3, L_table-L_pc")
            A("s_load_dword s14, s[56:57], s3")
            A("s_load_dwordx2 s[48:49], s[0:1], 16")
            A("s_load_dwordx4 s[20:23], s[0:1], 24")
            A("s_load_dwordx2 s[28:29], s[0:1], 80")
            A("s_load_dwordx2 s[42:43], s[0:1], 104")
            A("s_barrier")
            A("s_sub_u32 s9, s5, 4")
            A("s_getreg_b32 s68, hwreg(HW_REG_XCC_ID, 0, 3)"); A(f"s_lshr_b32 s68, {XM}, s68")
            A("s_mov_b64 s[50:51], s[46:47]")
            A("s_mov_b32 s52, 0xcccccccc"); A("s_mov_b32 s53, 0xcccccccc")
            A("s_mov_b32 s54, 0xaaaaaaaa"); A("s_mov_b32 s55, 0xaaaaaaaa")
            A(f"s_mul_i32 s15, s9, {NL*1024}")
            A(f"s_add_u32 s15, s15, {L_VX}")
            A(f"s_add_u32 s59, s58, {28*8192}")
            A("v_mov_b32 v4, 0")
            A("v_lshrrev_b32 v5, 3, v1")
            A("v_and_b32 v6, 6, v5")
            A("v_xor_b32 v6, v6, v1")
            A("v_and_b32 v6, 7, v6")
            A("s_lshl_b32 s33, s9, 6")
            A("s_movk_i32 s26, 6144"); A(f"s_mov_b32 s30, {512*6144}"); A("s_mov_b32 s31, s47")
            A("s_lshl_b32 s34, s9, 13"); A(f"s_add_u32 s34, s34, {L_WT}"); A("s_add_u32 s35, s34, 8192")
            A("s_and_b32 s36, s2, 7"); A("s_lshl_b32 s36, s36, 1"); A("s_and_b32 s37, s9, 1"); A("s_add_u32 s36, s36, s37")
            A("s_lshr_b32 s37, s9, 1"); A("s_lshl_b32 s37, s37, 4"); A("s_add_u32 s36, s36, s37"); A("s_lshl_b32 s36, s36, 6")
            A("s_waitcnt lgkmcnt(0)")
            A("s_and_b32 s27, s14, 7")
            A(f"s_cmp_eq_u32 s27, {C_Q}")
            A("s_cselect_b64 s[28:29], s[20:21], s[28:29]"); A("s_cselect_b32 s26, 0x2000, s26"); A("s_cselect_b32 s30, 0x400000, s30")
            A(f"s_cmp_eq_u32 s27, {C_WO}")
            A("s_cselect_b64 s[28:29], s[22:23], s[28:29]"); A("s_cselect_b32 s26, 0x400, s26"); A("s_cselect_b32 s30, 0x400000, s30")
            A("s_cselect_b32 s33, s36, s33")
            A(f"s_cselect_b32 s27, {C_MODB}, s27")
            A("v_mul_u32_u24 v5, s26, v5")
            A("v_lshl_add_u32 v5, v6, 4, v5")
            A("v_mov_b32 v6, 1")
            A("s_mul_i32 s33, s33, s26")
            A("s_bfe_u32 s32, s14, 0x60003"); A("s_lshl_b32 s32, s32, 7"); A("s_add_u32 s33, s33, s32")
            A("s_lshl_b32 s26, s26, 3")
        JW = opts.get("JW", NO + D - 1)
        for pos, cond in ((NO + D - 1, f"s_cmp_lt_u32 s27, {C_MODA if JW != NO + D - 1 else C_MODB}"), (JW, f"s_cmp_lg_u32 s27, {C_MODB}"))[:1 + (JW != NO + D - 1)]:
            if j == pos:
                l = g.uniq("wl"); e = g.uniq("we")
                A(cond); A(f"s_cbranch_scc1 {e}")
                g.lab(l)
                A("s_mov_b32 m0, s34")
                throttle(); step[0] -= 1
                if not opts.get("nodma"): A(f"buffer_load_dwordx4 v5, s[28:31], s33 offen {WFL} lds")
                A("s_add_u32 s33, s33, s26")
                A("s_addk_i32 s34, 1024")
                A("s_cmp_lt_u32 s34, s35"); A(f"s_cbranch_scc1 {l}")
                g.lab(e)
            if j == pos + D:
                e = g.uniq("ws")
                A(cond); A(f"s_cbranch_scc1 {e}")
                A("s_mov_b64 exec, 1")
                A(f"ds_add_u32 v4, v6 offset:{L_CNT}")
                A("s_mov_b64 exec, -1")
                g.lab(e)
        if j == NO + 11:
            A("s_bfe_u32 s61, s14, 0xa0010"); A("s_lshl_b32 s61, s61, 10")
            A("s_bfe_u32 s60, s14, 0x70009")
            A("s_sub_u32 s60, s9, s60"); A("s_add_u32 s60, s60, 64"); A("s_lshr_b32 s60, s60, 3")
            A("v_bfrev_b32 v3, v1")
            A("v_lshrrev_b32 v3, 28, v3")
            A("v_cmp_gt_u32 s[66:67], s60, v3")
            A("v_and_b32 v3, 15, v1")
            A("v_lshlrev_b32 v3, 4, v3")
            optionals(0)
        if j == opts.get("JQ", 23): A(f"ds_write_b32 v4, v4 offset:{L_PQ}")
        if j == opts.get("JG", 38): A(f"ds_write_b32 v4, v4 offset:{L_PG}")
    for k in range(NL):
        throttle(NS + k)
        issue(1, NO + k, lds=k)
        if NS + k == opts.get("JG", 38): A(f"ds_write_b32 v4, v4 offset:{L_PG}")
    g.stamp(1)
    T, X = 8, 16
    NOCOMP = opts.get("nocomp", 0)
    if not NOCOMP:
        poll_lds(g, [f"ds_read_b128 v[4:7], v3 offset:{L_QV}"], [4, 5, 6, 7], 8, 2)
    if not opts.get("pst"): g.stamp(2)
    A(f"s_waitcnt vmcnt({NL})")
    nxt = NO + NL
    for G_ in (1, 2, 3, 4, 0):
        ne = 4 if G_ == 4 else 8
        if not NOCOMP:
            for tt in range(4):
                for e in range(ne):
                    c = "0" if tt == 0 else f"v{T+e}"
                    A(f"v_dot2_f32_bf16 v{T+e}, v{slot(8*G_+e)+tt}, v{4+tt}, {c}")
        if G_ != 4 and nxt < 8 * ((G_ or 4) + 1):
            if NOCOMP: throttle(99)
            issue(1, nxt); nxt += 1
        if NOCOMP: continue
        for e in range(0, ne, 2):
            A(f"v_add_f32_dpp v{T+e}, v{T+e}, v{T+e} row_ror:8 row_mask:0xf bank_mask:0x3")
            A(f"v_add_f32_dpp v{T+e}, v{T+e+1}, v{T+e+1} row_ror:8 row_mask:0xf bank_mask:0xc")
        if ne == 4: A("s_nop 0")
        for h in range(ne // 4):
            d = 3 if G_ == 4 else X + 2 * G_ + h
            A(f"v_add_f32_dpp v{d}, v{T+4*h}, v{T+4*h} row_shl:4 row_mask:0xf bank_mask:0x5")
            A(f"v_add_f32_dpp v{d}, v{T+4*h+2}, v{T+4*h+2} row_shr:4 row_mask:0xf bank_mask:0xa")
    PR = [4, 6, 20]
    if NOCOMP:
        for n in range(4): A(f"v_mov_b32 v{X+n}, 1.0")
    else:
        A("v_add_f32_dpp v3, v3, v3 quad_perm:[2,3,0,1] row_mask:0xf bank_mask:0xf")
        for n in (2, 3, 4, 5, 6, 7, 0, 1):
            A(f"v_add_f32_dpp v{X+n}, v{X+n}, v{X+n} quad_perm:[2,3,0,1] row_mask:0xf bank_mask:0xf")
        for n in range(4):
            A(f"v_cndmask_b32 v{T+n}, v{X+2*n}, v{X+2*n+1}, s[52:53]")
        A(f"v_add_f32_dpp v{X+2}, v3, v3 quad_perm:[1,0,3,2] row_mask:0xf bank_mask:0xf")
        for n in range(4):
            A(f"v_add_f32_dpp v{T+n}, v{T+n}, v{T+n} quad_perm:[1,0,3,2] row_mask:0xf bank_mask:0xf")
        for n in range(2):
            A(f"v_cndmask_b32 v{X+n}, v{T+2*n}, v{T+2*n+1}, s[54:55]")
        for n in range(3): rnd(g, X+n)
        for n in range(3): A(f"v_mul_f32 v{X+n}, 0x{SCALE:08x}, v{X+n}")
        for n in range(3): rnd(g, X+n)
        A(f"v_mov_b32 v{X+3}, 0xff800000")
        A("s_mov_b32 s52, 0xeeeeeeee"); A("s_mov_b32 s53, 0xeeeeeeee")
        A(f"v_cndmask_b32 v{X}, v{X}, v{X+3}, s[66:67]")
        A(f"v_cndmask_b32 v{X+2}, v{X+2}, v{X+3}, s[52:53]")
    A("s_lshl_b32 s11, s9, 10")
    A("v_lshl_add_u32 v3, v1, 4, s11")
    A(f"ds_write_b128 v3, v[{X}:{X+3}] offset:{L_SC}")
    g.stamp(3)
    throttle(99); issue(1, nxt); nxt += 1
    A("v_lshl_add_u32 v3, v1, 4, s15")
    for k in range(NL):
        A(f"ds_read_b128 {vr(slot(NO+k),4)}, v3 offset:{k*1024}")
    A(f"v_max3_f32 v22, v{X}, v{X+1}, v{X+2}")
    wave_allreduce(g, "v_max_f32", 22, 23)
    for n in range(3): A(f"v_sub_f32 v{X+n}, v{X+n}, v22")
    for n in range(3): A(f"v_mul_f32 v{X+n}, 0x{LOG2E:08x}, v{X+n}")
    for n in range(3): A(f"v_exp_f32 v{X+n}, v{X+n}")
    A("s_nop 0")
    for n in range(3):
        A(f"v_cvt_pk_bf16_f32 v{PR[n]}, v{X+n}, 0")
        A(f"v_cvt_pk_bf16_f32 v{PR[n]+1}, 0, v{X+n}")
    for e in range(8): A(f"v_mov_b32 v{T+e}, 0")
    A("s_lshl_b32 s11, s9, 9")
    A("v_and_b32 v3, 15, v1")
    A("v_lshlrev_b32 v3, 5, v3")
    A("v_lshrrev_b32 v16, 4, v1")
    A("v_lshl_add_u32 v3, v16, 3, v3")
    A("v_add_u32 v3, s11, v3")
    A(f"v_mov_b32 v16, {L_ML}")
    def pv(i):
        if NOCOMP: return
        c = ((i & 1) << 3) | (((i >> 1) & 1) << 2) | (((i >> 2) & 1) << 1) | ((i >> 3) & 1)
        pr = PR[i >> 4]
        for tt in range(4):
            for hf in range(2):
                A(f"v_dot2c_f32_bf16_dpp v{T+2*tt+hf}, v{pr+hf}, v{slot(i)+tt} row_newbcast:{c} row_mask:0xf bank_mask:0xf")
    def pvx(i):
        if i < NO: optional(i, lambda: pv(i))
        else: pv(i)
    A("s_waitcnt lgkmcnt(0)")
    per = opts.get("pvper", 3)
    BURST = opts.get("burst", 4)
    order = list(range(NO, nxt)); done = 0
    nm = lambda k: sum(1 for s_ in order[k+1:] if s_ >= NO)
    optionals(1)
    order += list(range(NO - 1, -1, -1))
    rest = list(range(nxt, NS))
    for r, i in enumerate(rest):
        if len(rest) - r > BURST: throttle(99)
        ok = [k for k in range(done, len(order)) if nm(k) >= D - 1] if len(rest) - r > BURST else []
        issue(1, i); order.append(i)
        if i == opts.get("JS", 24): A(f"ds_write_b32 v16, v16 offset:{L_PS-L_ML}")
        for k in ok[:per]: pvx(order[k]); done += 1
    g.stamp(7)
    if not NOCOMP:
        poll_lds(g, ["ds_read_b32 v18, v16"], [18], 17, 2)
    g.stamp(4)
    A("v_sub_f32 v22, v22, v18")
    A(f"v_mul_f32 v22, 0x{LOG2E:08x}, v22")
    A("v_exp_f32 v22, v22")
    A(f"ds_read_b64 v[18:19], v16 offset:{L_MB-L_ML}")
    A("s_lshl_b32 s56, s6, 2"); A("s_add_u32 s56, s56, s7")
    A("s_lshl_b32 s57, s56, 9"); A(f"s_add_u32 s57, s57, {WS_OP}")
    A("v_lshl_add_u32 v2, v1, 3, s57")
    A("v_and_b32 v17, 1, v1")
    A("v_lshlrev_b32 v17, 4, v17")
    A("v_lshlrev_b32 v1, 3, v1")
    A("v_mov_b32 v0, 1")
    A("s_movk_i32 s56, 0xff")
    A("s_waitcnt lgkmcnt(0)")
    A(f"v_readfirstlane_b32 s{SLOC}, v19")
    A("v_lshrrev_b32 v18, v17, v18")
    A("v_lshrrev_b32 v19, 8, v18")
    while done < NS:
        if nm(done) < D + BURST: A(f"s_waitcnt vmcnt({nm(done)})")
        pvx(order[done]); done += 1
    g.stamp(5); g.stamp(5, 2)
    A("s_nop 2")
    for j in range(4):
        A(f"v_permlane32_swap_b32 v{T+j}, v{T+j+4}")
    for j in range(4):
        A(f"v_add_f32 v{T+j}, v{T+j}, v{T+j+4}")
    A("s_nop 0")
    for j in range(2):
        A(f"v_permlane16_swap_b32 v{T+j}, v{T+j+2}")
    for j in range(2):
        A(f"v_add_f32 v{T+j}, v{T+j}, v{T+j+2}")
    for j in range(2):
        A(f"v_mul_f32 v{T+j}, v{T+j}, v22")
    A(f"ds_write_b64 v3, v[{T}:{T+1}] offset:{L_OP}")
    A("s_mov_b64 exec, 1")
    A(f"ds_add_rtn_u32 v17, v16, v0 offset:{L_CNT+4-L_ML}")
    A("s_mov_b64 exec, -1")
    PA = slot(NO)
    for i in range(8):
        A(f"ds_read_b64 {vr(PA+2*i,2)}, v1 offset:{L_OP+512*i}")
    for i in range(4):
        A(f"s_waitcnt lgkmcnt({6-2*i})")
        if i == 0: A("v_readfirstlane_b32 s57, v17")
        A(f"v_pk_add_f32 {vr(PA+4*i,2)}, {vr(PA+4*i,2)}, {vr(PA+4*i+2,2)}")
    A(f"v_pk_add_f32 {vr(PA,2)}, {vr(PA,2)}, {vr(PA+4,2)}")
    A(f"v_pk_add_f32 {vr(PA+8,2)}, {vr(PA+8,2)}, {vr(PA+12,2)}")
    A("s_cmp_lg_u32 s57, 7")
    A(f"v_pk_add_f32 {vr(PA,2)}, {vr(PA,2)}, {vr(PA+8,2)}")
    A(f"v_bfi_b32 v18, s56, v18, v{PA}")
    A(f"v_bfi_b32 v19, s56, v19, v{PA+1}")
    A("s_cbranch_scc1 L_send")
    if not opts.get("nohelp") in (1, 2): pub_local(g, "global_store_dwordx2 v2, v[18:19], s[42:43]")
    g.lab("L_send")
    if opts.get("stamps") in (1, 2):
        g.stamp(6)
        A("s_lshl_b32 s3, s2, 7")
        A("s_lshl_b32 s4, s9, 2")
        A("s_add_u32 s4, s4, s3")
        A(f"s_add_u32 s4, s4, {WS_STAMP+96}")
        A("v_mov_b32 v2, s4")
        A("s_waitcnt lgkmcnt(0)")
        A("v_mov_b32 v3, s92")
        A("global_store_dword v2, v3, s[42:43]")
        A("s_cmp_lg_u32 s5, 4")
        A("s_cbranch_scc1 L_end")
        A(f"s_add_u32 s3, s3, {WS_STAMP+64}")
        A("v_mov_b32 v2, s3")
        A("s_waitcnt lgkmcnt(0)")
        for i in range(8):
            A(f"v_mov_b32 v3, s{80+2*i}")
            A(f"global_store_dword v2, v3, s[42:43] offset:{4*i}")
    A("s_endpgm")

    g.lab("L_helper")
    g.help = True
    if opts.get("nohelp") == 1: A("s_endpgm")
    A("s_getpc_b64 s[56:57]")
    g.lab("L_pc2")
    A("s_lshl_b32 s3, s2, 2")
    A("s_add_u32 s3, s3, L_table-L_pc2")
    A("s_load_dwordx16 s[16:31], s[0:1], 0")
    A("s_load_dword s14, s[56:57], s3")
    A("s_load_dwordx8 s[32:39], s[0:1], 64")
    A("s_load_dwordx4 s[40:43], s[0:1], 96")
    A("s_and_b32 s8, s2, 7")
    A("s_mov_b64 s[100:101], s[56:57]")
    if opts.get("cpf", 0):
        A(f"s_cmpk_lt_u32 s2, {256 - 8*opts.get('cpf', 1)}"); A("s_cbranch_scc1 L_nopf")
        A("v_lshlrev_b32 v2, 7, v0")
        A("v_min_u32 v2, L_end-L_pc2, v2")
        A("global_load_dword v167, v2, s[56:57]")
        g.lab("L_nopf")
    if opts.get("amp"): A("s_memrealtime s[78:79]")
    A("s_mov_b32 s72, 0xfffffffe")
    A("s_mov_b32 s73, 0xffff0000")
    A("v_mov_b32 v4, -1"); A("v_mov_b32 v5, -1"); A("v_mov_b32 v6, -1"); A("v_mov_b32 v7, -1")
    A("v_lshlrev_b32 v2, 4, v0")
    A(f"ds_write_b128 v2, v[4:7] offset:{L_SC}")
    A(f"ds_write_b128 v2, v[4:7] offset:{L_SC+4096}")
    A("v_lshlrev_b32 v2, 2, v1")
    A(f"ds_write_b32 v2, v4 offset:{L_QV}")
    A("v_mov_b32 v38, 0")
    A(f"ds_write_b128 v38, v[4:7] offset:{L_ML}")
    A(f"ds_write_b128 v38, v[4:7] offset:{L_PQ}")
    A("v_mov_b32 v39, 0")
    A(f"ds_write_b64 v38, v[38:39] offset:{L_CNT}")
    A(f"s_getreg_b32 s{SXCC}, hwreg(HW_REG_XCC_ID, 0, 4)")
    A("v_lshrrev_b32 v12, 3, v0")
    A("v_lshlrev_b32 v12, 5, v12")
    A("v_bfe_u32 v3, v1, 2, 1")
    A("v_lshl_add_u32 v12, v3, 10, v12")
    A("v_and_b32 v8, 3, v1")
    A("v_lshl_add_u32 v13, v8, 3, v12")
    A("v_and_b32 v12, 0xffffffdf, v12")
    A("v_lshl_add_u32 v12, v8, 4, v12")
    A("v_bfe_u32 v8, v1, 3, 1")
    A("v_lshl_add_u32 v12, v8, 3, v12")
    A("v_lshl_add_u32 v12, v3, 5, v12")
    A("s_waitcnt lgkmcnt(0)")
    A("s_barrier")
    A(f"s_load_dword s{ST}, s[42:43], {WS_E}")
    A("s_and_b32 s13, s14, 7")
    A("s_bfe_u32 s61, s14, 0x60003")
    A(f"s_cmp_eq_u32 s13, {C_Q}"); A("s_cbranch_scc1 L_r_q")
    A(f"s_cmp_ge_u32 s13, {C_MODB}"); A("s_cbranch_scc1 L_r_moda")
    A(f"s_cmp_eq_u32 s13, {C_WO}"); A("s_cbranch_scc1 L_r_wo")
    A(f"s_cmp_eq_u32 s13, {C_F1}"); A("s_cbranch_scc1 L_r_f1")
    A(f"s_cmp_eq_u32 s13, {C_F2}"); A("s_cbranch_scc1 L_r_f2")
    A("s_branch L_r_none")

    def make_tag():
        A("s_waitcnt lgkmcnt(0)")
        A(f"s_mul_i32 s{ST}, s{ST}, 0x9e3779b1")
        A(f"s_add_u32 s{ST}, s{ST}, 0x7f4a7c15")
        A(f"s_add_u32 s{SXCC}, s{SXCC}, s{ST}")
    def line_out_addr(v, bsh=6, ush=7):
        A(f"v_and_b32 v{v}, 1, v1")
        A(f"v_lshlrev_b32 v{v}, {bsh}, v{v}")
        A("v_lshrrev_b32 v3, 4, v1")
        A(f"v_lshl_add_u32 v{v}, v3, 4, v{v}")
        A(f"s_lshl_b32 s49, s5, {ush}")
        A("s_add_u32 s49, s49, s58")
        A(f"v_add_u32 v{v}, s49, v{v}")
    def pack_tagged():
        A("v_cvt_pk_bf16_f32 v8, v8, v9")
        A("v_cvt_pk_bf16_f32 v10, v10, v11")
        A(f"v_mov_b32 v9, s{ST}")
        A(f"v_mov_b32 v11, s{ST}")
    def ln_addrs():
        A("v_bfe_u32 v6, v1, 2, 1")
        A("v_lshlrev_b32 v6, 5, v6")
        A(f"v_add_u32 v6, {L_RED}, v6")
        A("s_lshl_b32 s49, s5, 3")
        A("v_add_u32 v5, s49, v6")

    def mod_params():
        A("s_lshl_b32 s58, s61, 9")
        A(f"s_add_u32 s58, s58, {WS_MOD}")
    def mod_act():
        unpack4(g, 16, 14)
        silu4(g, 16, 20)
        A("v_cvt_pk_bf16_f32 v14, v16, v17")
        A("v_cvt_pk_bf16_f32 v15, v18, v19")
        A(f"ds_write_b64 v12, v[14:15] offset:{L_ACT}")
    def mod_finish():
        line_out_addr(13)
        act_addr(g, 14, L_ACT, ACT_BS)
        tr64_addr(g)
        A("s_waitcnt lgkmcnt(0)")
        hs_signal(g, 8, 9); hs_wait(g, 12, 9, 2)
        g.stamp(1)
        gemv_fused(g, 14, 8)
        pack_tagged()
        for x in EX8: A(x)
        A("global_store_dwordx4 v13, v[8:11], s[42:43] sc1")
        A("s_mov_b64 exec, -1")
        g.stamp(2)

    g.lab("L_r_moda")
    mod_params()
    A("global_load_dwordx2 v[14:15], v13, s[34:35]")
    make_tag()
    A("s_waitcnt vmcnt(0)")
    mod_act()
    mod_finish()
    A("s_mov_b32 s60, 0")
    A("s_branch L_svc1")

    g.lab("L_r_q")
    A("s_lshl_b32 s58, s61, 9")
    A(f"s_add_u32 s58, s58, {WS_Q}")
    A("global_load_dwordx2 v[14:15], v13, s[16:17]")
    make_tag()
    A("s_waitcnt vmcnt(0)")
    ln_addrs()
    unpack4(g, 20, 14)
    ln_partial(g, 20)
    A("s_waitcnt lgkmcnt(0)")
    hs_signal(g, 8, 9); hs_wait(g, 12, 9, 4)
    ln_apply(g, 20, 24)
    tr_tile64(g)
    line_out_addr(13)
    act_addr(g, 14, L_ACT, ACT_BS)
    A("v_lshlrev_b32 v15, 4, v0")
    A(f"v_add_u32 v15, {WS_MOD}, v15")
    A("v_add_u32 v36, 0x1000, v15")
    poll_lds(g, [f"ds_read_b32 v8, v38 offset:{L_PQ}"], [8], 9, 8)
    g.stamp(1)
    A("s_mov_b64 s[64:65], -1"); A("s_mov_b64 s[66:67], -1")
    A("s_mov_b32 s70, 0")
    g.lab("L_q_p")
    A("s_mov_b64 exec, s[64:65]")
    A("global_load_dwordx4 v[16:19], v15, s[42:43] sc1")
    A("s_mov_b64 exec, s[66:67]")
    A("global_load_dwordx4 v[32:35], v36, s[42:43] sc1")
    A("s_mov_b64 exec, -1")
    A("s_waitcnt vmcnt(0)")
    A(f"v_cmp_ne_u32 s[64:65], s{ST}, v17"); A(f"v_cmp_ne_u32 s[68:69], s{ST}, v19"); A("s_or_b64 s[64:65], s[64:65], s[68:69]")
    A(f"v_cmp_ne_u32 s[66:67], s{ST}, v33"); A(f"v_cmp_ne_u32 s[68:69], s{ST}, v35"); A("s_or_b64 s[66:67], s[66:67], s[68:69]")
    A("s_or_b64 vcc, s[64:65], s[66:67]")
    spin_tail(g, "L_q_p", "L_q_ok", opts.get("msleep", 0))
    g.stamp(7)
    unpack4(g, 28, 32, 2)
    unpack4(g, 24, 16, 2)
    for i in range(4): A(f"v_add_f32 v{28+i}, 1.0, v{28+i}")
    for i in range(4): rnd(g, 28+i)
    for i in range(4): A(f"v_mul_f32 v{20+i}, v{20+i}, v{28+i}")
    for i in range(4): rnd(g, 20+i)
    for i in range(4): A(f"v_add_f32 v{20+i}, v{20+i}, v{24+i}")
    A("v_cvt_pk_bf16_f32 v16, v20, v21")
    A("v_cvt_pk_bf16_f32 v17, v22, v23")
    A(f"ds_write_b64 v12, v[16:17] offset:{L_ACT}")
    hs_signal(g, 8, 9); hs_wait(g, 16, 9, 0)
    gemv(g, 16, 14, 8)
    pack_tagged()
    guard(g, 8); guard(g, 10)
    for x in EX8: A(x)
    A("global_store_dwordx4 v13, v[8:11], s[42:43] sc1")
    A("s_mov_b64 exec, -1")
    g.stamp(2)
    A("s_mov_b32 s60, 0")
    A("s_branch L_svc1")

    g.lab("L_r_wo")
    A("s_and_b32 s66, s2, 7")
    A("s_lshr_b32 s58, s66, 1"); A("s_lshl_b32 s58, s58, 14")
    A("s_and_b32 s49, s66, 1"); A("s_lshl_b32 s49, s49, 12"); A("s_add_u32 s58, s58, s49")
    A("s_lshl_b32 s49, s61, 9")
    A("s_add_u32 s58, s58, s49")
    A(f"s_add_u32 s58, s58, {WS_AP}")
    make_tag()
    g.C("wave 3 times two fresh lines on either memory side and votes which hand-off copy its die should read (speed only)")
    e = g.uniq("nr"); l = g.uniq("nrl")
    A("s_cmp_lg_u32 s5, 3"); A(f"s_cbranch_scc1 {e}")
    A("s_lshl_b32 s49, s61, 14")
    A("s_lshl_b32 s50, s8, 10"); A("s_add_u32 s49, s49, s50"); A(f"s_add_u32 s49, s49, {WS_PRB}")
    A(f"s_add_u32 s50, s49, {opts.get('nprobe', 2)*128}")
    A("s_mov_b32 s54, -1"); A("s_mov_b32 s55, -1")
    g.lab(l)
    for c in range(2):
        A("s_memtime s[64:65]")
        A("s_waitcnt lgkmcnt(0)")
        A("s_load_dword s51, s[42:43], s49")
        A("s_waitcnt lgkmcnt(0)")
        A("s_memtime s[68:69]")
        A("s_waitcnt lgkmcnt(0)")
        A("s_sub_u32 s68, s68, s64")
        A(f"s_min_u32 s{54+c}, s{54+c}, s68")
        A("s_xor_b32 s49, s49, 0x2000")
    A("s_add_u32 s49, s49, 128")
    A("s_cmp_lt_u32 s49, s50"); A(f"s_cbranch_scc1 {l}")
    A("s_cmp_lt_u32 s55, s54")
    A("s_cselect_b32 s54, 1, 0")
    A(f"s_sub_u32 s55, s{SXCC}, s{ST}"); A("s_lshr_b32 s55, s55, 2")
    A("s_xor_b32 s54, s54, s55"); A("s_and_b32 s54, s54, 1")
    A(f"s_add_u32 s54, s54, s{ST}")
    A("s_lshl_b32 s55, s8, 3"); A("s_add_u32 s55, s55, s61"); A("s_lshl_b32 s55, s55, 5")
    A("v_mov_b32 v8, s55"); A(f"v_mov_b32 v10, s{SXCC}"); A("v_mov_b32 v11, s54")
    A("s_mov_b64 exec, 1")
    A(f"global_store_dwordx2 v8, v[10:11], s[42:43] offset:{WS_HDR} sc1")
    A("s_mov_b64 exec, -1")
    g.lab(e)
    A("s_mov_b32 s60, 1")
    A("s_branch L_svc1")

    def f1_lane_par(sp):
        A("v_lshrrev_b32 v2, 2, v1")
        A("v_mul_u32_u24 v2, 5504, v2")
        A("s_and_b32 s49, s5, 2")
        A(f"s_or_b32 s49, s49, {sp}")
        A("v_xor_b32 v3, s49, v1")
        A("v_and_b32 v3, 3, v3")
        A("v_lshl_add_u32 v2, v3, 4, v2")
    def f2_lane():
        A("v_lshrrev_b32 v2, 1, v1")
        A("v_lshlrev_b32 v2, 10, v2")
        A("v_and_b32 v3, 1, v1")
        A("v_lshl_add_u32 v2, v3, 4, v2")

    g.lab("L_r_f1")
    A("s_lshl_b32 s48, s61, 6")
    A("s_mul_i32 s49, s61, 47"); A("s_lshr_b32 s49, s49, 9")
    A(f"s_mul_i32 s49, s49, {16384-11*512}")
    A("s_lshl_b32 s58, s61, 9")
    A("s_add_u32 s58, s58, s49")
    A(f"s_add_u32 s58, s58, {WS_HH}")
    A("s_cmp_lt_u32 s5, 2")
    A("s_cselect_b32 s44, s28, s30")
    A("s_cselect_b32 s45, s29, s31")
    A(f"s_mov_b32 s46, {512*2752}"); A("s_mov_b32 s47, 0x20000")
    A("s_mov_b32 s60, 2")
    make_tag()
    A("s_branch L_svc1")

    g.lab("L_r_f2")
    srd(g, 44, 32, 1376*1024)
    make_tag()
    A("s_mov_b32 s60, 3")
    A("s_lshl_b32 s48, s61, 5")
    A("global_load_dword v167, v38, s[38:39]")
    A("s_branch L_svc1")

    g.lab("L_r_none")
    A("s_mov_b32 s60, 0")
    make_tag()

    g.lab("L_svc1")
    if opts.get("nohelp") == 2:
        A("s_endpgm")
    A("s_cmp_lg_u32 s5, 0")
    A("s_cbranch_scc1 L_disp3")
    A("s_and_b32 s64, s6, 31"); A("s_lshl_b32 s64, s64, 10")
    A("s_and_b32 s65, s6, 32"); A("s_lshl_b32 s65, s65, 1"); A("s_add_u32 s64, s64, s65")
    A(f"s_add_u32 s64, s64, {WS_Q}")
    A("v_bfe_u32 v16, v1, 2, 3")
    A("v_lshl_add_u32 v16, v16, 7, s64")
    A("v_and_b32 v17, 3, v1")
    A("v_lshl_add_u32 v16, v17, 4, v16")
    A("v_and_b32 v17, 31, v1")
    A("v_lshlrev_b32 v17, 3, v17")
    A("s_lshl_b32 s71, s8, 8")
    A("v_and_b32 v18, 7, v1")
    A("v_lshl_add_u32 v18, v18, 5, s71")
    poll_lds(g, [f"ds_read_b32 v8, v38 offset:{L_PG}"], [8], 9, 8)
    A(f"global_load_dword v19, v18, s[42:43] offset:{WS_HDR} sc1")
    poll_tagged(g, ["global_load_dwordx4 v[20:23], v16, s[42:43] sc1"], [21, 23], sleep=opts.get("qsleep", 0))
    A("v_mov_b32 v21, v22")
    A(f"ds_write_b64 v17, v[20:21] offset:{L_QV}")
    A(f"v_cmp_ne_u32 vcc, s{SXCC}, v19")
    A("s_cmp_eq_u64 vcc, 0")
    A(f"s_cselect_b32 s{SLOC}, 1, 0")
    if opts.get("nolocal"): A(f"s_mov_b32 s{SLOC}, 0")
    A(f"v_mov_b32 v20, s{ST}"); A(f"v_mov_b32 v21, s{SLOC}")
    A(f"ds_write_b64 v38, v[20:21] offset:{L_MB}")
    g.stamp(3)

    g.lab("L_svc2")
    A("v_lshlrev_b32 v16, 4, v1")
    A("s_lshl_b32 s64, s6, 9"); A(f"s_add_u32 s64, s64, {WS_ST}")
    A("s_lshl_b32 s65, s7, 7"); A("s_add_u32 s65, s65, s64")
    A("v_mov_b32 v18, s65")
    SR = [VA + 4 * i + k for i in range(8) for k in range(3)]
    poll_lds(g, [f"ds_read_b128 {vr(VA+4*i,4)}, v16 offset:{L_SC+1024*i}" for i in range(8)], SR, 8, 4)
    A(f"v_max3_f32 v8, v{SR[0]}, v{SR[1]}, v{SR[2]}")
    for i in range(3, 23, 2): A(f"v_max3_f32 v8, v8, v{SR[i]}, v{SR[i+1]}")
    A(f"v_max_f32 v8, v8, v{SR[23]}")
    wave_allreduce(g, "v_max_f32", 8, 11)
    A("v_min_u32 v9, s72, v8")
    A(f"ds_write_b32 v38, v9 offset:{L_ML}")
    for r in SR: A(f"v_sub_f32 v{r}, v{r}, v8")
    for r in SR: A(f"v_mul_f32 v{r}, 0x{LOG2E:08x}, v{r}")
    for r in SR: A(f"v_exp_f32 v{r}, v{r}")
    A("s_nop 0")
    for st in (12, 6, 3):
        for i in range(st): A(f"v_add_f32 v{SR[i]}, v{SR[i]}, v{SR[i+st]}")
    A(f"v_add_f32 v10, v{SR[0]}, v{SR[1]}")
    A(f"v_add_f32 v10, v10, v{SR[2]}")
    wave_allreduce(g, "v_add_f32", 10, 11)
    A(f"v_mov_b32 v9, s{ST}"); A(f"v_mov_b32 v11, s{ST}")
    A("s_mov_b64 exec, 1")
    pub_local(g, "global_store_dwordx4 v18, v[8:11], s[42:43]")
    A("s_mov_b64 exec, -1")
    g.stamp(4)

    g.lab("L_disp3")
    DRY = opts.get("dry", 1)
    A("s_mov_b32 s77, 0")
    for i in range(4): A(f"s_bfe_u32 s{62+i}, s{ST}, 0x{(8 << 16) | (8 * i):x}")
    if DRY:
        A("s_cmp_lg_u32 s5, 1"); A("s_cbranch_scc1 L_dry_ret")
        A("s_mov_b32 s77, 1")
        for r in (6, 14, 30): A(f"v_mov_b32 v{r}, {L_RED}")
        A("v_mov_b32 v39, v0")
        for r in (0, 2, 3, 7): A(f"v_mov_b32 v{r}, 0")
        A(f"v_mov_b32 v5, {L_WT-8-L_SC}")
        A("s_mov_b64 s[50:51], -1")
        A("s_cmp_eq_u32 s60, 1"); A("s_cbranch_scc1 L_wo_ok")
        A("s_cmp_eq_u32 s60, 2"); A("s_cbranch_scc1 L_f1_ok")
        A("s_cmp_eq_u32 s60, 3"); A("s_cbranch_scc1 L_f2_ok")
        g.lab("L_dry_end")
        A("s_mov_b64 exec, -1")
        A("v_mov_b32 v0, v39")
        A("s_mov_b64 exec, -1")
        A("s_mov_b32 s77, 0")
        g.lab("L_dry_ret")
    def tbar():
        if DRY:
            l = g.uniq("nb")
            A("s_cmp_eq_u32 s77, 1"); A(f"s_cbranch_scc1 {l}")
            A("s_barrier")
            g.lab(l)
        else: A("s_barrier")
    def dry_out(lbl="L_dry_end"):
        if DRY:
            A("s_cmp_eq_u32 s77, 1"); A(f"s_cbranch_scc1 {lbl}")
    RA = [14, 0, 2, 3]
    def rot_addrs():
        for j in (1, 2, 3, 0):
            A(f"s_add_u32 s49, s5, {j}"); A("s_and_b32 s49, s49, 3"); A("s_lshl_b32 s49, s49, 8")
            A(f"v_add_u32 v{RA[j]}, s49, v14")
    if opts.get("optouch", 1):
        e = g.uniq("opt")
        A("s_cmp_lg_u32 s5, 2"); A(f"s_cbranch_scc1 {e}")
        poll_lds(g, [f"ds_read_b32 v8, v38 offset:{L_ML}"], [8], 9, 32)
        A("s_lshl_b32 s56, s6, 2"); A("s_add_u32 s56, s56, s7")
        A("s_lshl_b32 s57, s56, 9"); A(f"s_add_u32 s57, s57, {WS_OP}")
        A("v_lshl_add_u32 v3, v1, 3, s57")
        A("global_load_dword v167, v3, s[42:43] sc1")
        g.lab(e)
    A("s_cmp_eq_u32 s60, 2"); A("s_cbranch_scc1 L_pre_f1")
    A("s_cmp_eq_u32 s60, 3"); A("s_cbranch_scc1 L_pre_f2")
    A("s_cmp_eq_u32 s60, 1"); A("s_cbranch_scc1 L_pre_wo")
    A("s_lshr_b32 s68, s14, 29"); A(f"s_mul_i32 s68, s68, {opts.get('xt', 1)}"); A("s_xor_b32 s68, s68, s8")
    A("s_lshl_b32 s68, s68, 3"); A("s_add_u32 s68, s68, L_gtab-L_pc2")
    A("s_load_dwordx2 s[100:101], s[100:101], s68")
    A("s_waitcnt lgkmcnt(0)")
    A("s_lshr_b32 s68, s14, 26"); A("s_lshl_b32 s68, s68, 2"); A("s_add_u32 s68, s68, s5"); A("s_and_b32 s68, s68, 31")
    A("s_and_b32 s69, s100, 0xffff"); A("s_lshr_b32 s100, s100, 16")
    A("v_and_b32 v12, 3, v1")
    A("v_lshl_add_u32 v12, v12, 7, s69")
    A("v_min_u32 v12, s100, v12")
    A("v_lshrrev_b32 v13, 2, v1")
    A("v_mul_u32_u24 v13, 2752, v13")
    A(f"s_mul_i32 s69, s68, {16*2752}")
    A("v_add3_u32 v12, v12, v13, s69")
    A("v_min_u32 v13, 42, v1")
    A(f"s_mul_i32 s68, s68, {43*1024}")
    A("s_add_u32 s68, s68, s101")
    A("v_lshl_add_u32 v13, v13, 10, s68")
    if opts.get("tlb2", 0):
        poll_lds(g, [f"ds_read_b32 v8, v38 offset:{L_PS}"], [8], 9, 16)
        A("s_mov_b64 exec, 1")
        A("global_load_dword v16, v12, s[28:29]")
        A("global_load_dword v17, v12, s[30:31]")
        A("global_load_dword v18, v13, s[32:33]")
        A("s_mov_b64 exec, -1")
    A("s_branch L_join")
    g.lab("L_pre_wo")
    hs_wait(g, 8, 9, 8)
    tr64_addr(g)
    tr_reads(g, 16, 4096, 2048, True)
    A("s_lshl_b32 s49, s5, 3"); A("s_add_u32 s49, s49, s66")
    A("s_lshl_b32 s50, s49, 9"); A(f"s_add_u32 s50, s50, {WS_ST}")
    A("v_lshrrev_b32 v12, 5, v1")
    A("v_lshl_add_u32 v15, v12, 14, s50")
    A("v_and_b32 v16, 3, v1")
    A("v_lshl_add_u32 v15, v16, 7, v15")
    poll_lds(g, [f"ds_read_b32 v8, v38 offset:{L_PS}"], [8], 9, 16)
    poll_tagged(g, ["global_load_dwordx4 v[16:19], v15, s[42:43] sc1"], [17, 19], sleep=opts.get("ssleep", 8))
    A("v_max_f32_dpp v10, v16, v16 quad_perm:[1,0,3,2] row_mask:0xf bank_mask:0xf")
    A("s_nop 1")
    A("v_max_f32_dpp v10, v10, v10 quad_perm:[2,3,0,1] row_mask:0xf bank_mask:0xf")
    A("v_sub_f32 v8, v16, v10")
    A(f"v_mul_f32 v8, 0x{LOG2E:08x}, v8")
    A("v_exp_f32 v8, v8")
    A("s_nop 0")
    A("v_mul_f32 v9, v18, v8")
    A("s_nop 1")
    A("v_add_f32_dpp v9, v9, v9 quad_perm:[1,0,3,2] row_mask:0xf bank_mask:0xf")
    A("s_nop 1")
    A("v_add_f32_dpp v9, v9, v9 quad_perm:[2,3,0,1] row_mask:0xf bank_mask:0xf")
    A("v_rcp_f32 v9, v9")
    A("s_nop 0")
    A("v_mul_f32 v8, v8, v9")
    A("s_nop 1")
    for i in range(4): A(f"v_mov_b32_dpp v{20+i}, v8 quad_perm:[{i},{i},{i},{i}] row_mask:0xf bank_mask:0xf")
    g.stamp(5)
    A("s_lshl_b32 s49, s49, 11")
    A(f"s_add_u32 s49, s49, {WS_OP}")
    A("v_lshrrev_b32 v12, 5, v1")
    A("v_and_b32 v16, 31, v1")
    A("v_lshlrev_b32 v15, 16, v12")
    A("v_lshl_add_u32 v15, v16, 4, v15")
    A("v_add_u32 v15, s49, v15")
    A(f"v_mul_u32_u24 v12, {ACT_BS}, v12")
    A("v_bfe_u32 v16, v1, 3, 2")
    A("v_lshl_add_u32 v12, v16, 6, v12")
    A("v_and_b32 v16, 3, v1")
    A("v_lshl_add_u32 v12, v16, 4, v12")
    A("v_bfe_u32 v16, v1, 2, 1")
    A("v_lshl_add_u32 v12, v16, 3, v12")
    A("s_lshl_b32 s49, s5, 8")
    A("v_add_u32 v12, s49, v12")
    act_addr(g, 14, L_ACT, ACT_BS)
    line_out_addr(13)
    A("v_add_u32 v37, 0x2000, v13")
    A("v_mov_b32 v36, 0xff")
    rot_addrs()
    A("s_branch L_join")

    adr = [15, 35, 32, 36, 33, 37, 34, 39]
    def ap_addrs():
        for i in range(1, 8): A(f"v_add_u32 v{adr[i]}, {(i >> 1) * 16384 + (i & 1) * 4096}, v15")
    def hdr_wave(bases):
        e = g.uniq("hc")
        A("s_cmp_lg_u32 s5, 3"); A(f"s_cbranch_scc1 {e}")
        poll_lds(g, [f"ds_read_b32 v8, v38 offset:{L_QV}"], [8], 9, 32)
        if opts.get("tlb", 0):
            A(f"v_lshlrev_b32 v10, {opts['tlb']}, v1")
            A(f"v_min_u32 v10, {512*2752-4}, v10")
            for b in bases: A(f"global_load_dword v167, v10, s[{b}:{b+1}]")
        check_votes(g, 10, VA)
        g.lab(e)
    def near_copy():
        poll_lds(g, [f"ds_read_b32 v11, v38 offset:{L_NR}"], [11], 9, 8)

    PG = VA + 32
    def pre_gather(addrs):
        poll_lds(g, [f"ds_read_b32 v8, v38 offset:{L_PS}"], [8], 9, 16)
        A("global_load_dwordx2 v[8:9], v31, s[16:17]")
        poll_tagged(g, [f"global_load_dwordx4 {vr(PG+4*i,4)}, v{a}, s[42:43] sc1" for i, a in enumerate(addrs)],
                    [PG + 1 + 2 * i for i in range(2 * len(addrs))], sleep=8)

    g.lab("L_pre_f1")
    hdr_wave((28, 30))
    A("v_mov_b32 v31, v13")
    A("v_lshlrev_b32 v15, 4, v0")
    A(f"v_add_u32 v24, {WS_MOD+2*4096}, v15")
    A(f"v_add_u32 v25, {WS_MOD+3*4096}, v15")
    A(f"v_add_u32 v26, {WS_MOD+4*4096}, v15")
    near_copy()
    A(f"v_add_u32 v15, {WS_AP}, v15")
    A("v_add_u32 v15, v11, v15")
    ap_addrs()
    A("v_bfe_u32 v5, v1, 2, 1")
    A(f"v_mul_u32_u24 v5, {ACT_BS}, v5")
    A("v_lshrrev_b32 v3, 3, v0")
    A("v_lshl_add_u32 v5, v3, 5, v5")
    A("v_and_b32 v3, 3, v1")
    A("v_lshl_add_u32 v5, v3, 3, v5")
    A("v_and_b32 v14, 7, v1")
    A(f"v_mul_u32_u24 v14, {ACT_BS}, v14")
    A("v_lshrrev_b32 v3, 4, v1")
    A("v_lshl_add_u32 v14, v3, 4, v14")
    A("v_and_b32 v7, 1, v1")
    A(f"v_mul_u32_u24 v7, {ACT_BS}, v7")
    A("v_lshrrev_b32 v3, 1, v1")
    A("v_lshl_add_u32 v7, v3, 5, v7")
    A("v_and_b32 v13, 3, v1")
    A("v_lshlrev_b32 v13, 5, v13")
    A("v_bfe_u32 v3, v1, 4, 1")
    A("v_lshl_add_u32 v13, v3, 3, v13")
    A("s_lshl_b32 s49, s5, 7")
    A("s_add_u32 s49, s49, s58")
    A("v_add_u32 v13, s49, v13")
    A("v_lshrrev_b32 v3, 5, v1")
    A("v_lshl_add_u32 v13, v3, 4, v13")
    A("v_add_u32 v4, 0x2000, v13")
    E1 = 8
    if 1:
        A("s_and_b32 s54, s61, 1" if opts.get("fpar", 1) else "s_mov_b32 s54, 0")
        A("s_mul_i32 s52, s54, -2"); A("s_add_u32 s52, s52, 1")
        A("s_mul_i32 s53, s52, 16384"); A("s_sub_u32 s53, s53, 8192")
        A("s_mul_i32 s52, s52, 2752"); A(f"s_sub_u32 s52, s52, {256*2752}")
        f1_lane_par("s54")
        A("v_mov_b32 v0, v2")
        A("v_lshrrev_b32 v6, 3, v1")
        A("v_lshlrev_b32 v6, 6, v6")
        A("v_bfe_u32 v3, v1, 2, 1")
        A("v_lshl_add_u32 v6, v3, 14, v6")
        A("v_and_b32 v8, 2, v1")
        A("v_or_b32 v3, v3, v8")
        A("v_xor_b32 v3, s5, v3")
        A("v_lshl_add_u32 v6, v3, 4, v6")
        A("v_lshl_add_u32 v6, v8, 14, v6")
        A("v_and_b32 v3, 1, v1")
        A("v_lshl_add_u32 v6, v3, 3, v6")
        A(f"v_add_u32 v6, {L_WT}, v6")
        A("s_and_b32 s55, s5, 1")
        A(f"s_mul_i32 s49, s55, {256*2752}")
        A("s_add_u32 s49, s49, s48")
        A("s_mul_i32 s50, s54, 2752"); A("s_add_u32 s49, s49, s50")
        A("s_lshr_b32 s50, s5, 1"); A("s_lshl_b32 s50, s50, 15")
        A("s_lshl_b32 s54, s54, 14"); A("s_add_u32 s50, s50, s54")
        A("s_lshl_b32 s55, s55, 13"); A("s_add_u32 s50, s50, s55")
        A(f"s_add_u32 s50, s50, {L_WT}")
    pre_gather([24, 25, 26])
    unpack4(g, 16, 8)
    unpack4(g, 20, PG, 2)
    unpack4(g, 28, PG+8, 2)
    for i in range(4): A(f"v_add_f32 v{28+i}, 1.0, v{28+i}")
    A("v_cvt_pk_bf16_f32 v8, v28, v29"); A("v_cvt_pk_bf16_f32 v9, v30, v31")
    A(f"v_mov_b32 v{PG+5}, v{PG+6}")
    A(f"ds_write_b64 v12, v[8:9] offset:{L_ACT+2*ACT_BS}")
    A(f"ds_write_b64 v12, {vr(PG+4,2)} offset:{L_ACT+4*ACT_BS}")
    for i in range(4): rnd(g, 28+i)
    for i in range(4): A(f"v_mul_f32 v{24+i}, v{20+i}, v{28+i}")
    for i in range(4): A(f"v_mul_f32 v{28+i}, v{16+i}, v{28+i}")
    A("s_branch L_join")

    g.lab("L_pre_f2")
    hdr_wave((32,))
    A("v_and_b32 v12, 1, v1")
    A("v_lshrrev_b32 v14, 4, v1")
    A("s_lshl_b32 s49, s61, 5")
    A("v_lshl_add_u32 v3, v14, 3, s49")
    A("v_lshl_add_u32 v13, v12, 10, v3")
    A("v_mov_b32 v31, v13")
    A("v_lshlrev_b32 v15, 6, v12")
    A("v_lshl_add_u32 v15, v14, 4, v15")
    A("s_lshl_b32 s49, s61, 7")
    A("v_add_u32 v15, s49, v15")
    A(f"v_add_u32 v24, {WS_MOD+2*4096}, v15")
    A(f"v_add_u32 v25, {WS_MOD+5*4096}, v15")
    near_copy()
    A(f"v_add_u32 v15, {WS_AP}, v15")
    A("v_add_u32 v15, v11, v15")
    ap_addrs()
    A("s_lshl_b32 s49, s5, 14")
    A(f"s_add_u32 s49, s49, {WS_HH+2048}")
    A("v_lshl_add_u32 v28, v14, 7, s49")
    A("v_add_u32 v28, v11, v28")
    A("v_lshl_add_u32 v28, v12, 5, v28")
    A("v_and_b32 v3, 2, v1")
    A("v_lshl_add_u32 v28, v3, 3, v28")
    A("v_bfe_u32 v3, v1, 2, 2")
    A("v_lshl_add_u32 v28, v3, 9, v28")
    A("v_lshl_add_u32 v12, v14, 1, v12")
    A("v_lshlrev_b32 v12, 4, v12")
    A(f"v_add_u32 v12, {L_RED}, v12")
    A("s_lshl_b32 s49, s5, 7")
    A("v_add_u32 v30, s49, v12")
    f2_lane()
    A("v_mov_b32 v29, v2")
    A("v_lshlrev_b32 v6, 8, v14")
    A("v_bfe_u32 v3, v1, 2, 2")
    A("v_lshl_add_u32 v6, v3, 5, v6")
    A("v_and_b32 v3, 3, v1")
    A("v_lshl_add_u32 v6, v3, 3, v6")
    A("s_mul_i32 s49, s5, 11264")
    A(f"s_add_u32 s49, s49, {L_WT}")
    A("v_add_u32 v6, s49, v6")
    pre_gather([24, 25])
    unpack4(g, 16, 8)
    unpack4(g, 20, PG, 2)
    unpack4(g, 24, PG+4, 2)

    g.lab("L_join")
    if opts.get("nohelp") == 4:
        A("s_endpgm")
    A("s_waitcnt vmcnt(0) lgkmcnt(0)")
    g.stamp(9)
    A("s_barrier")
    g.stamp(6)
    g.tail = True
    g.stamp(9, 2)
    if opts.get("nohelp") == 5:
        A("s_cmp_lg_u32 s60, 0"); A("s_cbranch_scc1 L_fin")
    if opts.get("nohelp") == 6:
        A("s_cmp_gt_u32 s60, 1"); A("s_cbranch_scc1 L_fin")
    A("s_cmp_eq_u32 s60, 1"); A("s_cbranch_scc1 L_t_wo")
    A("s_cmp_eq_u32 s60, 2"); A("s_cbranch_scc1 L_t_f1")
    A("s_cmp_eq_u32 s60, 3"); A("s_cbranch_scc1 L_t_f2")
    g.C("pull a share of the FFN weights of this group into L2 (values unused)")
    if not opts.get("notouch"):
        A("global_load_dword v16, v12, s[28:29]")
        A("global_load_dword v17, v12, s[30:31]")
        if opts.get("f2d", 0): A("s_waitcnt vmcnt(0)")
        A("global_load_dword v18, v13, s[32:33]")
    A("s_branch L_fin")

    def sum8p(src, dst):
        for p in range(4):
            for h in range(2): A(f"v_pk_add_f32 {vr(dst+8*p+2*h,2)}, {vr(src+8*p+2*h,2)}, {vr(src+8*p+4+2*h,2)}")
        sum8q(dst)
    def sum8q(dst):
        for i in range(2):
            for h in range(2): A(f"v_pk_add_f32 {vr(dst+16*i+2*h,2)}, {vr(dst+16*i+2*h,2)}, {vr(dst+16*i+8+2*h,2)}")
        for h in range(2): A(f"v_pk_add_f32 {vr(dst+2*h,2)}, {vr(dst+2*h,2)}, {vr(dst+16+2*h,2)}")
    def x1_from(S):
        for i in range(4): rnd(g, S+i)
        for i in range(4): A(f"v_mul_f32 v{S+i}, v{S+i}, v{20+i}")
        for i in range(4): rnd(g, S+i)
        for i in range(4): A(f"v_add_f32 v{16+i}, v{16+i}, v{S+i}")
        for i in range(4): rnd(g, 16+i)

    g.lab("L_t_wo")
    A("s_mov_b32 s70, 0")
    g.lab("L_wo_p")
    for i in range(4): A(f"global_load_dwordx4 {vr(VA+4*i,4)}, v15, s[42:43] offset:{512*i} sc1")
    for k in range(16):
        if k % 4 == 0: A(f"s_waitcnt vmcnt({3-k//4})")
        A(f"v_xor_b32 v{VA+k}, s{62+k%4}, v{VA+k}")
    for k in range(4): A(f"v_or3_b32 v{28+k}, v{VA+3*k}, v{VA+3*k+1}, v{VA+3*k+2}")
    A("v_or3_b32 v28, v28, v29, v30")
    A(f"v_or3_b32 v31, v31, v{VA+12}, v{VA+13}")
    A(f"v_or3_b32 v28, v28, v{VA+14}, v{VA+15}")
    A("v_or_b32 v28, v28, v31")
    A("v_lshlrev_b32 v28, 24, v28")
    A("v_cmp_ne_u32 vcc, 0, v28")
    for i in range(4):
        for h in range(2):
            f = f"{vr(20+(i&2),2)}"; sel = f"op_sel:[0,{i&1},0] op_sel_hi:[1,{i&1},1]"
            if i == 0: A(f"v_pk_mul_f32 {vr(16+2*h,2)}, {vr(VA+2*h,2)}, {f} op_sel:[0,0] op_sel_hi:[1,0]")
            else: A(f"v_pk_fma_f32 {vr(16+2*h,2)}, {vr(VA+4*i+2*h,2)}, {f}, {vr(16+2*h,2)} {sel}")
    spin_tail(g, "L_wo_p", "L_wo_ok", 0)
    g.stamp(7); g.stamp(1, 2)
    A(f"v_cvt_pk_bf16_f32 v16, v16, v17")
    A(f"v_cvt_pk_bf16_f32 v17, v18, v19")
    A(f"ds_write_b64 v12, v[16:17] offset:{L_ACT}")
    wrd = lambda m: A(f"ds_read_b128 {vr(VA+4*m,4)}, v{RA[m//4]} offset:{L_ACT+64*(m%4)}")
    wmf = lambda m: A(f"v_mfma_f32_16x16x32_bf16 v[8:11], {vr(VW+4*m,4)}, {vr(VA+4*m,4)}, " + ("0" if m == 0 else "v[8:11]"))
    for m in range(4): wrd(m)
    A("s_waitcnt lgkmcnt(4)")
    g.stamp(2, 2)
    tbar()
    g.stamp(3, 2)
    for m in range(4, 8): wrd(m)
    if opts.get("stamps") == 2: A("s_waitcnt lgkmcnt(0)")
    A("s_waitcnt lgkmcnt(4)")
    for m in range(4):
        wmf(m); wrd(8 + 2*m); wrd(9 + 2*m)
    for m in range(4, 16):
        A(f"s_waitcnt lgkmcnt({15-m})")
        wmf(m)
    A("s_nop 3" if DRY else "s_nop 5")
    dry_out()
    for x in EX8: A(x)
    g.stamp(4, 2)
    for i in range(4):
        A(f"v_bfi_b32 v{8+i}, v36, s{62+i}, v{8+i}")
    A("global_store_dwordx4 v13, v[8:11], s[42:43] sc1")
    A("global_store_dwordx4 v37, v[8:11], s[42:43] sc1")
    g.stamp(2); g.stamp(7, 2)
    A("s_branch L_fin")

    g.lab("L_t_f1")
    A("v_mov_b32 v2, v0")
    FFL = opts.get("fflags", "").replace("_", " ")
    dma_loop(g, 8, 32*2752, FFL)
    A("v_xor_b32 v2, 16, v2")
    A("s_add_u32 s49, s49, s52")
    A("s_add_u32 s50, s50, s53")
    dma_loop(g, 8, 32*2752, FFL)
    def look():
        for i in range(8): A(f"global_load_dwordx4 {vr(VA+4*i,4)}, v{adr[i]}, s[42:43] sc1")
    LOOK = opts.get("look", 3)
    if LOOK == 1: look()
    A("v_mov_b32 v2, v6")
    A(f"s_waitcnt vmcnt({8 if LOOK == 1 else 0})")
    if LOOK == 2: look()
    A("s_barrier")
    if LOOK == 3: look()
    tr_reads(g, 16, 1024, 512, True)
    rot_addrs()
    g.stamp(1)
    S = VA + 32
    A("s_mov_b32 s70, 0")
    A("s_mov_b32 s71, 15")
    A("s_branch L_f1_c")
    if 1:
        def ap_check():
            for k in range(32): A(f"v_xor_b32 v{S+k}, s{62+k%4}, v{VA+k}")
            for p in range(4): A(f"v_or3_b32 v{8+p}, v{S+8*p}, v{S+8*p+1}, v{S+8*p+2}")
            for p in range(4): A(f"v_or3_b32 v{8+p}, v{8+p}, v{S+8*p+3}, v{S+8*p+4}")
            for p in range(4): A(f"v_or3_b32 v{8+p}, v{8+p}, v{S+8*p+5}, v{S+8*p+6}")
            for p in range(4): A(f"v_or_b32 v{8+p}, v{8+p}, v{S+8*p+7}")
            A("v_or3_b32 v3, v8, v9, v10")
            A("v_or_b32 v3, v3, v11")
            A("v_lshlrev_b32 v3, 24, v3")
            A("v_cmp_ne_u32 vcc, 0, v3")
        g.lab("L_f1_p")
        A("s_add_u32 s70, s70, 1")
        A(f"s_cmp_ge_u32 s70, {SPIN_MAX}")
        A("s_cbranch_scc1 L_f1_ok")
        for p in range(4):
            l = g.uniq("fl")
            A(f"s_bitcmp1_b32 s71, {p}"); A(f"s_cbranch_scc0 {l}")
            for i in (2*p, 2*p+1): A(f"global_load_dwordx4 {vr(VA+4*i,4)}, v{adr[i]}, s[42:43] sc1")
            g.lab(l)
        g.lab("L_f1_c")
        A("s_waitcnt vmcnt(0)")
        for p in range(4):
            l = g.uniq("fc")
            A(f"s_bitcmp1_b32 s71, {p}"); A(f"s_cbranch_scc0 {l}")
            B_ = VA + 8 * p
            for k in range(8): A(f"v_xor_b32 v{B_+k}, s{62+k%4}, v{B_+k}")
            A(f"v_or3_b32 v8, v{B_}, v{B_+1}, v{B_+2}")
            A(f"v_or3_b32 v9, v{B_+3}, v{B_+4}, v{B_+5}")
            A(f"v_or3_b32 v8, v8, v{B_+6}, v{B_+7}")
            for h in range(2): A(f"v_pk_add_f32 {vr(S+8*p+2*h,2)}, {vr(B_+2*h,2)}, {vr(B_+4+2*h,2)}")
            A("v_or_b32 v8, v8, v9")
            A("v_lshlrev_b32 v8, 24, v8")
            A("v_cmp_ne_u32 vcc, 0, v8")
            A("s_cmp_lg_u64 vcc, 0"); A(f"s_cbranch_scc1 {l}")
            A(f"s_bitset0_b32 s71, {p}")
            g.lab(l)
        A("s_cmp_lg_u32 s71, 0")
        A("s_cbranch_scc1 L_f1_p")
        g.lab("L_f1_ok")
        sum8q(S)
    g.stamp(7); g.stamp(1, 2)
    if 1:
        for h in range(2): A(f"v_pk_fma_f32 {vr(8+2*h,2)}, {vr(S+2*h,2)}, {vr(24+2*h,2)}, {vr(28+2*h,2)}")
        A("v_cvt_pk_bf16_f32 v8, v8, v9")
        A("v_cvt_pk_bf16_f32 v9, v10, v11")
        A(f"ds_write_b64 v12, v[8:9] offset:{L_ACT}")
        q = []
        def rd(m): A(f"ds_read_b128 {vr(VA+4*m,4)}, v{RA[m//4]} offset:{L_ACT+64*(m%4)}"); q.append(("r", m))
        def need(op):
            i = q.index(op); A(f"s_waitcnt lgkmcnt({len(q)-1-i})"); del q[:i+1]
        for m in range(4): rd(m)
        for h in range(2): A(f"v_pk_fma_f32 {vr(16+2*h,2)}, {vr(S+2*h,2)}, {vr(20+2*h,2)}, {vr(16+2*h,2)}")
        A("v_pk_mul_f32 v[10:11], v[16:17], v[16:17]")
        A("v_pk_add_f32 v[20:21], v[16:17], v[18:19]")
        A("v_pk_fma_f32 v[10:11], v[18:19], v[18:19], v[10:11]")
        A("v_add_f32 v20, v20, v21")
        A("v_add_f32 v21, v10, v11")
        A(f"ds_write_b64 v5, v[20:21] offset:{L_SC}")
        A("s_waitcnt lgkmcnt(0)"); del q[:]
        g.stamp(2, 2)
        tbar()
        g.stamp(3, 2)
        for m in range(4, 8): rd(m)
        A(f"ds_read_b128 v[20:23], v7 offset:{L_SC}"); q.append(("s", 0))
        A(f"ds_read_b128 v[24:27], v7 offset:{L_SC+16}"); q.append(("s", 1))
        DF = 32
        dpp = lambda r, mod: f"v_add_f32_dpp v{r}, v{r}, v{r} {mod} row_mask:0xf bank_mask:0xf"
        fill = {5: ["S", "v_pk_add_f32 v[20:21], v[20:21], v[22:23]", "v_pk_add_f32 v[24:25], v[24:25], v[26:27]"],
                6: ["v_pk_add_f32 v[20:21], v[20:21], v[24:25]", "s_nop 0"],
                7: [dpp(20, "quad_perm:[2,3,0,1]"), dpp(21, "quad_perm:[2,3,0,1]")],
                8: [dpp(20, "row_ror:4"), dpp(21, "row_ror:4")],
                9: [dpp(20, "row_ror:8"), dpp(21, "row_ror:8")],
                10: ["v_mov_b32 v22, v20", "v_mov_b32 v23, v21"],
                11: ["v_permlane16_swap_b32 v22, v20", "v_permlane16_swap_b32 v23, v21"],
                12: ["v_add_f32 v20, v20, v22", "v_add_f32 v21, v21, v23", "v_mov_b32 v22, v20", "v_mov_b32 v23, v21"],
                13: ["v_permlane32_swap_b32 v22, v20", "v_permlane32_swap_b32 v23, v21"],
                14: ["v_add_f32 v20, v20, v22", "v_add_f32 v21, v21, v23"],
                15: [f"v_mul_f32 v20, 0x{f2u(-1/512):08x}, v20", f"v_mul_f32 v21, 0x{f2u(1/512):08x}, v21",
                     "v_fma_f32 v21, -v20, v20, v21", "v_max_f32 v21, 0, v21", f"v_add_f32 v21, 0x{EPS:08x}, v21", "v_rsq_f32 v21, v21",
                     "s_nop 1"]}
        for m in range(16):
            if ("r", m) in q: need(("r", m))
            c = "0" if m == 0 else vr(DF, 4)
            A(f"v_mfma_f32_16x16x32_bf16 {vr(DF,4)}, {vr(VW+4*m,4)}, {vr(VA+4*m,4)}, {c}")
            if m < 4: rd(8 + 2*m); rd(9 + 2*m)
            for t in fill.get(m, []):
                if t == "S": need(("s", 1))
                else: A(t)
        g.stamp(5, 2)
        for i in range(4): A(f"v_fmac_f32_dpp v{DF+i}, v{DF+i}, v20 row_shl:2 row_mask:0xf bank_mask:0x1")
        for i in range(4): A(f"v_mul_f32 v{8+i}, v{DF+i}, v21")
        for i in range(4): A(f"v_add_f32_dpp v{8+i}, v{DF+i}, v{8+i} row_shl:4 row_mask:0xf bank_mask:0xf")
        HM = "0x000f000f" if opts.get("hfull", 1) else "0x00030003"
        A(f"s_mov_b32 s50, {HM}")
        A(f"s_mov_b32 s51, {HM}")
        A("v_permlane32_swap_b32 v8, v10")
        A("v_permlane32_swap_b32 v9, v11")
        for i in range(2): A(f"v_mul_f32 v{20+i}, 0x{LOG2E ^ 0x80000000:08x}, v{8+i}")
        for i in range(2): A(f"v_exp_f32 v{20+i}, v{20+i}")
        for i in range(2): A(f"v_mul_f32 v{8+i}, v{8+i}, v{10+i}")
        for i in range(2): A(f"v_add_f32 v{20+i}, 1.0, v{20+i}")
        for i in range(2): A(f"v_rcp_f32 v{20+i}, v{20+i}")
        A("s_mov_b64 exec, s[50:51]")
        for i in range(2): A(f"v_mul_f32 v{8+i}, v{8+i}, v{20+i}")
        A("v_cvt_pk_bf16_f32 v8, v8, v9")
        A(f"v_mov_b32 v9, s{ST}")
        dry_out()
        A("global_store_dwordx2 v13, v[8:9], s[42:43] sc1")
        A("global_store_dwordx2 v4, v[8:9], s[42:43] sc1")
        g.stamp(2); g.stamp(7, 2)
        A("s_branch L_fin")

    g.lab("L_t_f2")
    def f2_dma():
        A("v_mov_b32 v2, v29")
        A("s_and_b32 s59, s61, 3"); A("s_mul_i32 s59, s59, 3072")
        for part in range(2):
            A(f"s_mul_i32 s49, s5, {11*32*1024}")
            A("s_add_u32 s49, s49, s48")
            A("s_mul_i32 s50, s5, 11264")
            A(f"s_add_u32 s50, s50, {L_WT}")
            if part == 0:
                A("s_lshl_b32 s52, s59, 5")
                A("s_add_u32 s49, s49, s52")
                A("s_add_u32 s50, s50, s59")
                A("s_sub_u32 s52, 11264, s59")
                dma_loop(g, "s52", 32*1024, FFL)
            else:
                dma_loop(g, "s59", 32*1024, FFL)
    if opts.get("f2d", 0):
        A("s_lshr_b32 s49, s8, 1"); A("s_lshl_b32 s49, s49, 14"); A("s_and_b32 s50, s8, 1"); A("s_lshl_b32 s50, s50, 12"); A("s_add_u32 s49, s49, s50")
        A("v_add_u32 v8, s49, v15")
        A("s_mov_b64 exec, 1")
        A("s_mov_b32 s70, 0")
        g.lab("L_f2_h")
        A("global_load_dword v9, v8, s[42:43] sc1")
        A("s_waitcnt vmcnt(0)")
        A("v_and_b32 v9, 0xff, v9")
        A("v_cmp_ne_u32 vcc, s62, v9")
        spin_tail(g, "L_f2_h", "L_f2_hd", 2)
        A("s_mov_b64 exec, -1")
    f2_dma()
    A("v_mov_b32 v2, v6")
    A("s_mov_b32 s50, 0x00030003"); A("s_mov_b32 s51, 0x00030003")
    A("s_mov_b32 s53, 0x0fff0fff")
    A("s_cmp_eq_u32 s5, 3")
    A("s_cselect_b32 s52, 0x00ff00ff, s53")
    A("s_mov_b32 s53, s52")
    def ap_loads():
        A("s_mov_b64 exec, s[50:51]")
        for i in range(8): A(f"global_load_dwordx4 {vr(VA+4*i,4)}, v{adr[i]}, s[42:43] sc1")
    A("s_cmp_lg_u32 s5, 0")
    A("s_cbranch_scc1 L_f2_w")
    ap_loads()
    A("s_mov_b64 exec, -1")
    A("s_waitcnt vmcnt(8)")
    A("s_branch L_f2_w2")
    g.lab("L_f2_w")
    A("s_waitcnt vmcnt(0)")
    g.lab("L_f2_w2")
    tr_reads(g, 11, 1024, 128)
    g.stamp(1)
    e = g.uniq("f2x")
    A("s_cmp_lg_u32 s5, 0")
    A(f"s_cbranch_scc1 {e}")
    A("s_mov_b32 s70, 0")
    A("s_mov_b64 exec, s[50:51]")
    A("s_branch L_f2_ac")
    g.lab("L_f2_a")
    ap_loads()
    g.lab("L_f2_ac")
    A("s_waitcnt vmcnt(0)")
    ap_check()
    F2S = opts.get("f2s", 0)
    spin_tail(g, "L_f2_a", "L_f2_ad", 0 if F2S else 2)
    A("s_mov_b64 exec, -1")
    if F2S: A("s_barrier")
    sum8p(S, S)
    x1_from(S)
    if F2S:
        A(f"s_sleep {F2S-3}")
        A("s_branch L_f2_go")
    g.lab(e)
    if F2S:
        A("s_barrier")
        A(f"s_sleep {F2S}")
        g.lab("L_f2_go")
    for i in range(4): A(f"v_mov_b32 v{VA+8+i}, 0")
    DD = VA + 16
    A("s_mov_b32 s70, 0")
    g.lab("L_f2_p")
    A(f"global_load_dwordx4 {vr(VA,4)}, v28, s[42:43] offset:-2048 sc1")
    A(f"global_load_dwordx4 {vr(VA+4,4)}, v28, s[42:43] sc1")
    A("s_mov_b64 exec, s[52:53]")
    A(f"global_load_dwordx4 {vr(VA+8,4)}, v28, s[42:43] offset:2048 sc1")
    A("s_mov_b64 exec, -1")
    def mf(m):
        j, mp = divmod(m, 4)
        c = "0" if j == 0 else vr(DD+4*mp, 4)
        A(f"v_mfma_f32_16x16x32_bf16 {vr(DD+4*mp,4)}, {vr(VW+4*m,4)}, {vr(VA+4*j,4)}, {c}")
    for j in range(3):
        A(f"s_waitcnt vmcnt({2-j})")
        A(f"v_xor_b32 v{VA+4*j+1}, s{ST}, v{VA+4*j+1}")
        A(f"v_xor_b32 v{VA+4*j+3}, s{ST}, v{VA+4*j+3}")
    A(f"v_or3_b32 v31, v{VA+1}, v{VA+3}, v{VA+5}")
    A(f"v_or_b32 v3, v{VA+9}, v{VA+11}")
    A(f"v_or_b32 v31, v{VA+7}, v31")
    A("v_cmp_ne_u32 s[68:69], 0, v3")
    A("v_cmp_ne_u32 vcc, 0, v31")
    for j in range(3):
        for h in range(2): A(f"v_mov_b32_dpp v{VA+4*j+2*h+1}, v{VA+4*j+2*h} quad_perm:[2,3,2,3] row_mask:0xf bank_mask:0xf")
    A("s_and_b64 s[68:69], s[68:69], s[52:53]")
    A("s_or_b64 vcc, vcc, s[68:69]")
    for m in range(4): mf(m)
    spin_tail(g, "L_f2_p", "L_f2_ok", 0)
    for m in range(4, 11): mf(m)
    A("s_nop 6")
    for i in range(4): A(f"v_add_f32_dpp v{8+i}, v{DD+4+i}, v{DD+i} row_shl:4 row_mask:0xf bank_mask:0xf")
    for i in range(4): A(f"v_add_f32_dpp v{DD+8+i}, v{DD+12+i}, v{DD+8+i} row_shl:4 row_mask:0xf bank_mask:0xf")
    for i in range(4): A(f"v_add_f32_dpp v{8+i}, v{DD+8+i}, v{8+i} row_shl:8 row_mask:0xf bank_mask:0xf")
    A("s_mov_b64 exec, s[50:51]")
    g.stamp(7); g.stamp(1, 2)
    A("ds_write_b128 v30, v[8:11]")
    A("s_waitcnt lgkmcnt(0)")
    g.stamp(2, 2)
    tbar()
    g.stamp(3, 2)
    A("s_cmp_lg_u32 s5, s77")
    A("s_cbranch_scc1 L_fin")
    for i in range(3):
        A(f"ds_read_b128 {vr(VA+4*i,4)}, v12 offset:{128*(i+1)}")
    A("s_waitcnt lgkmcnt(2)")
    for h in range(2): A(f"v_pk_add_f32 {vr(8+2*h,2)}, {vr(8+2*h,2)}, {vr(VA+2*h,2)}")
    A("s_waitcnt lgkmcnt(0)")
    for h in range(2): A(f"v_pk_add_f32 {vr(VA+4+2*h,2)}, {vr(VA+4+2*h,2)}, {vr(VA+8+2*h,2)}")
    for h in range(2): A(f"v_pk_add_f32 {vr(8+2*h,2)}, {vr(8+2*h,2)}, {vr(VA+4+2*h,2)}")
    for h in range(2): A(f"v_pk_fma_f32 {vr(8+2*h,2)}, {vr(8+2*h,2)}, {vr(24+2*h,2)}, {vr(16+2*h,2)}")
    A("v_cvt_pk_bf16_f32 v8, v8, v9")
    A("v_cvt_pk_bf16_f32 v9, v10, v11")
    dry_out()
    A("global_store_dwordx2 v13, v[8:9], s[38:39]")
    A("s_mov_b64 exec, 1")
    A("s_cmp_lg_u32 s61, 0")
    A("s_cbranch_scc1 L_noep")
    A(f"v_mov_b32 v10, s{ST}")
    A(f"global_store_dword v38, v10, s[42:43] offset:{WS_E}")
    if opts.get("amp"):
        A("s_waitcnt vmcnt(0)")
        A("s_memrealtime s[66:67]"); A("s_waitcnt lgkmcnt(0)")
        A("s_sub_u32 s66, s66, s78"); A(f"s_mul_i32 s66, s66, {opts['amp']}")
        g.lab("L_xa")
        A("s_sleep 1")
        A("s_memrealtime s[64:65]"); A("s_waitcnt lgkmcnt(0)")
        A("s_sub_u32 s64, s64, s78"); A("s_cmp_lt_u32 s64, s66"); A("s_cbranch_scc1 L_xa")
    g.lab("L_noep")
    g.stamp(2); g.stamp(7, 2)

    g.lab("L_fin")
    if opts.get("stamps"):
        A("s_mov_b64 exec, -1")
        A("s_waitcnt vmcnt(0)")
        g.stamp(8)
        A(f"s_cmp_lg_u32 s5, {opts.get('swave', 0)}")
        A("s_cbranch_scc1 L_end")
        A("s_lshl_b32 s3, s2, 7")
        A(f"s_add_u32 s3, s3, {WS_STAMP}")
        A("v_mov_b32 v2, s3")
        A("s_waitcnt lgkmcnt(0)")
        for i in (range(10) if opts["stamps"] != 3 else (0, 6, 8)):
            A(f"v_mov_b32 v3, s{80+2*i}")
            A(f"global_store_dword v2, v3, s[42:43] offset:{4*i}")
        A(f"v_mov_b32 v3, s{SLOC}")
        A(f"global_store_dword v2, v3, s[42:43] offset:40")
        if opts.get("dbgt"):
            A("s_lshr_b32 s3, s2, 3"); A(f"s_cmp_lg_u32 s3, {opts['dbgt']}"); A("s_cbranch_scc1 L_end")
            A("s_lshl_b32 s3, s8, 2"); A("v_mov_b32 v2, s3")
            A("s_and_b32 s80, s80, 0xffff"); A("s_and_b32 s92, s92, 0xffff")
            A("s_getreg_b32 s3, hwreg(HW_REG_XCC_ID, 0, 4)"); A("s_mul_i32 s3, s3, 100000"); A("s_add_u32 s80, s80, s3")
            A("v_mov_b32 v3, s80"); A("global_store_dword v2, v3, s[40:41]")
            A("v_mov_b32 v3, s92"); A("global_store_dword v2, v3, s[40:41] offset:32")
    g.lab("L_end")
    A("s_endpgm")
    g.L.append(".p2align 7")
    g.lab("L_table")
    for w in range(0, 256, 8):
        A(".long " + ", ".join(f"0x{RM[v][0] | (RM[v][1] << 3) | (SP[v][1] << 9) | (SP[v][0] << 16) | (RK[v] << 26):08x}" for v in range(w, w + 8)))
    g.lab("L_gtab")
    for x in range(8):
        f1 = sorted(t for w, (r, t) in enumerate(RM) if r == C_F1 and w % 8 == x)
        f2 = sorted(set(t // 4 for w, (r, t) in enumerate(RM) if r == C_F2 and w % 8 == x))
        assert f1 == list(range(f1[0], f1[0] + len(f1))) and len(f1) <= 7 and len(f2) == 1
        A(f".long 0x{64*f1[0] | ((64*(f1[-1]+1)-4) << 16):08x}, 0x{128*f2[0]:08x}")
    g.L.append(f'''.section .rodata,"a"
.p2align 6
.amdhsa_kernel {KNAME}
  .amdhsa_next_free_vgpr 168
  .amdhsa_next_free_sgpr 102
  .amdhsa_accum_offset 168
  .amdhsa_group_segment_fixed_size 0
  .amdhsa_kernarg_size 112
  .amdhsa_user_sgpr_count 2
  .amdhsa_user_sgpr_kernarg_segment_ptr 1
  .amdhsa_system_sgpr_workgroup_id_x 1
.end_amdhsa_kernel''')
    return "\n".join(g.L) + "\n"

if __name__ == "__main__":
    import json, os
    here = os.path.dirname(os.path.abspath(__file__))
    opts = {"ref": os.path.join(here, "..", KNAME[:-7] + ".s.ref")}
    out = sys.argv[1]
    for kv in sys.argv[2:]:
        k, v = kv.split("=")
        try: v = int(v)
        except ValueError: pass
        opts[k] = v
    open(out, "w").write(gen(opts))
```

```python
import sys, struct

KNAME = "adaLN_cond__sliding_block_cached__glu_gated_swiglu__decode_kernel"

def f2u(x): return struct.unpack("<I", struct.pack("<f", x))[0]
LOG2E = f2u(1.4426950408889634)
SCALE = f2u(128 ** -0.5)
EPS = f2u(1e-5)

WS_E   = 0x00000
WS_HDR = 0x00400
WS_MOD = 0x01000
WS_Q   = 0x08000
WS_ST  = 0x10000
WS_PGS = 0x1a000
WS_OP  = 0x20000
WS_HH  = 0x40000
WS_AP  = 0x50000
WS_PRB = 0x80000
WS_STAMP = 0x100000
ACT_BS = 1056
L_ACT = 0
L_QV  = L_ACT + 6400
L_ML  = L_QV + 256
L_PG  = L_ML + 8
L_NR  = L_ML + 12
L_PQ  = L_ML + 16
L_PS  = L_ML + 20
L_MD  = L_ML + 72
L_MB  = L_ML + 32
L_CNT = L_ML + 64
L_OP  = L_CNT + 64 + 128
L_RED = L_OP + 4096
L_SC  = L_RED + 1024
L_WT  = 20480
L_VX  = L_WT + 65536
assert L_SC + 8192 <= L_WT and L_OP % 16 == 0 and L_SC % 16 == 0

C_NONE, C_WO, C_F1, C_F2, C_MODB, C_MODA, C_Q = 0, 1, 2, 3, 4, 5, 6
RN = {0: "none", 1: "WO", 2: "F1", 3: "F2", 4: "MODB", 5: "MODA", 6: "Q"}
def cls(r, t):
    n = RN[r]
    if r in (C_WO, C_MODB, C_MODA, C_Q) and t % 8 == 3: n += "3"
    if r == C_F2 and t // 4 == 3: n += "3"
    return n
COST = {"Q": 560, "Q3": 610, "WO": 560, "WO3": 600, "MODA": 680, "MODA3": 680, "MODB": 670, "MODB3": 720, "F1": 330, "F2": 170, "F23": 200, "none": 110}
def role_map(mode=3, cost=COST):
    import itertools, random
    mod = lambda t: (C_MODA if t < 16 else C_MODB, t)
    h3 = [(C_Q, t) for t in range(64) if t % 8 == 3] + [mod(t) for t in range(48) if t % 8 == 3]
    hn = [mod(t) for t in range(16) if t % 8 != 3] + [(C_Q, t) for t in range(64) if t % 8 != 3] + [mod(t) for t in range(16, 48) if t % 8 != 3]
    nf1, nn, n3 = {3: ([4, 7, 4, 7, 4, 7, 4, 6], [0, 1, 0, 1, 0, 1, 0, 2], [2, 2, 2, 1, 2, 1, 2, 2]),
                   4: ([6, 5, 6, 5, 6, 5, 5, 5], [0, 1, 0, 1, 0, 1, 1, 1], [2, 2, 2, 1, 2, 1, 2, 2]),
                   5: ([5, 6, 5, 6, 5, 6, 5, 5], [0, 1, 0, 1, 0, 1, 0, 2], [2, 2, 2, 1, 2, 1, 2, 2])}[mode]
    X = []; f = 0
    for x in range(8):
        l = [(C_F2, 4 * x + i) for i in range(4)] + [(C_F1, f + i) for i in range(nf1[x])] + [(C_NONE, 0)] * nn[x]; f += nf1[x]
        X.append(l)
    for i in range(2):
        for x in range(8):
            if i < n3[x]: X[x].append(h3.pop(0))
    while hn:
        for x in range(8):
            if len(X[x]) < 24 and hn: X[x].append(hn.pop(0))
    c = lambda rt: cost[cls(*rt)]
    order = {C_MODA: 0, C_Q: 1, C_WO: 2, C_MODB: 3, C_F1: 4, C_F2: 5, C_NONE: 6}
    R = [None] * 256
    rnd_ = random.Random(1)
    for x in range(8):
        l = X[x]; assert len(l) == 24
        tot = lambda g: c((C_WO, g)) + sum(c(rt) for rt in l[3*g:3*g+3])
        bad = lambda: sum(tot(g) ** 2 for g in range(8))
        for _ in range(4000):
            a, b = rnd_.randrange(24), rnd_.randrange(24); o = bad()
            l[a], l[b] = l[b], l[a]
            if bad() > o: l[a], l[b] = l[b], l[a]
        for g in range(8):
            for s, rt in enumerate(sorted([(C_WO, g)] + l[3*g:3*g+3], key=lambda rt: order[rt[0]])): R[8 * (g + 8 * s) + x] = rt
    for c_, n in ((C_MODA, range(16)), (C_MODB, range(16, 48)), (C_F1, range(43)), (C_F2, range(32)), (C_Q, range(64))):
        assert sorted(t for r, t in R if r == c_) == list(n), c_
    return R
def split_table(RM, cost, nq=0):
    T = [None] * 256
    for x in range(8):
        for g in range(8):
            ws = [8 * (g + 8 * s) + x for s in range(4)]
            c = [cost[w] if isinstance(cost, list) else cost[cls(*RM[w])] for w in ws]
            n = [256 + (sum(c) / 4 - ci) / 16 for ci in c]
            for _ in range(4):
                lo = [min(288, max(224, v)) for v in n]; d = 1024 - sum(lo)
                fr = [i for i in range(4) if (d > 0 and lo[i] < 288) or (d < 0 and lo[i] > 224)]
                n = [v + (d / len(fr) if i in fr else 0) for i, v in enumerate(lo)] if fr else lo
            if nq:
                q, off = nq; import itertools
                base = [int((v - off) // q) * q + off for v in n]
                best = min((c_ for c_ in itertools.product((-q, 0, q), repeat=4) if sum(base) + sum(c_) == 1024 and all(224 <= b + d <= 288 for b, d in zip(base, c_))),
                           key=lambda c_: sorted((b + d - v for b, d, v in zip(base, c_, n)), reverse=True))
                n = [b + d for b, d in zip(base, best)]
            a = [0]
            for v in n: a.append(a[-1] + v)
            a = [int(round(v)) for v in a]; assert a[4] == 1024
            for s, w in enumerate(ws):
                T[w] = (896 + a[s] - 224 * s, a[s + 1] - a[s] - 224); assert 0 <= T[w][1] <= 64
    return T
SPIN_MAX = 1 << 18
ST, SLOC, SXCC = 74, 75, 76

NOTES = {
    "L_nb1": "streaming waves: K then V of this workgroup's keys (range from L_table), 1 KB per load, at most 4 loads in flight per wave",
    "L_helper": "helper waves: LDS sentinels, launch tag, role dispatch",
    "L_r_moda": "roles MODA / MODB: 64 columns of silu(c) @ w_mod",
    "L_r_q": "role Q: LayerNorm + modulation + 64 columns of h @ wq",
    "L_r_wo": "role WO: 512 x 64 tile of wo",
    "L_r_f1": "role F1: 32 columns of w1 and w3",
    "L_r_f2": "role F2: 16 columns of w2",
    "L_svc1": "wave 0: fetch q for the streaming waves",
    "L_svc2": "wave 0: max / sum of this split's scores, for the streaming waves (LDS) and for the WO workgroups",
    "L_disp3": "idle-time preparation of the tail",
    "L_join": "the barrier opens when the streaming waves have ended",
    "L_t_wo": "tail WO: gather the group's partial outputs, project, publish",
    "L_t_f1": "tail F1: residual, LayerNorm (applied after the product), gate/up, SwiGLU, publish",
    "L_t_f2": "tail F2: down projection, gated residual, output; advances the epoch word",
    "L_gtab": "per group: byte columns of w1/w3 and of w2 that its workgroups will read",
    "L_table": "per workgroup: role | tile << 3 | extra chunks << 9 | first extra chunk << 16 (chunk = 4 keys) | prefetch share << 26",
}
class G:
    def __init__(s, opts):
        s.L = []; s.o = opts; s.n = 0; s.tail = False; s.help = False
    def A(s, t):
        s.L.append("  " + t)
    def lab(s, t):
        if t in NOTES: s.L.append("; ---- " + NOTES[t])
        s.L.append(t + ":")
    def C(s, t): s.L.append("; ---- " + t)
    def uniq(s, p): s.n += 1; return f"L_{p}_{s.n}"
    def stamp(s, idx, lvl=1):
        m = s.o.get("stamps", 0)
        if m == 3 and idx not in (0, 6, 8): return
        if s.o.get("cnt") and s.help and not s.tail and idx in (3, 5, 7) and lvl == 1:
            s.A(f"s_mov_b32 s{80+2*idx}, s70"); return
        if m and (m == lvl or idx in (0, 6, 8)) and not (lvl == 2 and m == 1):
            s.A(f"s_memrealtime s[{80+2*idx}:{81+2*idx}]")

def vr(a, n): return f"v[{a}:{a+n-1}]"

def wave_allreduce(g, op, v, t):
    A = g.A
    for r in (8, 4, 2, 1):
        A("s_nop 1")
        A(f"{op}_dpp v{v}, v{v}, v{v} row_ror:{r} row_mask:0xf bank_mask:0xf")
    A(f"v_mov_b32 v{t}, v{v}")
    A("s_nop 1")
    A(f"v_permlane16_swap_b32 v{t}, v{v}")
    A(f"{op} v{v}, v{v}, v{t}")
    A(f"v_mov_b32 v{t}, v{v}")
    A("s_nop 1")
    A(f"v_permlane32_swap_b32 v{t}, v{v}")
    A(f"{op} v{v}, v{v}, v{t}")

def rnd(g, d, s=None):
    g.A(f"v_cvt_pk_bf16_f32 v{d}, 0, v{s if s is not None else d}")

def spin_tail(g, l, e, sleep, mult=1):
    A = g.A
    A("s_cmp_eq_u64 vcc, 0")
    A(f"s_cbranch_scc1 {e}")
    if sleep: A(f"s_sleep {sleep}")
    A("s_add_u32 s70, s70, 1")
    A(f"s_cmp_lt_u32 s70, {SPIN_MAX*mult}")
    A(f"s_cbranch_scc1 {l}")
    g.lab(e)

def chk_sentinel(g, regs, tmp):
    A = g.A
    rs = list(regs)
    if len(rs) == 1:
        A(f"v_cmp_eq_u32 vcc, -1, v{rs[0]}")
        return
    if len(rs) == 2:
        A(f"v_max_u32 v{tmp}, v{rs[0]}, v{rs[1]}"); rs = []
    else:
        A(f"v_max3_u32 v{tmp}, v{rs[0]}, v{rs[1]}, v{rs[2]}"); rs = rs[3:]
    while len(rs) >= 2:
        A(f"v_max3_u32 v{tmp}, v{tmp}, v{rs[0]}, v{rs[1]}"); rs = rs[2:]
    if rs: A(f"v_max_u32 v{tmp}, v{tmp}, v{rs[0]}")
    A(f"v_cmp_eq_u32 vcc, -1, v{tmp}")

def poll_tagged(g, loads, tagregs, sleep=0):
    A = g.A
    l = g.uniq("polt"); e = g.uniq("poltd")
    A("s_mov_b32 s70, 0")
    g.lab(l)
    for x in loads: A(x)
    A("s_waitcnt vmcnt(0)")
    for i, r in enumerate(tagregs):
        if i == 0: A(f"v_cmp_ne_u32 vcc, s{ST}, v{r}")
        else:
            A(f"v_cmp_ne_u32 s[68:69], s{ST}, v{r}")
            A("s_or_b64 vcc, vcc, s[68:69]")
    spin_tail(g, l, e, sleep)

def poll_lds(g, loads, regs, tmp, sleep):
    A = g.A
    l = g.uniq("pl"); e = g.uniq("pld")
    A("s_mov_b32 s70, 0")
    g.lab(l)
    for x in loads: A(x)
    A("s_waitcnt lgkmcnt(0)")
    chk_sentinel(g, regs, tmp)
    spin_tail(g, l, e, sleep, 4)

def check_votes(g, va, vt):
    A = g.A
    A(f"v_lshlrev_b32 v{vt+6}, 5, v1")
    A(f"global_load_dword v{vt+5}, v{vt+6}, s[42:43] offset:{WS_HDR+4} sc1")
    A("s_waitcnt vmcnt(0)")
    A(f"v_subrev_u32 v{vt+5}, s{ST}, v{vt+5}")
    A(f"v_cmp_eq_u32 vcc, 1, v{vt+5}")
    A("s_bcnt1_i32_b64 s70, vcc")
    A(f"v_cmp_eq_u32 vcc, 0, v{vt+5}")
    A("s_bcnt1_i32_b64 s71, vcc")
    A("s_cmp_gt_u32 s70, s71")
    A("s_cselect_b32 s71, 4, 0")
    if "near" in g.o: A(f"s_mov_b32 s71, {4*g.o['near']}")
    A(f"s_sub_u32 s68, s{SXCC}, s{ST}")
    A("s_xor_b32 s71, s71, s68"); A("s_and_b32 s71, s71, 4"); A("s_lshl_b32 s71, s71, 11")
    A(f"v_mov_b32 v{vt}, s71")
    A(f"ds_write_b32 v38, v{vt} offset:{L_NR}")

def pub_local(g, ins):
    A = g.A
    l = g.uniq("pf"); e = g.uniq("pe")
    A(f"s_cmp_eq_u32 s{SLOC}, 1")
    A(f"s_cbranch_scc0 {l}")
    A(ins)
    A(f"s_branch {e}")
    g.lab(l)
    A(ins + " sc1")
    g.lab(e)

def hs_signal(g, vt, vt2):
    A = g.A
    A(f"v_mov_b32 v{vt2}, 1")
    A("s_mov_b64 exec, 1")
    A(f"ds_add_u32 v38, v{vt2} offset:{L_CNT}")
    A("s_mov_b64 exec, -1")
def hs_wait(g, target, vt2, sleep=1):
    A = g.A
    l = g.uniq("hs"); e = g.uniq("hsd")
    A("s_mov_b32 s70, 0")
    g.lab(l)
    A(f"ds_read_b32 v{vt2}, v38 offset:{L_CNT}")
    A("s_waitcnt lgkmcnt(0)")
    A(f"v_cmp_gt_u32 vcc, {target}, v{vt2}")
    spin_tail(g, l, e, sleep, 8)
def dma_loop(g, n, step, flags, pace=0):
    A = g.A
    l = g.uniq("dma"); e = g.uniq("dmae")
    if isinstance(n, int):
        A(f"s_add_u32 s51, s50, {n*1024}")
    else:
        A(f"s_add_u32 s51, s50, {n}")
        A("s_cmp_lt_u32 s50, s51")
        A(f"s_cbranch_scc0 {e}")
    g.lab(l)
    A("s_mov_b32 m0, s50")
    A("s_add_u32 s50, s50, 1024")
    if not g.o.get("nodma"):
        A(f"buffer_load_dwordx4 v2, s[44:47], s49 offen {flags} lds")
    A(f"s_add_u32 s49, s49, {step}")
    if pace: A(f"s_waitcnt vmcnt({pace-1})")
    A("s_cmp_lt_u32 s50, s51")
    A(f"s_cbranch_scc1 {l}")
    g.lab(e)

VW, VA = 40, 104

def srd(g, d, base, nbytes):
    A = g.A
    A(f"s_mov_b32 s{d}, s{base}")
    A(f"s_mov_b32 s{d+1}, s{base+1}")
    A(f"s_mov_b32 s{d+2}, {nbytes}")
    A(f"s_mov_b32 s{d+3}, 0x20000")

def tr64_addr(g):
    A = g.A
    A("v_lshrrev_b32 v2, 2, v1")
    A("v_bfe_u32 v3, v1, 1, 1")
    A("s_lshl_b32 s49, s5, 1")
    A("v_or_b32 v3, s49, v3")
    A("v_and_b32 v10, 6, v2")
    A("v_xor_b32 v3, v3, v10")
    A("v_lshlrev_b32 v2, 7, v2")
    A("v_lshl_add_u32 v2, v3, 4, v2")
    A("v_and_b32 v3, 1, v1")
    A("v_lshl_add_u32 v2, v3, 3, v2")
    A(f"v_add_u32 v2, {L_WT}, v2")
def tr_reads(g, nk, mstep, hstep, rot=False):
    A = g.A
    for m in range(nk):
        if rot and m % 4 == 0:
            A(f"s_add_u32 s49, s5, {m//4}"); A("s_and_b32 s49, s49, 3"); A(f"s_mul_i32 s49, s49, {4*mstep}")
            A("v_add_u32 v3, s49, v2")
        for h in range(2):
            if rot: A(f"ds_read_b64_tr_b16 {vr(VW+4*m+2*h,2)}, v3 offset:{(m%4)*mstep+h*hstep}")
            else: A(f"ds_read_b64_tr_b16 {vr(VW+4*m+2*h,2)}, v2 offset:{m*mstep+h*hstep}")
        if m >= 5: A("s_waitcnt lgkmcnt(10)")
    A("s_waitcnt lgkmcnt(0)")
def tr_tile64(g):
    tr64_addr(g)
    tr_reads(g, 16, 4096, 2048)
def gemv_fused(g, vaddr, D):
    A = g.A
    def rd(m):
        for h in range(2):
            A(f"ds_read_b64_tr_b16 {vr(VW+4*m+2*h,2)}, v2 offset:{m*4096+h*2048}")
        A(f"ds_read_b128 {vr(VA+4*m,4)}, v{vaddr} offset:{64*m}")
    for m in range(5): rd(m)
    for m in range(16):
        A(f"s_waitcnt lgkmcnt({3*(min(m+5,16)-m-1)})")
        c = "0" if m == 0 else vr(D, 4)
        A(f"v_mfma_f32_16x16x32_bf16 {vr(D,4)}, {vr(VW+4*m,4)}, {vr(VA+4*m,4)}, {c}")
        if m + 5 < 16: rd(m + 5)
    A("s_nop 7")

def batch_reduce2(g, va, vb, ta, tb):
    A = g.A
    A("s_nop 0")
    for m in ("quad_perm:[1,0,3,2]", "quad_perm:[2,3,0,1]", "row_ror:8"):
        A(f"v_add_f32_dpp v{va}, v{va}, v{va} {m} row_mask:0xf bank_mask:0xf")
        A(f"v_add_f32_dpp v{vb}, v{vb}, v{vb} {m} row_mask:0xf bank_mask:0xf")
        A("s_nop 0")
    for sw in ("v_permlane16_swap_b32", "v_permlane32_swap_b32"):
        A(f"v_mov_b32 v{ta}, v{va}")
        A(f"v_mov_b32 v{tb}, v{vb}")
        A("s_nop 0")
        A(f"{sw} v{ta}, v{va}")
        A(f"{sw} v{tb}, v{vb}")
        A(f"v_add_f32 v{va}, v{va}, v{ta}")
        A(f"v_add_f32 v{vb}, v{vb}, v{tb}")

def ln_partial(g, x):
    A = g.A
    A(f"v_add_f32 v8, v{x}, v{x+1}"); A(f"v_mul_f32 v9, v{x}, v{x}")
    A(f"v_add_f32 v10, v{x+2}, v{x+3}"); A(f"v_mul_f32 v11, v{x+2}, v{x+2}")
    A(f"v_fmac_f32 v9, v{x+1}, v{x+1}"); A(f"v_fmac_f32 v11, v{x+3}, v{x+3}")
    A("v_add_f32 v8, v8, v10"); A("v_add_f32 v9, v9, v11")
    batch_reduce2(g, 8, 9, 10, 11)
    A("ds_write_b64 v5, v[8:9]")
def ln_apply(g, x, t):
    A = g.A
    A(f"ds_read_b128 {vr(t,4)}, v6")
    A(f"ds_read_b128 {vr(t+4,4)}, v6 offset:16")
    A("s_waitcnt lgkmcnt(0)")
    A(f"v_pk_add_f32 {vr(t,2)}, {vr(t,2)}, {vr(t+2,2)}")
    A(f"v_pk_add_f32 {vr(t+4,2)}, {vr(t+4,2)}, {vr(t+6,2)}")
    A(f"v_pk_add_f32 {vr(t,2)}, {vr(t,2)}, {vr(t+4,2)}")
    A(f"v_mul_f32 v8, 0x{f2u(1/512):08x}, v{t}")
    A(f"v_mul_f32 v9, 0x{f2u(1/512):08x}, v{t+1}")
    A("v_fma_f32 v9, -v8, v8, v9")
    rnd(g, 8)
    A("v_max_f32 v9, 0, v9")
    rnd(g, 9)
    for i in range(2): A(f"v_sub_f32 v{x+i}, v{x+i}, v8")
    A(f"v_add_f32 v9, 0x{EPS:08x}, v9")
    for i in range(2, 4): A(f"v_sub_f32 v{x+i}, v{x+i}, v8")
    rnd(g, 9)
    rnd(g, x)
    A("v_sqrt_f32 v9, v9")
    rnd(g, x+1)
    rnd(g, 9)
    rnd(g, x+2)
    A("v_rcp_f32 v9, v9")
    rnd(g, x+3)
    for i in range(4): A(f"v_mul_f32 v{x+i}, v{x+i}, v9")
    for i in range(4): rnd(g, x+i)

def act_addr(g, v, base, bstride):
    A = g.A
    A(f"v_and_b32 v{v}, 1, v1")
    A(f"v_mul_u32_u24 v{v}, {bstride}, v{v}")
    A(f"v_lshrrev_b32 v3, 4, v1")
    A(f"v_lshl_add_u32 v{v}, v3, 4, v{v}")
    if base: A(f"v_add_u32 v{v}, {base}, v{v}")

def gemv(g, nk, vaddr, D):
    A = g.A
    first = min(nk, 12)
    for m in range(first):
        A(f"ds_read_b128 {vr(VA+4*m,4)}, v{vaddr} offset:{64*m}")
    issued = first
    for m in range(nk):
        A(f"s_waitcnt lgkmcnt({issued-m-1})")
        c = "0" if m == 0 else vr(D, 4)
        A(f"v_mfma_f32_16x16x32_bf16 {vr(D,4)}, {vr(VW+4*m,4)}, {vr(VA+4*m,4)}, {c}")
        if issued < nk:
            A(f"ds_read_b128 {vr(VA+4*issued,4)}, v{vaddr} offset:{64*issued}")
            issued += 1
    A("s_nop 7")

def guard(g, r):
    g.A(f"v_min_u32 v{r}, s72, v{r}")

def unpack2(g, d, s):
    g.A(f"v_lshlrev_b32 v{d}, 16, v{s}")
    g.A(f"v_and_b32 v{d+1}, s73, v{s}")
def unpack4(g, d, s, step=1):
    unpack2(g, d, s); unpack2(g, d+2, s+step)

def silu4(g, x, t):
    A = g.A
    for i in range(4): A(f"v_mul_f32 v{t+i}, 0x{LOG2E ^ 0x80000000:08x}, v{x+i}")
    for i in range(4): A(f"v_exp_f32 v{t+i}, v{t+i}")
    A("s_nop 0")
    for i in range(4): A(f"v_add_f32 v{t+i}, 1.0, v{t+i}")
    for i in range(4): A(f"v_rcp_f32 v{t+i}, v{t+i}")
    A("s_nop 0")
    for i in range(4): A(f"v_mul_f32 v{x+i}, v{x+i}, v{t+i}")

EX8 = ["s_mov_b32 exec_lo, 0x00030003", "s_mov_b32 exec_hi, 0x00030003"]

def gen(opts):
    g = G(opts); A = g.A
    D = opts.get("D", 3); NS = 36; NO = 8; NL = opts.get("NL", 8)
    LDS_BYTES = L_VX + 8192 * NL
    cost = dict(COST)
    for k in list(cost):
        if "c" + k in opts: cost[k] = opts["c" + k]
    RM = role_map(opts.get("rmode", 4), cost)
    opts["_RM"] = RM
    if opts.get("even"): cost = {k: 0 for k in cost}
    AS = opts.get("as", 40); ASC = [0] * 256
    if AS:
        for x in range(8):
            slow = [(r, t) for w, (r, t) in enumerate(RM) if w % 8 == x and cls(r, t)[-1] == "3" and r != C_F2]
            help_ = [w for w in range(x, 256, 8) if RM[w][0] == C_F2] + [w for w in range(x, 256, 8) if RM[w][0] == C_F1]
            for i, (r, t) in enumerate(sorted(slow, reverse=True)):
                for p in range(2): ASC[help_[2*i+p]] = p | ((t >> 3) << 1) | ({C_Q: 1, C_WO: 2}.get(r, 3) << 4)
    SP = split_table(RM, [cost[cls(*RM[w])] + (opts.get("asc", 4 * AS) if ASC[w] else 0) for w in range(256)],
                     {0: 0, 1: (8, 4), 2: (8, 0), 3: (4, 0)}[opts.get("nq", 3)])
    free = lambda w: RM[w][0] in (C_NONE, C_MODA, C_MODB, C_Q)
    RK = [sum(1 for v in range(w % 8, w, 8) if free(v)) & 15 if free(w) else ASC[w] for w in range(256)]
    opts.setdefault("wburst", 0); opts.setdefault("wd", 5); opts.setdefault("rot2", 9)
    XD = opts.get("xd", 0)
    SKIP = opts.get("skip", 0)
    WFL = opts.get("wflags", "nt").replace("_", " ")
    hdr = open(opts["ref"]).read().split("; Override launch")[0]
    g.L.append(hdr.rstrip("\n"))
    g.L.append(""";
;    answers faster) and the sizes of the key ranges only affect speed.""")
    g.L.append(f"; @launch grid=(256,1,1) block=(768,1,1) lds={LDS_BYTES}")
    g.L.append('.amdgcn_target "amdgcn-amd-amdhsa--gfx950"\n.text')
    g.L.append(f".globl {KNAME}\n.p2align 8\n.type {KNAME},@function\n{KNAME}:")
    A("s_cmpk_ge_u32 s2, 256")
    A("s_cbranch_scc1 L_end")
    A("s_load_dwordx2 s[44:45], s[0:1], 8")
    g.stamp(0)
    A("v_readfirstlane_b32 s5, v0")
    A("s_and_b32 s6, s2, 63")
    A("s_lshr_b32 s7, s2, 6")
    A("s_lshr_b32 s5, s5, 6")
    A("v_and_b32 v1, 63, v0")
    A("s_cmp_lt_u32 s5, 4")
    A("s_cbranch_scc1 L_helper")

    RB = 24
    def slot(j): return RB + 4 * j
    ROTM = opts.get("rot", 5)
    if opts.get("cp2"):
        A(f"s_cmp_ge_u32 s2, {8*opts['cp2']}"); A("s_cbranch_scc1 L_nop2")
        A("s_getpc_b64 s[56:57]")
        g.lab("L_pc0")
        A("v_subrev_u32 v3, 256, v0")
        A("v_lshlrev_b32 v3, 6, v3")
        A("v_min_u32 v3, L_gtab-L_pc0, v3")
        A("global_load_dword v3, v3, s[56:57]")
        g.lab("L_nop2")
    PAIR = opts.get("pair", 1)
    A("s_lshl_b32 s10, s6, 22")
    if PAIR:
        A("s_lshl_b32 s11, s5, 9")
        A("s_add_u32 s11, s11, s10")
        A(f"s_add_u32 s11, s11, {0x300000-4*512}")
        A("v_lshrrev_b32 v3, 5, v1")
        A("v_lshl_add_u32 v2, v1, 4, s11")
        A(f"v_mul_u32_u24 v3, {32768*PAIR-512}, v3")
        if opts.get("rot2"): A(f"s_mul_i32 s12, s2, {opts['rot2']}"); A("s_lshr_b32 s12, s12, 3")
        else: A(f"s_mul_i32 s12, s6, {ROTM}")
        A("s_and_b32 s12, s12, 15")
        A("s_mul_i32 s58, s7, 28")
        A("v_add_u32 v2, v2, v3")
        A("s_add_u32 s12, s12, s58")
        A(f"s_and_b32 s13, s12, {-8*PAIR}"); A("s_add_u32 s12, s12, s13"); A("s_lshl_b32 s12, s12, 12")
        A("s_lshl_b32 s46, 1, 28"); A("s_lshl_b32 s47, 1, 17")
        A(f"s_mov_b32 s19, {0x8000*PAIR+0x1000}")
    else:
        A(f"s_mul_i32 s58, s7, {224*1024}")
        A(f"s_add_u32 s11, s10, {0x300000-4*1024}")
        A("v_lshl_add_u32 v2, v0, 4, s11")
        A("s_lshl_b32 s46, 1, 28"); A("s_lshl_b32 s47, 1, 17")
        A(f"s_mul_i32 s12, s6, {ROTM}"); A("s_and_b32 s12, s12, 15"); A("s_lshl_b32 s12, s12, 13")
        A("s_add_u32 s12, s12, s58")
    def nextrow(r):
        if PAIR: A(f"s_add_u32 s{r}, s{r}, s19"); A(f"s_bitset0_b32 s{r}, {14+PAIR}")
        else: A(f"s_addk_i32 s{r}, 0x2000")
    A("s_waitcnt lgkmcnt(0)")
    def sched(txt):
        out = []
        for part in str(txt).split(","):
            p, _, u = part.partition(".")
            out.append(([int(c) for c in p], int(u) if u else 999))
        return lambda j: next(p[j % len(p)] for p, u in out if j < u)
    SCH = sched(opts.get("sch", D)); SCE = sched(opts.get("sce", "332")); XM = opts.get("xm", 0x55)
    SCL = sched(opts.get("scl", 1)); SCM = sched(opts.get("scm", opts.get("scl", 1)))
    EB = opts.get("eb", 1)
    D0 = opts.get("D0", 3); JB = NO - 1 + opts.get("jb", D0)
    step = [D0]
    PC = opts.get("pc", 0); PK = opts.get("pk", 5); PW = opts.get("pw", 8) * PC; mstep = [None]; lds0 = ["v4", 0]; mlen = [0]; marks = [False]
    def throttle(opt=None):
        j = step[0]; step[0] += 1
        d = SCH(j); e = SCE(j)
        m = -1
        if PC:
            l = g.uniq("pa")
            A("s_add_u32 s18, s18, 1")
            if marks[0]:
                A("s_cmp_lg_u32 s18, s17"); A(f"s_cbranch_scc1 {l}")
                A("v_mov_b32 v19, s25"); A(f"v_mov_b32 v23, s{ST}")
                A("s_mov_b64 exec, 1")
                A("global_store_dword v19, v23, s[42:43] sc1")
                A("s_mov_b64 exec, -1")
                g.lab(l)
            if opt != "o" and mstep[0] is not None:
                m = mstep[0]; mstep[0] += 1
                if m % PK == (D + 2) % PK and m >= D + 2:
                    A("s_waitcnt lgkmcnt(0)")
                    A("v_readfirstlane_b32 s68, v17")
        A(f"s_waitcnt vmcnt({max(d, e, SCL(j), SCM(j))-1})")
        assert max(SCL(j), SCM(j)) <= D
        if m >= 0:
            if m % PK == D % PK and m >= D and m + 2 < mlen[0]:
                l = g.uniq("pe")
                A("s_cmp_lg_u32 s5, 5"); A(f"s_cbranch_scc1 {l}")
                A(f"v_cmp_eq_u32 vcc, s{ST}, v19")
                A(f"s_and_b32 s16, vcc_lo, {(1 << PW) - 1}")
                A("s_bcnt1_i32_b32 s16, s16")
                A(f"s_cmp_lt_u32 s16, {opts.get('pth', PW // 2)}"); A("s_cselect_b32 s16, 1, 0")
                A("v_mov_b32 v19, s16")
                A(f"ds_write_b32 {lds0[0]}, v19 offset:{L_MD - lds0[1]}")
                g.lab(l)
            if m % PK == (D + 1) % PK and m >= D + 1 and m + 1 < mlen[0]:
                A(f"ds_read_b32 v17, {lds0[0]} offset:{L_MD - lds0[1]}")
            if m % PK == 0 and m + D + 2 < mlen[0]:
                l = g.uniq("pr")
                A("s_cmp_lg_u32 s5, 5"); A(f"s_cbranch_scc1 {l}")
                A(f"s_mul_i32 s16, s18, {128*PC}"); A(f"s_add_u32 s16, s16, {WS_PGS - 128 * (PC * opts.get('pd', 2) + PW // 2)}")
                A("v_lshl_add_u32 v23, v1, 7, s16")
                A(f"s_mov_b64 exec, {(1 << PW) - 1}")
                A("global_load_dword v19, v23, s[42:43] sc1")
                A("s_mov_b64 exec, -1")
                g.lab(l)
        assert max(d, e) <= D
        if opts.get("tau"):
            l = g.uniq("ta")
            A("s_waitcnt lgkmcnt(0)")
            A("s_lshl_b32 s16, s16, 3"); A("s_sub_u32 s16, s16, s18"); A(f"s_add_u32 s18, s18, {opts['tau']*8//10}")
            A("s_cmp_ge_i32 s16, 0"); A(f"s_cbranch_scc1 {l}")
            A(f"s_waitcnt vmcnt({opts.get('td', 2)-1})")
            g.lab(l)
            A("s_memrealtime s[16:17]")
        if "scl" in opts:
            ds = [d, e, SCL(j), SCM(j)]; l = g.uniq("th")
            for v in sorted(set(ds), reverse=True)[1:]:
                m = sum(1 << c for c in range(4) if ds[c] <= v)
                A(f"s_bitcmp0_b32 {m}, s68")
                A(f"s_cbranch_scc1 {l}")
                A(f"s_waitcnt vmcnt({v-1})")
            g.lab(l)
        elif e != d:
            l = g.uniq("th")
            A("s_bitcmp0_b32 s68, 0")
            A(f"s_cbranch_scc{1 if e < d else 0} {l}")
            A(f"s_waitcnt vmcnt({min(d, e)-1})")
            g.lab(l)
    def issue(t, i, lds=None):
        if i < NO:
            A(f"buffer_load_dwordx4 {vr(slot(i),4)}, v{0 if PAIR else 2}, s[{44+4*t}:{47+4*t}], s13 offen nt")
            nextrow(13)
            return
        if lds is not None:
            A(f"s_add_u32 m0, s15, {lds*1024}")
            A("s_nop 0")
            A(f"buffer_load_dwordx4 v2, s[{44+4*t}:{47+4*t}], s12 offen nt lds")
        else:
            A(f"buffer_load_dwordx4 {vr(slot(i),4)}, v2, s[{44+4*t}:{47+4*t}], s12 offen nt")
        if (t, i) == (1, NS - 1): return
        nextrow(12)
        if i >= NO + 12:
            A("s_cmp_ge_u32 s12, s59")
            A("s_cselect_b32 s12, s58, s12")
    def optional(i, body):
        l = g.uniq("opt")
        A(f"s_cmp_gt_u32 s60, {i}")
        A(f"s_cbranch_scc1 {l}")
        body()
        g.lab(l)
    def optionals(t, between=None):
        l = g.uniq("opts")
        A("s_mov_b32 s13, s61")
        for i in range(NO - 1, -1, -1):
            A(f"s_cmp_gt_u32 s60, {i}")
            A(f"s_cbranch_scc1 {l}")
            throttle("o"); issue(t, i)
        g.lab(l)
    g.lab("L_nb1")
    for j in range(NO, NS):
        if j >= NO + D0: throttle(j)
        issue(0, j)
        if j == NO + min(D0, 4) - 1:
            if opts.get("pst"): g.stamp(2)
            A("s_getpc_b64 s[56:57]")
            g.lab("L_pc")
            A("s_lshl_b32 s3, s2, 2")
            A("s_add_u32 s3, s3, L_table-L_pc")
            A("s_load_dword s14, s[56:57], s3")
            A("s_load_dwordx2 s[48:49], s[0:1], 16")
            A("s_load_dwordx4 s[20:23], s[0:1], 24")
            A("s_load_dwordx2 s[28:29], s[0:1], 80")
            A("s_load_dwordx2 s[42:43], s[0:1], 104")
            if opts.get("tau"):
                A("s_memrealtime s[16:17]"); A("s_waitcnt lgkmcnt(0)")
                A("s_lshl_b32 s18, s16, 3"); A(f"s_add_u32 s18, s18, {(opts.get('toff', 0)*8//10) & 0xffffffff}")
            if PC:
                A("s_mov_b32 s68, 0"); A("s_mov_b32 s18, 0")
            elif "sel" in opts: A(f"s_lshr_b32 s68, s5, {opts['sel']}")
            else: A("s_getreg_b32 s68, hwreg(HW_REG_XCC_ID, 0, 3)"); A(f"s_lshr_b32 s68, {XM}, s68")
        if j == (NO + D0 - 1 if EB else JB): A("s_barrier")
        if j == JB:
            A("s_sub_u32 s9, s5, 4")
            if opts.get("yprio"):
                A("s_cmp_lt_u32 s5, 8"); A("s_cbranch_scc1 L_nyp"); A(f"s_setprio {opts['yprio']}"); g.lab("L_nyp")
            A("s_mov_b64 s[50:51], s[46:47]")
            A("s_mov_b32 s52, 0xcccccccc"); A("s_mov_b32 s53, 0xcccccccc")
            A("s_mov_b32 s54, 0xaaaaaaaa"); A("s_mov_b32 s55, 0xaaaaaaaa")
            A(f"s_mul_i32 s15, s9, {NL*1024}")
            A(f"s_add_u32 s15, s15, {L_VX}")
            if PAIR:
                A("s_add_u32 s59, s58, 28")
                for r in (58, 59): A(f"s_and_b32 s13, s{r}, {-8*PAIR}"); A(f"s_add_u32 s{r}, s{r}, s13"); A(f"s_lshl_b32 s{r}, s{r}, 12")
                A("s_lshl_b32 s13, s9, 9")
                A("v_subrev_u32 v0, s13, v2")
            else: A(f"s_add_u32 s59, s58, {28*8192}")
            A("v_mov_b32 v4, 0")
            A("v_lshrrev_b32 v5, 3, v1")
            A("v_and_b32 v6, 6, v5")
            A("v_xor_b32 v6, v6, v1")
            A("v_and_b32 v6, 7, v6")
            A("s_lshl_b32 s33, s9, 6")
            A("s_movk_i32 s26, 6144"); A(f"s_mov_b32 s30, {512*6144}"); A("s_mov_b32 s31, s47")
            A("s_lshl_b32 s34, s9, 13"); A(f"s_add_u32 s34, s34, {L_WT}"); A("s_add_u32 s35, s34, 8192")
            A("s_and_b32 s36, s2, 7"); A("s_lshl_b32 s36, s36, 1"); A("s_and_b32 s37, s9, 1"); A("s_add_u32 s36, s36, s37")
            A("s_lshr_b32 s37, s9, 1"); A("s_lshl_b32 s37, s37, 4"); A("s_add_u32 s36, s36, s37"); A("s_lshl_b32 s36, s36, 6")
            A("s_waitcnt lgkmcnt(0)")
            if PC: A(f"s_load_dword s{ST}, s[42:43], {WS_E}")
            A("s_and_b32 s27, s14, 7")
            A(f"s_cmp_eq_u32 s27, {C_Q}")
            A("s_cselect_b64 s[28:29], s[20:21], s[28:29]"); A("s_cselect_b32 s26, 0x2000, s26"); A("s_cselect_b32 s30, 0x400000, s30")
            A(f"s_cmp_eq_u32 s27, {C_WO}")
            A("s_cselect_b64 s[28:29], s[22:23], s[28:29]"); A("s_cselect_b32 s26, 0x400, s26"); A("s_cselect_b32 s30, 0x400000, s30")
            A("s_cselect_b32 s33, s36, s33")
            A(f"s_cselect_b32 s27, {C_MODB}, s27")
            if "scl" in opts:
                assert JB == NO + D0 - 1
                A("s_and_b32 s68, s68, 1")
                A(f"s_cmp_lt_u32 s27, {C_MODB}"); A("s_cselect_b32 s16, 2, 0"); A("s_or_b32 s68, s68, s16")
            A("v_mul_u32_u24 v5, s26, v5")
            A("v_lshl_add_u32 v5, v6, 4, v5")
            A("v_mov_b32 v6, 1")
            A("s_mul_i32 s33, s33, s26")
            A("s_bfe_u32 s32, s14, 0x60003"); A("s_lshl_b32 s32, s32, 7"); A("s_add_u32 s33, s33, s32")
            A("s_lshl_b32 s26, s26, 3")
            if opts.get("wm"):
                A("s_mov_b32 s24, 0")
                A("s_and_b32 s16, s14, 7")
                A(f"s_cmp_eq_u32 s16, {C_Q}"); A("s_cselect_b32 s17, 13, 0"); A(f"s_cselect_b32 s24, {(2*8192) ^ (14*8192)}, s24"); A("s_cselect_b32 s26, 0x4000, s26")
                A(f"s_cmp_eq_u32 s16, {C_WO}"); A("s_cselect_b32 s17, 10, s17"); A("s_cselect_b32 s26, 0x800, s26")
                A("s_cbranch_scc0 L_wm1")
                A("s_and_b32 s16, s9, 1"); A(f"s_mul_i32 s16, s16, {48*1024}"); A("s_sub_u32 s33, s33, s16")
                g.lab("L_wm1")
                A("s_cmp_eq_u32 s17, 0"); A("s_cbranch_scc1 L_wm2")
                A("v_and_b32 v5, 0x70, v5")
                A("v_bfe_u32 v7, v1, 3, 1"); A("v_lshlrev_b32 v7, s17, v7"); A("v_add_u32 v5, v5, v7")
                A("v_lshrrev_b32 v7, 4, v1"); A("v_lshl_add_u32 v5, v7, 15, v5")
                g.lab("L_wm2")
        if PC and j == JB + 3:
            A("s_waitcnt lgkmcnt(0)")
            A(f"s_mul_i32 s{ST}, s{ST}, 0x9e3779b1"); A(f"s_add_u32 s{ST}, s{ST}, 0x7f4a7c15")
            A(f"s_lshr_b32 s25, s2, {2 if PC == 1 else 1}"); A(f"s_add_u32 s25, s25, {12*PC}")
            A(f"s_lshr_b32 s17, s25, {PC-1}")
            A("s_lshl_b32 s25, s25, 7"); A(f"s_add_u32 s25, s25, {WS_PGS}")
            A("s_lshr_b32 s16, s2, 3"); A("s_xor_b32 s16, s16, s2"); A(f"s_and_b32 s16, s16, {3 if PC == 1 else 1}")
            A("s_cselect_b32 s17, -1, s17")
            A("s_cmp_eq_u32 s5, 6"); A("s_cselect_b32 s17, s17, -1")
            marks[0] = True
        if PC and j == opts.get("p0", 22): mstep[0] = 0; mlen[0] = NS - 1 - j + NL
        WI = opts.get("wi", 0); WN = opts.get("wn", 1)
        if WI:
            last = JB + WI * (8 // WN - 1)
            if JB <= j <= last and (j - JB) % WI == 0:
                e = g.uniq("we")
                A(f"s_cmp_lt_u32 s27, {C_MODB}"); A(f"s_cbranch_scc1 {e}")
                for _ in range(WN):
                    A("s_mov_b32 m0, s34")
                    throttle(); step[0] -= 1
                    if not opts.get("nodma"): A(f"buffer_load_dwordx4 v5, s[28:31], s33 offen {WFL} lds")
                    A("s_add_u32 s33, s33, s26")
                    A("s_addk_i32 s34, 1024")
                g.lab(e)
            if j == last + D:
                e = g.uniq("ws")
                A(f"s_cmp_lt_u32 s27, {C_MODB}"); A(f"s_cbranch_scc1 {e}")
                A("s_mov_b64 exec, 1")
                A(f"ds_add_u32 v4, v6 offset:{L_CNT}")
                A("s_mov_b64 exec, -1")
                g.lab(e)
        JW = opts.get("JW", JB)
        for pos, cond in () if WI else ((JB, f"s_cmp_lt_u32 s27, {C_MODA if JW != JB else C_MODB}"), (JW, f"s_cmp_lg_u32 s27, {C_MODB}"))[:1 + (JW != JB)]:
            if j == pos:
                l = g.uniq("wl"); e = g.uniq("we")
                A(cond); A(f"s_cbranch_scc1 {e}")
                g.lab(l)
                A("s_mov_b32 m0, s34")
                if opts.get("wburst"):
                    l2 = g.uniq("wb")
                    A(f"s_cmp_ge_u32 s27, {opts['wburst']}" if opts['wburst'] != 1 else f"s_cmp_eq_u32 s27, {C_MODA}"); A(f"s_cbranch_scc1 {l2}")
                if opts.get("wd"):
                    A(f"s_waitcnt vmcnt({opts['wd']-1})")
                    if opts.get("wd3", 9) < opts["wd"]:
                        l3 = g.uniq("w3")
                        A("s_and_b32 s16, s32, 0x380"); A("s_cmpk_lg_u32 s16, 0x180"); A(f"s_cbranch_scc1 {l3}")
                        A(f"s_waitcnt vmcnt({opts['wd3']-1})")
                        g.lab(l3)
                else: throttle("o"); step[0] -= 1
                if opts.get("wburst"): g.lab(l2)
                if not opts.get("nodma"): A(f"buffer_load_dwordx4 v5, s[28:31], s33 offen {WFL} lds")
                A("s_add_u32 s33, s33, s26")
                if opts.get("wm"): A("s_xor_b32 s26, s26, s24")
                A("s_addk_i32 s34, 1024")
                A("s_cmp_lt_u32 s34, s35"); A(f"s_cbranch_scc1 {l}")
                g.lab(e)
            if j == pos + D:
                e = g.uniq("ws")
                A(cond); A(f"s_cbranch_scc1 {e}")
                A("s_mov_b64 exec, 1")
                A(f"ds_add_u32 v4, v6 offset:{L_CNT}")
                A("s_mov_b64 exec, -1")
                g.lab(e)
        if j == opts.get("JO", 30):
            A("s_bfe_u32 s61, s14, 0xa0010")
            if PAIR:
                A("s_add_u32 s61, s61, s9"); A(f"s_and_b32 s13, s61, {-64*PAIR}"); A("s_add_u32 s61, s61, s13"); A("s_lshl_b32 s61, s61, 9")
            else: A("s_lshl_b32 s61, s61, 10")
            A("s_bfe_u32 s60, s14, 0x70009")
            A("s_sub_u32 s60, s9, s60"); A("s_add_u32 s60, s60, 64"); A("s_lshr_b32 s60, s60, 3")
            A("v_bfrev_b32 v3, v1")
            A("v_lshrrev_b32 v3, 28, v3")
            A("v_cmp_gt_u32 s[66:67], s60, v3")
            A("v_and_b32 v3, 15, v1")
            A("v_lshlrev_b32 v3, 4, v3")
            optionals(0)
        if j == opts.get("JQ", 26): A(f"ds_write_b32 v4, v4 offset:{L_PQ}")
        if j == opts.get("JG", 38): A(f"ds_write_b32 v4, v4 offset:{L_PG}")
    for k in range(NL):
        throttle(NS + k)
        issue(1, NO + k, lds=k)
        if NS + k == opts.get("JG", 38): A(f"ds_write_b32 v4, v4 offset:{L_PG}")
    mstep[0] = None
    g.stamp(1)
    T, X = 8, 16
    NOCOMP = opts.get("nocomp", 0)
    if not NOCOMP:
        poll_lds(g, [f"ds_read_b128 v[4:7], v3 offset:{L_QV}"], [4, 5, 6, 7], 8, 2)
    if not opts.get("pst"): g.stamp(2)
    A(f"s_waitcnt vmcnt({NL})")
    nxt = NO + NL
    for G_ in (1, 2, 3, 4, 0):
        ne = 4 if G_ == 4 else 8
        if not NOCOMP:
            for tt in range(4):
                for e in range(ne):
                    c = "0" if tt == 0 else f"v{T+e}"
                    A(f"v_dot2_f32_bf16 v{T+e}, v{slot(8*G_+e)+tt}, v{4+tt}, {c}")
        if str(G_) in str(opts.get("qki", 30)) and nxt < 8 * ((G_ or 4) + 1):
            if NOCOMP or opts.get("qkt"): throttle(99)
            issue(1, nxt); nxt += 1
        if NOCOMP: continue
        for e in range(0, ne, 2):
            A(f"v_add_f32_dpp v{T+e}, v{T+e}, v{T+e} row_ror:8 row_mask:0xf bank_mask:0x3")
            A(f"v_add_f32_dpp v{T+e}, v{T+e+1}, v{T+e+1} row_ror:8 row_mask:0xf bank_mask:0xc")
        if ne == 4: A("s_nop 0")
        for h in range(ne // 4):
            d = 3 if G_ == 4 else X + 2 * G_ + h
            A(f"v_add_f32_dpp v{d}, v{T+4*h}, v{T+4*h} row_shl:4 row_mask:0xf bank_mask:0x5")
            A(f"v_add_f32_dpp v{d}, v{T+4*h+2}, v{T+4*h+2} row_shr:4 row_mask:0xf bank_mask:0xa")
    PR = [4, 6, 20]
    if NOCOMP:
        for n in range(4): A(f"v_mov_b32 v{X+n}, 1.0")
    else:
        A("v_add_f32_dpp v3, v3, v3 quad_perm:[2,3,0,1] row_mask:0xf bank_mask:0xf")
        for n in (2, 3, 4, 5, 6, 7, 0, 1):
            A(f"v_add_f32_dpp v{X+n}, v{X+n}, v{X+n} quad_perm:[2,3,0,1] row_mask:0xf bank_mask:0xf")
        for n in range(4):
            A(f"v_cndmask_b32 v{T+n}, v{X+2*n}, v{X+2*n+1}, s[52:53]")
        A(f"v_add_f32_dpp v{X+2}, v3, v3 quad_perm:[1,0,3,2] row_mask:0xf bank_mask:0xf")
        for n in range(4):
            A(f"v_add_f32_dpp v{T+n}, v{T+n}, v{T+n} quad_perm:[1,0,3,2] row_mask:0xf bank_mask:0xf")
        for n in range(2):
            A(f"v_cndmask_b32 v{X+n}, v{T+2*n}, v{T+2*n+1}, s[54:55]")
        for n in range(3): rnd(g, X+n)
        for n in range(3): A(f"v_mul_f32 v{X+n}, 0x{SCALE:08x}, v{X+n}")
        for n in range(3): rnd(g, X+n)
        A(f"v_mov_b32 v{X+3}, 0xff800000")
        A("s_mov_b32 s52, 0xeeeeeeee"); A("s_mov_b32 s53, 0xeeeeeeee")
        A(f"v_cndmask_b32 v{X}, v{X}, v{X+3}, s[66:67]")
        A(f"v_cndmask_b32 v{X+2}, v{X+2}, v{X+3}, s[52:53]")
    A("s_lshl_b32 s11, s9, 10")
    A("v_lshl_add_u32 v3, v1, 4, s11")
    A(f"ds_write_b128 v3, v[{X}:{X+3}] offset:{L_SC}")
    g.stamp(3)
    while True:
        throttle(99); issue(1, nxt); nxt += 1
        if nxt - NO - NL >= D: break
    A("v_lshl_add_u32 v3, v1, 4, s15")
    for k in range(NL):
        A(f"ds_read_b128 {vr(slot(NO+k),4)}, v3 offset:{k*1024}")
    A(f"v_max3_f32 v22, v{X}, v{X+1}, v{X+2}")
    wave_allreduce(g, "v_max_f32", 22, 23)
    for n in range(3): A(f"v_sub_f32 v{X+n}, v{X+n}, v22")
    for n in range(3): A(f"v_mul_f32 v{X+n}, 0x{LOG2E:08x}, v{X+n}")
    for n in range(3): A(f"v_exp_f32 v{X+n}, v{X+n}")
    A("s_nop 0")
    for n in range(3):
        A(f"v_cvt_pk_bf16_f32 v{PR[n]}, v{X+n}, 0")
        A(f"v_cvt_pk_bf16_f32 v{PR[n]+1}, 0, v{X+n}")
    for e in range(8): A(f"v_mov_b32 v{T+e}, 0")
    A("s_lshl_b32 s11, s9, 9")
    A("v_and_b32 v3, 15, v1")
    A("v_lshlrev_b32 v3, 5, v3")
    A("v_lshrrev_b32 v16, 4, v1")
    A("v_lshl_add_u32 v3, v16, 3, v3")
    A("v_add_u32 v3, s11, v3")
    A(f"v_mov_b32 v16, {L_ML}")
    def pv(i):
        if NOCOMP: return
        c = ((i & 1) << 3) | (((i >> 1) & 1) << 2) | (((i >> 2) & 1) << 1) | ((i >> 3) & 1)
        pr = PR[i >> 4]
        for tt in range(4):
            for hf in range(2):
                A(f"v_dot2c_f32_bf16_dpp v{T+2*tt+hf}, v{pr+hf}, v{slot(i)+tt} row_newbcast:{c} row_mask:0xf bank_mask:0xf")
    def pvx(i):
        if i < NO: optional(i, lambda: pv(i))
        else: pv(i)
    A("s_waitcnt lgkmcnt(0)")
    per = opts.get("pvper", 3)
    BURST = opts.get("burst", 5)
    order = list(range(NO, nxt)); done = 0
    nm = lambda k: sum(1 for s_ in order[k+1:] if s_ >= NO)
    optionals(1)
    mstep[0] = 0; lds0[:] = ["v16", L_ML]; mlen[0] = NS - nxt - BURST
    order += list(range(NO - 1, -1, -1))
    rest = list(range(nxt, NS))
    for r, i in enumerate(rest):
        if len(rest) - r > BURST: throttle(99)
        ok = [k for k in range(done, len(order)) if nm(k) >= D - 1] if len(rest) - r > BURST else []
        issue(1, i); order.append(i)
        if i == opts.get("JS", 24): A(f"ds_write_b32 v16, v16 offset:{L_PS-L_ML}")
        for k in ok[:per]: pvx(order[k]); done += 1
    g.stamp(7)
    if not NOCOMP:
        poll_lds(g, ["ds_read_b32 v18, v16"], [18], 17, 2)
    g.stamp(4)
    A("v_sub_f32 v22, v22, v18")
    A(f"v_mul_f32 v22, 0x{LOG2E:08x}, v22")
    A("v_exp_f32 v22, v22")
    A(f"ds_read_b64 v[18:19], v16 offset:{L_MB-L_ML}")
    A("s_lshl_b32 s56, s6, 2"); A("s_add_u32 s56, s56, s7")
    A("s_lshl_b32 s57, s56, 9"); A(f"s_add_u32 s57, s57, {WS_OP}")
    A("v_lshl_add_u32 v2, v1, 3, s57")
    if XD:
        A("s_load_dwordx4 s[20:23], s[0:1], 48")
        A("s_lshr_b32 s36, s9, 2"); A("s_and_b32 s37, s9, 1"); A("s_bfe_u32 s38, s9, 0x10001")
        A("s_lshl_b32 s39, s36, 1"); A("s_or_b32 s39, s39, s37")
        A("v_lshrrev_b32 v23, 2, v1")
        A("v_mul_u32_u24 v23, 5504, v23")
        A("v_xor_b32 v17, s39, v1")
        A("v_and_b32 v17, 3, v17")
        A("v_lshl_add_u32 v23, v17, 4, v23")
        A("s_lshl_b32 s34, s39, 14"); A("s_lshl_b32 s35, s38, 13"); A("s_add_u32 s34, s34, s35"); A(f"s_add_u32 s34, s34, {L_WT}")
        A("s_add_u32 s35, s34, 8192")
        A("s_lshl_b32 s33, s38, 8"); A("s_add_u32 s33, s33, s37"); A("s_mul_i32 s33, s33, 2752")
        A("s_lshr_b32 s32, s32, 1"); A("s_add_u32 s33, s33, s32")
        A(f"s_mov_b32 s30, {512*2752}")
    A("v_and_b32 v17, 1, v1")
    A("v_lshlrev_b32 v17, 4, v17")
    A("v_lshlrev_b32 v1, 3, v1")
    A("v_mov_b32 v0, 1")
    A("s_movk_i32 s56, 0xff")
    A("s_waitcnt lgkmcnt(0)")
    A(f"v_readfirstlane_b32 s{SLOC}, v19")
    if XD:
        A("s_cmp_eq_u32 s36, 0")
        A("s_cselect_b64 s[28:29], s[20:21], s[22:23]")
    A("v_lshrrev_b32 v18, v17, v18")
    A("v_lshrrev_b32 v19, 8, v18")
    while done < NS:
        if nm(done) < D + BURST: A(f"s_waitcnt vmcnt({nm(done)})")
        pvx(order[done]); done += 1
    g.stamp(5); g.stamp(5, 2)
    A("s_nop 2")
    for j in range(4):
        A(f"v_permlane32_swap_b32 v{T+j}, v{T+j+4}")
    for j in range(4):
        A(f"v_add_f32 v{T+j}, v{T+j}, v{T+j+4}")
    A("s_nop 0")
    for j in range(2):
        A(f"v_permlane16_swap_b32 v{T+j}, v{T+j+2}")
    for j in range(2):
        A(f"v_add_f32 v{T+j}, v{T+j}, v{T+j+2}")
    for j in range(2):
        A(f"v_mul_f32 v{T+j}, v{T+j}, v22")
    A(f"ds_write_b64 v3, v[{T}:{T+1}] offset:{L_OP}")
    A("s_mov_b64 exec, 1")
    A(f"ds_add_rtn_u32 v17, v16, v0 offset:{L_CNT+4-L_ML}")
    A("s_mov_b64 exec, -1")
    PA = slot(NO)
    for i in range(8):
        A(f"ds_read_b64 {vr(PA+2*i,2)}, v1 offset:{L_OP+512*i}")
    for i in range(4):
        A(f"s_waitcnt lgkmcnt({6-2*i})")
        if i == 0: A("v_readfirstlane_b32 s57, v17")
        A(f"v_pk_add_f32 {vr(PA+4*i,2)}, {vr(PA+4*i,2)}, {vr(PA+4*i+2,2)}")
    A(f"v_pk_add_f32 {vr(PA,2)}, {vr(PA,2)}, {vr(PA+4,2)}")
    A(f"v_pk_add_f32 {vr(PA+8,2)}, {vr(PA+8,2)}, {vr(PA+12,2)}")
    A("s_cmp_lg_u32 s57, 7")
    A(f"v_pk_add_f32 {vr(PA,2)}, {vr(PA,2)}, {vr(PA+8,2)}")
    A(f"v_bfi_b32 v18, s56, v18, v{PA}")
    A(f"v_bfi_b32 v19, s56, v19, v{PA+1}")
    A("s_cbranch_scc1 L_send")
    if not opts.get("nohelp") in (1, 2) and not SKIP & 16: pub_local(g, "global_store_dwordx2 v2, v[18:19], s[42:43]")
    g.lab("L_send")
    if opts.get("stamps") in (1, 2): g.stamp(6)
    A("s_barrier")
    if XD:
        g.C("F1 workgroups: these waves stage the weight tile (wave = matrix, row half, row parity) while the helper waves gather")
        A(f"s_cmp_lg_u32 s27, {C_F1}"); A("s_cbranch_scc1 L_sfin")
        g.lab("L_xd")
        A("s_mov_b32 m0, s34")
        A("s_addk_i32 s34, 1024")
        if not opts.get("nodma"): A("buffer_load_dwordx4 v23, s[28:31], s33 offen lds")
        A(f"s_add_u32 s33, s33, {32*2752}")
        A("s_cmp_lt_u32 s34, s35"); A("s_cbranch_scc1 L_xd")
        A("s_mov_b64 exec, 1")
        A("s_waitcnt vmcnt(0)")
        A(f"ds_add_u32 v16, v0 offset:{L_CNT-L_ML}")
        A("s_mov_b64 exec, -1")
        g.lab("L_sfin")
    if opts.get("stamps") in (1, 2):
        A("s_lshl_b32 s3, s2, 7")
        A("s_lshl_b32 s4, s9, 2")
        A("s_add_u32 s4, s4, s3")
        A(f"s_add_u32 s4, s4, {WS_STAMP+96}")
        A("v_mov_b32 v2, s4")
        A("s_waitcnt lgkmcnt(0)")
        A("v_mov_b32 v3, s92")
        A("global_store_dword v2, v3, s[42:43]")
        A("s_cmp_lg_u32 s5, 4")
        A("s_cbranch_scc1 L_end")
        A(f"s_add_u32 s3, s3, {WS_STAMP+64}")
        A("v_mov_b32 v2, s3")
        A("s_waitcnt lgkmcnt(0)")
        for i in range(8):
            A(f"v_mov_b32 v3, s{80+2*i}")
            A(f"global_store_dword v2, v3, s[42:43] offset:{4*i}")
    A("s_endpgm")

    g.lab("L_helper")
    g.help = True
    if opts.get("nohelp") == 1: A("s_endpgm")
    def h_loads():
        A("s_getpc_b64 s[56:57]")
        g.lab("L_pc2")
        A("s_lshl_b32 s3, s2, 2")
        A("s_add_u32 s3, s3, L_table-L_pc2")
        A("s_load_dwordx16 s[16:31], s[0:1], 0")
        A("s_load_dword s14, s[56:57], s3")
        A("s_load_dwordx8 s[32:39], s[0:1], 64")
        A("s_load_dwordx4 s[40:43], s[0:1], 96")
        A("s_and_b32 s8, s2, 7")
        A("s_mov_b64 s[100:101], s[56:57]")
        if opts.get("cpf", 0):
            A(f"s_cmpk_lt_u32 s2, {256 - 8*opts.get('cpf', 1)}"); A("s_cbranch_scc1 L_nopf")
            A("s_sub_u32 s58, s56, L_pc2-L_nb1"); A("s_subb_u32 s59, s57, 0")
            A("v_lshlrev_b32 v2, 7, v0")
            A("v_min_u32 v2, L_end-L_nb1, v2")
            A("global_load_dword v167, v2, s[58:59]")
            g.lab("L_nopf")
        if opts.get("amp"): A("s_memrealtime s[78:79]")
        A("s_mov_b32 s72, 0xfffffffe")
        A("s_mov_b32 s73, 0xffff0000")
    def h_init():
        A("v_mov_b32 v4, -1"); A("v_mov_b32 v5, -1"); A("v_mov_b32 v6, -1"); A("v_mov_b32 v7, -1")
        A("v_lshlrev_b32 v2, 4, v0")
        A(f"ds_write_b128 v2, v[4:7] offset:{L_SC}")
        A(f"ds_write_b128 v2, v[4:7] offset:{L_SC+4096}")
        A("v_lshlrev_b32 v2, 2, v1")
        A(f"ds_write_b32 v2, v4 offset:{L_QV}")
        A("v_mov_b32 v38, 0")
        A(f"ds_write_b128 v38, v[4:7] offset:{L_ML}")
        A(f"ds_write_b128 v38, v[4:7] offset:{L_PQ}")
        A("v_mov_b32 v39, 0")
        A(f"ds_write_b64 v38, v[38:39] offset:{L_CNT}")
        A(f"ds_write_b32 v38, v38 offset:{L_MD}")
    if EB:
        h_init()
        A("s_waitcnt lgkmcnt(0)")
        A("s_barrier")
        h_loads()
    else:
        h_loads(); h_init()
    A(f"s_getreg_b32 s{SXCC}, hwreg(HW_REG_XCC_ID, 0, 4)")
    A("v_lshrrev_b32 v12, 3, v0")
    A("v_lshlrev_b32 v12, 5, v12")
    A("v_bfe_u32 v3, v1, 2, 1")
    A("v_lshl_add_u32 v12, v3, 10, v12")
    A("v_and_b32 v8, 3, v1")
    A("v_lshl_add_u32 v13, v8, 3, v12")
    A("v_and_b32 v12, 0xffffffdf, v12")
    A("v_lshl_add_u32 v12, v8, 4, v12")
    A("v_bfe_u32 v8, v1, 3, 1")
    A("v_lshl_add_u32 v12, v8, 3, v12")
    A("v_lshl_add_u32 v12, v3, 5, v12")
    A("s_waitcnt lgkmcnt(0)")
    if not EB: A("s_barrier")
    A(f"s_load_dword s{ST}, s[42:43], {WS_E}")
    if opts.get("tw"):
        A(f"s_cmpk_lt_u32 s2, {256 - 8*opts['tw']}"); A("s_cbranch_scc1 L_notw")
        A("v_lshlrev_b32 v2, 16, v1")
        A("s_cmp_eq_u32 s5, 0"); A("s_cselect_b64 s[58:59], s[36:37], s[22:23]"); A(f"s_cselect_b32 s60, {512*6144-4}, -1")
        A("s_cmp_eq_u32 s5, 2"); A("s_cselect_b64 s[58:59], s[24:25], s[58:59]")
        A("v_min_u32 v2, s60, v2")
        A("global_load_dword v167, v2, s[58:59]")
        g.lab("L_notw")
    A("s_and_b32 s13, s14, 7")
    A("s_bfe_u32 s61, s14, 0x60003")
    A(f"s_cmp_eq_u32 s13, {C_Q}"); A("s_cbranch_scc1 L_r_q")
    A(f"s_cmp_ge_u32 s13, {C_MODB}"); A("s_cbranch_scc1 L_r_moda")
    A(f"s_cmp_eq_u32 s13, {C_WO}"); A("s_cbranch_scc1 L_r_wo")
    if AS:
        g.C("some F1 / F2 workgroups pull the later rows of a slow-loading weight tile of their group into L2 (values unused)")
        A("s_lshr_b32 s48, s14, 30")
        A("s_cmp_eq_u32 s48, 0"); A("s_cbranch_scc1 L_noas")
        A("s_bfe_u32 s49, s14, 0x1001a"); A("s_lshl_b32 s49, s49, 2"); A("s_add_u32 s49, s49, s5")
        A("s_lshl_b32 s50, s49, 6")
        A("s_lshr_b32 s51, s49, 1"); A("s_lshl_b32 s51, s51, 4"); A("s_and_b32 s49, s49, 1"); A("s_add_u32 s51, s51, s49")
        A("s_lshl_b32 s49, s8, 1"); A("s_add_u32 s51, s51, s49"); A("s_lshl_b32 s51, s51, 6")
        A("s_movk_i32 s52, 6144"); A("s_mov_b64 s[54:55], s[36:37]")
        A("s_cmp_eq_u32 s48, 1"); A("s_cselect_b32 s52, 0x2000, s52"); A("s_cselect_b64 s[54:55], s[22:23], s[54:55]")
        A("s_cmp_eq_u32 s48, 2"); A("s_cselect_b32 s52, 0x400, s52"); A("s_cselect_b64 s[54:55], s[24:25], s[54:55]"); A("s_cselect_b32 s50, s51, s50")
        A("s_bfe_u32 s49, s14, 0x3001b"); A("s_lshl_b32 s49, s49, 10"); A("s_add_u32 s49, s49, 384")
        A(f"v_max_u32 v2, {64-AS}, v1")
        A("v_add_u32 v2, s50, v2")
        A("v_mul_u32_u24 v2, s52, v2")
        A("v_add_u32 v2, s49, v2")
        A("global_load_dword v167, v2, s[54:55]")
        g.lab("L_noas")
    A(f"s_cmp_eq_u32 s13, {C_F1}"); A("s_cbranch_scc1 L_r_f1")
    A(f"s_cmp_eq_u32 s13, {C_F2}"); A("s_cbranch_scc1 L_r_f2")
    A("s_branch L_r_none")

    def make_tag():
        A("s_waitcnt lgkmcnt(0)")
        A(f"s_mul_i32 s{ST}, s{ST}, 0x9e3779b1")
        A(f"s_add_u32 s{ST}, s{ST}, 0x7f4a7c15")
        A(f"s_add_u32 s{SXCC}, s{SXCC}, s{ST}")
    def line_out_addr(v, bsh=6, ush=7):
        A(f"v_and_b32 v{v}, 1, v1")
        A(f"v_lshlrev_b32 v{v}, {bsh}, v{v}")
        A("v_lshrrev_b32 v3, 4, v1")
        A(f"v_lshl_add_u32 v{v}, v3, 4, v{v}")
        A(f"s_lshl_b32 s49, s5, {ush}")
        A("s_add_u32 s49, s49, s58")
        A(f"v_add_u32 v{v}, s49, v{v}")
    def pack_tagged():
        A("v_cvt_pk_bf16_f32 v8, v8, v9")
        A("v_cvt_pk_bf16_f32 v10, v10, v11")
        A(f"v_mov_b32 v9, s{ST}")
        A(f"v_mov_b32 v11, s{ST}")
    def ln_addrs():
        A("v_bfe_u32 v6, v1, 2, 1")
        A("v_lshlrev_b32 v6, 5, v6")
        A(f"v_add_u32 v6, {L_RED}, v6")
        A("s_lshl_b32 s49, s5, 3")
        A("v_add_u32 v5, s49, v6")

    def mod_params():
        A("s_lshl_b32 s58, s61, 9")
        A(f"s_add_u32 s58, s58, {WS_MOD}")
    def mod_act():
        unpack4(g, 16, 14)
        silu4(g, 16, 20)
        A("v_cvt_pk_bf16_f32 v14, v16, v17")
        A("v_cvt_pk_bf16_f32 v15, v18, v19")
        A(f"ds_write_b64 v12, v[14:15] offset:{L_ACT}")
    def mod_finish():
        line_out_addr(13)
        act_addr(g, 14, L_ACT, ACT_BS)
        tr64_addr(g)
        A("s_waitcnt lgkmcnt(0)")
        hs_signal(g, 8, 9); hs_wait(g, 12, 9, 2)
        g.stamp(1)
        gemv_fused(g, 14, 8)
        pack_tagged()
        for x in EX8: A(x)
        if SKIP & 1:
            A(f"s_cmp_eq_u32 s13, {C_MODB}"); A("s_cbranch_scc1 L_sk1")
        if not SKIP & 32: A("global_store_dwordx4 v13, v[8:11], s[42:43] sc1")
        g.lab("L_sk1")
        A("s_mov_b64 exec, -1")
        g.stamp(2)

    g.lab("L_r_moda")
    mod_params()
    A("global_load_dwordx2 v[14:15], v13, s[34:35]")
    make_tag()
    A("s_waitcnt vmcnt(0)")
    mod_act()
    mod_finish()
    A("s_mov_b32 s60, 0")
    A("s_branch L_svc1")

    g.lab("L_r_q")
    A("s_lshl_b32 s58, s61, 9")
    A(f"s_add_u32 s58, s58, {WS_Q}")
    A("global_load_dwordx2 v[14:15], v13, s[16:17]")
    make_tag()
    A("s_waitcnt vmcnt(0)")
    ln_addrs()
    unpack4(g, 20, 14)
    ln_partial(g, 20)
    A("s_waitcnt lgkmcnt(0)")
    hs_signal(g, 8, 9); hs_wait(g, 12, 9, 4)
    ln_apply(g, 20, 24)
    tr_tile64(g)
    line_out_addr(13)
    act_addr(g, 14, L_ACT, ACT_BS)
    A("v_lshlrev_b32 v15, 4, v0")
    A(f"v_add_u32 v15, {WS_MOD}, v15")
    A("v_add_u32 v36, 0x1000, v15")
    poll_lds(g, [f"ds_read_b32 v8, v38 offset:{L_PQ}"], [8], 9, 8)
    g.stamp(1)
    A("s_mov_b64 s[64:65], -1"); A("s_mov_b64 s[66:67], -1")
    A("s_mov_b32 s70, 0")
    g.lab("L_q_p")
    A("s_mov_b64 exec, s[64:65]")
    A("global_load_dwordx4 v[16:19], v15, s[42:43] sc1")
    A("s_mov_b64 exec, s[66:67]")
    A("global_load_dwordx4 v[32:35], v36, s[42:43] sc1")
    A("s_mov_b64 exec, -1")
    A("s_waitcnt vmcnt(0)")
    A(f"v_cmp_ne_u32 s[64:65], s{ST}, v17"); A(f"v_cmp_ne_u32 s[68:69], s{ST}, v19"); A("s_or_b64 s[64:65], s[64:65], s[68:69]")
    A(f"v_cmp_ne_u32 s[66:67], s{ST}, v33"); A(f"v_cmp_ne_u32 s[68:69], s{ST}, v35"); A("s_or_b64 s[66:67], s[66:67], s[68:69]")
    A("s_or_b64 vcc, s[64:65], s[66:67]")
    if SKIP & 32: A("s_mov_b64 vcc, 0")
    spin_tail(g, "L_q_p", "L_q_ok", opts.get("msleep", 0))
    g.stamp(7)
    unpack4(g, 28, 32, 2)
    unpack4(g, 24, 16, 2)
    for i in range(4): A(f"v_add_f32 v{28+i}, 1.0, v{28+i}")
    for i in range(4): rnd(g, 28+i)
    for i in range(4): A(f"v_mul_f32 v{20+i}, v{20+i}, v{28+i}")
    for i in range(4): rnd(g, 20+i)
    for i in range(4): A(f"v_add_f32 v{20+i}, v{20+i}, v{24+i}")
    A("v_cvt_pk_bf16_f32 v16, v20, v21")
    A("v_cvt_pk_bf16_f32 v17, v22, v23")
    A(f"ds_write_b64 v12, v[16:17] offset:{L_ACT}")
    hs_signal(g, 8, 9); hs_wait(g, 16, 9, 0)
    gemv(g, 16, 14, 8)
    pack_tagged()
    guard(g, 8); guard(g, 10)
    for x in EX8: A(x)
    if not SKIP & 2: A("global_store_dwordx4 v13, v[8:11], s[42:43] " + opts.get("qf", "sc1").replace("_", ""))
    A("s_mov_b64 exec, -1")
    g.stamp(2)
    A("s_mov_b32 s60, 0")
    A("s_branch L_svc1")

    g.lab("L_r_wo")
    A("s_and_b32 s66, s2, 7")
    A("s_lshr_b32 s58, s66, 1"); A("s_lshl_b32 s58, s58, 14")
    A("s_and_b32 s49, s66, 1"); A("s_lshl_b32 s49, s49, 12"); A("s_add_u32 s58, s58, s49")
    A("s_lshl_b32 s49, s61, 9")
    A("s_add_u32 s58, s58, s49")
    A(f"s_add_u32 s58, s58, {WS_AP}")
    make_tag()
    g.C("wave 3 times two fresh lines on either memory side and votes which hand-off copy its die should read (speed only)")
    e = g.uniq("nr"); l = g.uniq("nrl")
    A("s_cmp_lg_u32 s5, 3"); A(f"s_cbranch_scc1 {e}")
    if SKIP & 4: A(f"s_branch {e}")
    A("s_lshl_b32 s49, s61, 14")
    A("s_lshl_b32 s50, s8, 10"); A("s_add_u32 s49, s49, s50"); A(f"s_add_u32 s49, s49, {WS_PRB}")
    A(f"s_add_u32 s50, s49, {opts.get('nprobe', 2)*128}")
    A("s_mov_b32 s54, -1"); A("s_mov_b32 s55, -1")
    g.lab(l)
    for c in range(2):
        A("s_memtime s[64:65]")
        A("s_waitcnt lgkmcnt(0)")
        A("s_load_dword s51, s[42:43], s49")
        A("s_waitcnt lgkmcnt(0)")
        A("s_memtime s[68:69]")
        A("s_waitcnt lgkmcnt(0)")
        A("s_sub_u32 s68, s68, s64")
        A(f"s_min_u32 s{54+c}, s{54+c}, s68")
        A("s_xor_b32 s49, s49, 0x2000")
    A("s_add_u32 s49, s49, 128")
    A("s_cmp_lt_u32 s49, s50"); A(f"s_cbranch_scc1 {l}")
    A("s_cmp_lt_u32 s55, s54")
    A("s_cselect_b32 s54, 1, 0")
    A(f"s_sub_u32 s55, s{SXCC}, s{ST}"); A("s_lshr_b32 s55, s55, 2")
    A("s_xor_b32 s54, s54, s55"); A("s_and_b32 s54, s54, 1")
    A(f"s_add_u32 s54, s54, s{ST}")
    A("s_lshl_b32 s55, s8, 3"); A("s_add_u32 s55, s55, s61"); A("s_lshl_b32 s55, s55, 5")
    A("v_mov_b32 v8, s55"); A(f"v_mov_b32 v10, s{SXCC}"); A("v_mov_b32 v11, s54")
    A("s_mov_b64 exec, 1")
    A(f"global_store_dwordx2 v8, v[10:11], s[42:43] offset:{WS_HDR} sc1")
    A("s_mov_b64 exec, -1")
    g.lab(e)
    A("s_mov_b32 s60, 1")
    A("s_branch L_svc1")

    def f1_lane_par(sp):
        A("v_lshrrev_b32 v2, 2, v1")
        A("v_mul_u32_u24 v2, 5504, v2")
        A("s_and_b32 s49, s5, 2")
        A(f"s_or_b32 s49, s49, {sp}")
        A("v_xor_b32 v3, s49, v1")
        A("v_and_b32 v3, 3, v3")
        A("v_lshl_add_u32 v2, v3, 4, v2")
    def f2_lane():
        A("v_lshrrev_b32 v2, 1, v1")
        A("v_lshlrev_b32 v2, 10, v2")
        A("v_and_b32 v3, 1, v1")
        A("v_lshl_add_u32 v2, v3, 4, v2")

    g.lab("L_r_f1")
    A("s_lshl_b32 s48, s61, 6")
    A("s_mul_i32 s49, s61, 47"); A("s_lshr_b32 s49, s49, 9")
    A(f"s_mul_i32 s49, s49, {16384-11*512}")
    A("s_lshl_b32 s58, s61, 9")
    A("s_add_u32 s58, s58, s49")
    A(f"s_add_u32 s58, s58, {WS_HH}")
    A("s_cmp_lt_u32 s5, 2")
    A("s_cselect_b32 s44, s28, s30")
    A("s_cselect_b32 s45, s29, s31")
    A(f"s_mov_b32 s46, {512*2752}"); A("s_mov_b32 s47, 0x20000")
    A("s_mov_b32 s60, 2")
    make_tag()
    A("s_branch L_svc1")

    g.lab("L_r_f2")
    srd(g, 44, 32, 1376*1024)
    make_tag()
    A("s_mov_b32 s60, 3")
    A("s_lshl_b32 s48, s61, 5")
    A("global_load_dword v167, v38, s[38:39]")
    A("s_branch L_svc1")

    g.lab("L_r_none")
    A("s_mov_b32 s60, 0")
    make_tag()

    g.lab("L_svc1")
    if opts.get("nohelp") == 2:
        A("s_endpgm")
    A("s_cmp_lg_u32 s5, 0")
    A("s_cbranch_scc1 L_disp3")
    A("s_and_b32 s64, s6, 31"); A("s_lshl_b32 s64, s64, 10")
    A("s_and_b32 s65, s6, 32"); A("s_lshl_b32 s65, s65, 1"); A("s_add_u32 s64, s64, s65")
    A(f"s_add_u32 s64, s64, {WS_Q}")
    A("v_bfe_u32 v16, v1, 2, 3")
    A("v_lshl_add_u32 v16, v16, 7, s64")
    A("v_and_b32 v17, 3, v1")
    A("v_lshl_add_u32 v16, v17, 4, v16")
    A("v_and_b32 v17, 31, v1")
    A("v_lshlrev_b32 v17, 3, v17")
    A("s_lshl_b32 s71, s8, 8")
    A("v_and_b32 v18, 7, v1")
    A("v_lshl_add_u32 v18, v18, 5, s71")
    poll_lds(g, [f"ds_read_b32 v8, v38 offset:{L_PG}"], [8], 9, 8)
    A(f"global_load_dword v19, v18, s[42:43] offset:{WS_HDR} sc1")
    poll_tagged(g, ["global_load_dwordx4 v[20:23], v16, s[42:43] sc1"], [21, 23], sleep=opts.get("qsleep", 0))
    A("v_mov_b32 v21, v22")
    A(f"ds_write_b64 v17, v[20:21] offset:{L_QV}")
    A(f"v_cmp_ne_u32 vcc, s{SXCC}, v19")
    A("s_cmp_eq_u64 vcc, 0")
    A(f"s_cselect_b32 s{SLOC}, 1, 0")
    if opts.get("nolocal"): A(f"s_mov_b32 s{SLOC}, 0")
    A(f"v_mov_b32 v20, s{ST}"); A(f"v_mov_b32 v21, s{SLOC}")
    A(f"ds_write_b64 v38, v[20:21] offset:{L_MB}")
    g.stamp(3)

    g.lab("L_svc2")
    if opts.get("nohelp") == 3: A("s_endpgm")
    A("v_lshlrev_b32 v16, 4, v1")
    A("s_lshl_b32 s64, s6, 9"); A(f"s_add_u32 s64, s64, {WS_ST}")
    A("s_lshl_b32 s65, s7, 7"); A("s_add_u32 s65, s65, s64")
    A("v_mov_b32 v18, s65")
    SR = [VA + 4 * i + k for i in range(8) for k in range(3)]
    poll_lds(g, [f"ds_read_b128 {vr(VA+4*i,4)}, v16 offset:{L_SC+1024*i}" for i in range(8)], SR, 8, 4)
    A(f"v_max3_f32 v8, v{SR[0]}, v{SR[1]}, v{SR[2]}")
    for i in range(3, 23, 2): A(f"v_max3_f32 v8, v8, v{SR[i]}, v{SR[i+1]}")
    A(f"v_max_f32 v8, v8, v{SR[23]}")
    wave_allreduce(g, "v_max_f32", 8, 11)
    A("v_min_u32 v9, s72, v8")
    A(f"ds_write_b32 v38, v9 offset:{L_ML}")
    for r in SR: A(f"v_sub_f32 v{r}, v{r}, v8")
    for r in SR: A(f"v_mul_f32 v{r}, 0x{LOG2E:08x}, v{r}")
    for r in SR: A(f"v_exp_f32 v{r}, v{r}")
    A("s_nop 0")
    for st in (12, 6, 3):
        for i in range(st): A(f"v_add_f32 v{SR[i]}, v{SR[i]}, v{SR[i+st]}")
    A(f"v_add_f32 v10, v{SR[0]}, v{SR[1]}")
    A(f"v_add_f32 v10, v10, v{SR[2]}")
    wave_allreduce(g, "v_add_f32", 10, 11)
    A(f"v_mov_b32 v9, s{ST}"); A(f"v_mov_b32 v11, s{ST}")
    A("s_mov_b64 exec, 1")
    if not SKIP & 8: pub_local(g, "global_store_dwordx4 v18, v[8:11], s[42:43]")
    A("s_mov_b64 exec, -1")
    g.stamp(4)

    g.lab("L_disp3")
    if opts.get("nohelp") in (3, 7): A("s_endpgm")
    DRY = opts.get("dry", 0)
    A("s_mov_b32 s77, 0")
    for i in range(4): A(f"s_bfe_u32 s{62+i}, s{ST}, 0x{(8 << 16) | (8 * i):x}")
    if DRY:
        A("s_cmp_lg_u32 s5, 1"); A("s_cbranch_scc1 L_dry_ret")
        A("s_mov_b32 s77, 1")
        for r in (6, 14, 30): A(f"v_mov_b32 v{r}, {L_RED}")
        A("v_mov_b32 v39, v0")
        for r in (0, 2, 3, 7): A(f"v_mov_b32 v{r}, 0")
        A(f"v_mov_b32 v5, {L_WT-8-L_SC}")
        A("s_mov_b64 s[50:51], -1")
        A("s_cmp_eq_u32 s60, 1"); A("s_cbranch_scc1 L_wo_ok")
        A("s_cmp_eq_u32 s60, 2"); A("s_cbranch_scc1 L_f1_ok")
        A("s_cmp_eq_u32 s60, 3"); A("s_cbranch_scc1 L_f2_ok")
        g.lab("L_dry_end")
        A("s_mov_b64 exec, -1")
        A("v_mov_b32 v0, v39")
        A("s_mov_b64 exec, -1")
        A("s_mov_b32 s77, 0")
        g.lab("L_dry_ret")
    def tbar():
        if DRY:
            l = g.uniq("nb")
            A("s_cmp_eq_u32 s77, 1"); A(f"s_cbranch_scc1 {l}")
            A("s_barrier")
            g.lab(l)
        else: A("s_barrier")
    def dry_out(lbl="L_dry_end"):
        if DRY:
            A("s_cmp_eq_u32 s77, 1"); A(f"s_cbranch_scc1 {lbl}")
    RA = [14, 0, 2, 3]
    def rot_addrs():
        for j in (1, 2, 3, 0):
            A(f"s_add_u32 s49, s5, {j}"); A("s_and_b32 s49, s49, 3"); A("s_lshl_b32 s49, s49, 8")
            A(f"v_add_u32 v{RA[j]}, s49, v14")
    if opts.get("optouch", 1):
        e = g.uniq("opt")
        A("s_cmp_lg_u32 s5, 2"); A(f"s_cbranch_scc1 {e}")
        poll_lds(g, [f"ds_read_b32 v8, v38 offset:{L_ML}"], [8], 9, 32)
        A("s_lshl_b32 s56, s6, 2"); A("s_add_u32 s56, s56, s7")
        A("s_lshl_b32 s57, s56, 9"); A(f"s_add_u32 s57, s57, {WS_OP}")
        A("v_lshl_add_u32 v3, v1, 3, s57")
        A("global_load_dword v167, v3, s[42:43] sc1")
        g.lab(e)
    A("s_cmp_eq_u32 s60, 2"); A("s_cbranch_scc1 L_pre_f1")
    A("s_cmp_eq_u32 s60, 3"); A("s_cbranch_scc1 L_pre_f2")
    A("s_cmp_eq_u32 s60, 1"); A("s_cbranch_scc1 L_pre_wo")
    A("s_lshr_b32 s68, s14, 29"); A(f"s_mul_i32 s68, s68, {opts.get('xt', 1)}"); A("s_xor_b32 s68, s68, s8")
    A("s_lshl_b32 s68, s68, 3"); A("s_add_u32 s68, s68, L_gtab-L_pc2")
    A("s_load_dwordx2 s[100:101], s[100:101], s68")
    A("s_waitcnt lgkmcnt(0)")
    A("s_lshr_b32 s68, s14, 26"); A("s_lshl_b32 s68, s68, 2"); A("s_add_u32 s68, s68, s5"); A("s_and_b32 s68, s68, 31")
    A("s_and_b32 s69, s100, 0xffff"); A("s_lshr_b32 s100, s100, 16")
    A("v_and_b32 v12, 3, v1")
    A("v_lshl_add_u32 v12, v12, 7, s69")
    A("v_min_u32 v12, s100, v12")
    A("v_lshrrev_b32 v13, 2, v1")
    A("v_mul_u32_u24 v13, 2752, v13")
    A(f"s_mul_i32 s69, s68, {16*2752}")
    A("v_add3_u32 v12, v12, v13, s69")
    A("v_min_u32 v13, 42, v1")
    A(f"s_mul_i32 s68, s68, {43*1024}")
    A("s_add_u32 s68, s68, s101")
    A("v_lshl_add_u32 v13, v13, 10, s68")
    if opts.get("tlb2", 0):
        poll_lds(g, [f"ds_read_b32 v8, v38 offset:{L_PS}"], [8], 9, 16)
        A("s_mov_b64 exec, 1")
        A("global_load_dword v16, v12, s[28:29]")
        A("global_load_dword v17, v12, s[30:31]")
        A("global_load_dword v18, v13, s[32:33]")
        A("s_mov_b64 exec, -1")
    A("s_branch L_join")
    g.lab("L_pre_wo")
    hs_wait(g, 8, 9, 8)
    tr64_addr(g)
    tr_reads(g, 16, 4096, 2048, True)
    A("s_lshl_b32 s49, s5, 3"); A("s_add_u32 s49, s49, s66")
    A("s_lshl_b32 s50, s49, 9"); A(f"s_add_u32 s50, s50, {WS_ST}")
    A("v_lshrrev_b32 v12, 5, v1")
    A("v_lshl_add_u32 v15, v12, 14, s50")
    A("v_and_b32 v16, 3, v1")
    A("v_lshl_add_u32 v15, v16, 7, v15")
    poll_lds(g, [f"ds_read_b32 v8, v38 offset:{L_PS}"], [8], 9, 16)
    poll_tagged(g, ["global_load_dwordx4 v[16:19], v15, s[42:43] sc1"], [17, 19], sleep=opts.get("ssleep", 8))
    A("v_max_f32_dpp v10, v16, v16 quad_perm:[1,0,3,2] row_mask:0xf bank_mask:0xf")
    A("s_nop 1")
    A("v_max_f32_dpp v10, v10, v10 quad_perm:[2,3,0,1] row_mask:0xf bank_mask:0xf")
    A("v_sub_f32 v8, v16, v10")
    A(f"v_mul_f32 v8, 0x{LOG2E:08x}, v8")
    A("v_exp_f32 v8, v8")
    A("s_nop 0")
    A("v_mul_f32 v9, v18, v8")
    A("s_nop 1")
    A("v_add_f32_dpp v9, v9, v9 quad_perm:[1,0,3,2] row_mask:0xf bank_mask:0xf")
    A("s_nop 1")
    A("v_add_f32_dpp v9, v9, v9 quad_perm:[2,3,0,1] row_mask:0xf bank_mask:0xf")
    A("v_rcp_f32 v9, v9")
    A("s_nop 0")
    A("v_mul_f32 v8, v8, v9")
    A("s_nop 1")
    for i in range(4): A(f"v_mov_b32_dpp v{20+i}, v8 quad_perm:[{i},{i},{i},{i}] row_mask:0xf bank_mask:0xf")
    g.stamp(5)
    A("s_lshl_b32 s49, s49, 11")
    A(f"s_add_u32 s49, s49, {WS_OP}")
    A("v_lshrrev_b32 v12, 5, v1")
    A("v_and_b32 v16, 31, v1")
    A("v_lshlrev_b32 v15, 16, v12")
    A("v_lshl_add_u32 v15, v16, 4, v15")
    A("v_add_u32 v15, s49, v15")
    A(f"v_mul_u32_u24 v12, {ACT_BS}, v12")
    A("v_bfe_u32 v16, v1, 3, 2")
    A("v_lshl_add_u32 v12, v16, 6, v12")
    A("v_and_b32 v16, 3, v1")
    A("v_lshl_add_u32 v12, v16, 4, v12")
    A("v_bfe_u32 v16, v1, 2, 1")
    A("v_lshl_add_u32 v12, v16, 3, v12")
    A("s_lshl_b32 s49, s5, 8")
    A("v_add_u32 v12, s49, v12")
    act_addr(g, 14, L_ACT, ACT_BS)
    line_out_addr(13)
    A("v_add_u32 v37, 0x2000, v13")
    A("v_mov_b32 v36, 0xff")
    rot_addrs()
    A("s_branch L_join")

    adr = [15, 35, 32, 36, 33, 37, 34, 39]
    def ap_addrs():
        for i in range(1, 8): A(f"v_add_u32 v{adr[i]}, {(i >> 1) * 16384 + (i & 1) * 4096}, v15")
    def hdr_wave(bases):
        e = g.uniq("hc")
        A("s_cmp_lg_u32 s5, 3"); A(f"s_cbranch_scc1 {e}")
        poll_lds(g, [f"ds_read_b32 v8, v38 offset:{L_QV}"], [8], 9, 32)
        if opts.get("tlb", 0):
            A(f"v_lshlrev_b32 v10, {opts['tlb']}, v1")
            A(f"v_min_u32 v10, {512*2752-4}, v10")
            for b in bases: A(f"global_load_dword v167, v10, s[{b}:{b+1}]")
        check_votes(g, 10, VA)
        g.lab(e)
    def near_copy():
        poll_lds(g, [f"ds_read_b32 v11, v38 offset:{L_NR}"], [11], 9, 8)

    PG = VA + 32
    def pre_gather(addrs):
        poll_lds(g, [f"ds_read_b32 v8, v38 offset:{L_PS}"], [8], 9, 16)
        A("global_load_dwordx2 v[8:9], v31, s[16:17]")
        poll_tagged(g, [f"global_load_dwordx4 {vr(PG+4*i,4)}, v{a}, s[42:43] sc1" for i, a in enumerate(addrs)],
                    [PG + 1 + 2 * i for i in range(2 * len(addrs))], sleep=8)

    g.lab("L_pre_f1")
    hdr_wave((28, 30))
    A("v_mov_b32 v31, v13")
    A("v_lshlrev_b32 v15, 4, v0")
    A(f"v_add_u32 v24, {WS_MOD+2*4096}, v15")
    A(f"v_add_u32 v25, {WS_MOD+3*4096}, v15")
    A(f"v_add_u32 v26, {WS_MOD+4*4096}, v15")
    near_copy()
    A(f"v_add_u32 v15, {WS_AP}, v15")
    A("v_add_u32 v15, v11, v15")
    ap_addrs()
    A("v_bfe_u32 v5, v1, 2, 1")
    A(f"v_mul_u32_u24 v5, {ACT_BS}, v5")
    A("v_lshrrev_b32 v3, 3, v0")
    A("v_lshl_add_u32 v5, v3, 5, v5")
    A("v_and_b32 v3, 3, v1")
    A("v_lshl_add_u32 v5, v3, 3, v5")
    A("v_and_b32 v14, 7, v1")
    A(f"v_mul_u32_u24 v14, {ACT_BS}, v14")
    A("v_lshrrev_b32 v3, 4, v1")
    A("v_lshl_add_u32 v14, v3, 4, v14")
    A("v_and_b32 v7, 1, v1")
    A(f"v_mul_u32_u24 v7, {ACT_BS}, v7")
    A("v_lshrrev_b32 v3, 1, v1")
    A("v_lshl_add_u32 v7, v3, 5, v7")
    A("v_and_b32 v13, 3, v1")
    A("v_lshlrev_b32 v13, 5, v13")
    A("v_bfe_u32 v3, v1, 4, 1")
    A("v_lshl_add_u32 v13, v3, 3, v13")
    A("s_lshl_b32 s49, s5, 7")
    A("s_add_u32 s49, s49, s58")
    A("v_add_u32 v13, s49, v13")
    A("v_lshrrev_b32 v3, 5, v1")
    A("v_lshl_add_u32 v13, v3, 4, v13")
    A("v_add_u32 v4, 0x2000, v13")
    E1 = 8
    if 1:
        A("s_and_b32 s54, s61, 1" if opts.get("fpar", 1) else "s_mov_b32 s54, 0")
        A("s_mul_i32 s52, s54, -2"); A("s_add_u32 s52, s52, 1")
        A("s_mul_i32 s53, s52, 16384"); A("s_sub_u32 s53, s53, 8192")
        A("s_mul_i32 s52, s52, 2752"); A(f"s_sub_u32 s52, s52, {256*2752}")
        f1_lane_par("s54")
        A("v_mov_b32 v0, v2")
        if XD:
            A("v_and_b32 v0, 3, v1")
            A("v_lshlrev_b32 v0, 14, v0")
            A("v_bfe_u32 v3, v1, 2, 1")
            A("v_lshl_add_u32 v0, v3, 12, v0")
            A("s_lshl_b32 s49, s5, 10"); A(f"s_add_u32 s49, s49, {WS_AP}")
            A("v_add3_u32 v0, v0, v11, s49")
        A("v_lshrrev_b32 v6, 3, v1")
        A("v_lshlrev_b32 v6, 6, v6")
        A("v_bfe_u32 v3, v1, 2, 1")
        A("v_lshl_add_u32 v6, v3, 14, v6")
        A("v_and_b32 v8, 2, v1")
        A("v_or_b32 v3, v3, v8")
        A("v_xor_b32 v3, s5, v3")
        A("v_lshl_add_u32 v6, v3, 4, v6")
        A("v_lshl_add_u32 v6, v8, 14, v6")
        A("v_and_b32 v3, 1, v1")
        A("v_lshl_add_u32 v6, v3, 3, v6")
        A(f"v_add_u32 v6, {L_WT}, v6")
        A("s_and_b32 s55, s5, 1")
        A(f"s_mul_i32 s49, s55, {256*2752}")
        A("s_add_u32 s49, s49, s48")
        A("s_mul_i32 s50, s54, 2752"); A("s_add_u32 s49, s49, s50")
        A("s_lshr_b32 s50, s5, 1"); A("s_lshl_b32 s50, s50, 15")
        A("s_lshl_b32 s54, s54, 14"); A("s_add_u32 s50, s50, s54")
        A("s_lshl_b32 s55, s55, 13"); A("s_add_u32 s50, s50, s55")
        A(f"s_add_u32 s50, s50, {L_WT}")
    pre_gather([24, 25, 26])
    unpack4(g, 16, 8)
    unpack4(g, 20, PG, 2)
    unpack4(g, 28, PG+8, 2)
    for i in range(4): A(f"v_add_f32 v{28+i}, 1.0, v{28+i}")
    A("v_cvt_pk_bf16_f32 v8, v28, v29"); A("v_cvt_pk_bf16_f32 v9, v30, v31")
    A(f"v_mov_b32 v{PG+5}, v{PG+6}")
    A(f"ds_write_b64 v12, v[8:9] offset:{L_ACT+2*ACT_BS}")
    A(f"ds_write_b64 v12, {vr(PG+4,2)} offset:{L_ACT+4*ACT_BS}")
    for i in range(4): rnd(g, 28+i)
    for i in range(4): A(f"v_mul_f32 v{24+i}, v{20+i}, v{28+i}")
    for i in range(4): A(f"v_mul_f32 v{28+i}, v{16+i}, v{28+i}")
    A("s_branch L_join")

    g.lab("L_pre_f2")
    hdr_wave((32,))
    A("v_and_b32 v12, 1, v1")
    A("v_lshrrev_b32 v14, 4, v1")
    A("s_lshl_b32 s49, s61, 5")
    A("v_lshl_add_u32 v3, v14, 3, s49")
    A("v_lshl_add_u32 v13, v12, 10, v3")
    A("v_mov_b32 v31, v13")
    A("v_lshlrev_b32 v15, 6, v12")
    A("v_lshl_add_u32 v15, v14, 4, v15")
    A("s_lshl_b32 s49, s61, 7")
    A("v_add_u32 v15, s49, v15")
    A(f"v_add_u32 v24, {WS_MOD+2*4096}, v15")
    A(f"v_add_u32 v25, {WS_MOD+5*4096}, v15")
    near_copy()
    A(f"v_add_u32 v15, {WS_AP}, v15")
    A("v_add_u32 v15, v11, v15")
    ap_addrs()
    A("s_lshl_b32 s49, s5, 14")
    A(f"s_add_u32 s49, s49, {WS_HH+2048}")
    A("v_lshl_add_u32 v28, v14, 7, s49")
    A("v_add_u32 v28, v11, v28")
    A("v_lshl_add_u32 v28, v12, 5, v28")
    A("v_and_b32 v3, 2, v1")
    A("v_lshl_add_u32 v28, v3, 3, v28")
    A("v_bfe_u32 v3, v1, 2, 2")
    A("v_lshl_add_u32 v28, v3, 9, v28")
    A("v_lshl_add_u32 v12, v14, 1, v12")
    A("v_lshlrev_b32 v12, 4, v12")
    A(f"v_add_u32 v12, {L_RED}, v12")
    A("s_lshl_b32 s49, s5, 7")
    A("v_add_u32 v30, s49, v12")
    f2_lane()
    A("v_mov_b32 v29, v2")
    A("v_lshlrev_b32 v6, 8, v14")
    A("v_bfe_u32 v3, v1, 2, 2")
    A("v_lshl_add_u32 v6, v3, 5, v6")
    A("v_and_b32 v3, 3, v1")
    A("v_lshl_add_u32 v6, v3, 3, v6")
    A("s_mul_i32 s49, s5, 11264")
    A(f"s_add_u32 s49, s49, {L_WT}")
    A("v_add_u32 v6, s49, v6")
    pre_gather([24, 25])
    if opts.get("apw", 1):
        e = g.uniq("apw")
        A("s_cmp_lg_u32 s5, 2"); A(f"s_cbranch_scc1 {e}")
        A("s_and_b32 s49, s61, 3"); A("s_lshl_b32 s49, s49, 14"); A(f"s_add_u32 s49, s49, {WS_AP}")
        A("v_lshl_add_u32 v3, v1, 7, s49")
        A("v_add_u32 v3, v11, v3")
        A("global_load_dword v167, v3, s[42:43] sc1")
        g.lab(e)
    unpack4(g, 16, 8)
    unpack4(g, 20, PG, 2)
    unpack4(g, 24, PG+4, 2)

    g.lab("L_join")
    if opts.get("nohelp") == 4:
        A("s_endpgm")
    A("s_waitcnt vmcnt(0) lgkmcnt(0)")
    g.stamp(9)
    A("s_barrier")
    g.stamp(6)
    g.tail = True
    g.stamp(9, 2)
    if opts.get("nohelp") == 5:
        A("s_cmp_lg_u32 s60, 0"); A("s_cbranch_scc1 L_fin")
    if opts.get("nohelp") == 6:
        A("s_cmp_gt_u32 s60, 1"); A("s_cbranch_scc1 L_fin")
    A("s_cmp_eq_u32 s60, 1"); A("s_cbranch_scc1 L_t_wo")
    A("s_cmp_eq_u32 s60, 2"); A("s_cbranch_scc1 L_t_f1")
    A("s_cmp_eq_u32 s60, 3"); A("s_cbranch_scc1 L_t_f2")
    g.C("pull a share of the FFN weights of this group into L2 (values unused)")
    if not opts.get("notouch"):
        A("global_load_dword v16, v12, s[28:29]")
        A("global_load_dword v17, v12, s[30:31]")
        if opts.get("f2d", 0): A("s_waitcnt vmcnt(0)")
        A("global_load_dword v18, v13, s[32:33]")
    A("s_branch L_fin")

    def sum8p(src, dst):
        for p in range(4):
            for h in range(2): A(f"v_pk_add_f32 {vr(dst+8*p+2*h,2)}, {vr(src+8*p+2*h,2)}, {vr(src+8*p+4+2*h,2)}")
        sum8q(dst)
    def sum8q(dst):
        for i in range(2):
            for h in range(2): A(f"v_pk_add_f32 {vr(dst+16*i+2*h,2)}, {vr(dst+16*i+2*h,2)}, {vr(dst+16*i+8+2*h,2)}")
        for h in range(2): A(f"v_pk_add_f32 {vr(dst+2*h,2)}, {vr(dst+2*h,2)}, {vr(dst+16+2*h,2)}")
    def x1_from(S):
        for i in range(4): rnd(g, S+i)
        for i in range(4): A(f"v_mul_f32 v{S+i}, v{S+i}, v{20+i}")
        for i in range(4): rnd(g, S+i)
        for i in range(4): A(f"v_add_f32 v{16+i}, v{16+i}, v{S+i}")
        for i in range(4): rnd(g, 16+i)

    g.lab("L_t_wo")
    A("s_mov_b32 s70, 0")
    g.lab("L_wo_p")
    for i in range(4): A(f"global_load_dwordx4 {vr(VA+4*i,4)}, v15, s[42:43] offset:{512*i} sc1")
    for k in range(16):
        if k % 4 == 0: A(f"s_waitcnt vmcnt({3-k//4})")
        A(f"v_xor_b32 v{VA+k}, s{62+k%4}, v{VA+k}")
    for k in range(4): A(f"v_or3_b32 v{28+k}, v{VA+3*k}, v{VA+3*k+1}, v{VA+3*k+2}")
    A("v_or3_b32 v28, v28, v29, v30")
    A(f"v_or3_b32 v31, v31, v{VA+12}, v{VA+13}")
    A(f"v_or3_b32 v28, v28, v{VA+14}, v{VA+15}")
    A("v_or_b32 v28, v28, v31")
    A("v_lshlrev_b32 v28, 24, v28")
    A("v_cmp_ne_u32 vcc, 0, v28")
    for i in range(4):
        for h in range(2):
            f = f"{vr(20+(i&2),2)}"; sel = f"op_sel:[0,{i&1},0] op_sel_hi:[1,{i&1},1]"
            if i == 0: A(f"v_pk_mul_f32 {vr(16+2*h,2)}, {vr(VA+2*h,2)}, {f} op_sel:[0,0] op_sel_hi:[1,0]")
            else: A(f"v_pk_fma_f32 {vr(16+2*h,2)}, {vr(VA+4*i+2*h,2)}, {f}, {vr(16+2*h,2)} {sel}")
    spin_tail(g, "L_wo_p", "L_wo_ok", 0)
    g.stamp(7); g.stamp(1, 2)
    A(f"v_cvt_pk_bf16_f32 v16, v16, v17")
    A(f"v_cvt_pk_bf16_f32 v17, v18, v19")
    A(f"ds_write_b64 v12, v[16:17] offset:{L_ACT}")
    wrd = lambda m: A(f"ds_read_b128 {vr(VA+4*m,4)}, v{RA[m//4]} offset:{L_ACT+64*(m%4)}")
    wmf = lambda m: A(f"v_mfma_f32_16x16x32_bf16 v[8:11], {vr(VW+4*m,4)}, {vr(VA+4*m,4)}, " + ("0" if m == 0 else "v[8:11]"))
    for m in range(4): wrd(m)
    A("s_waitcnt lgkmcnt(4)")
    g.stamp(2, 2)
    tbar()
    g.stamp(3, 2)
    for m in range(4, 8): wrd(m)
    if opts.get("stamps") == 2: A("s_waitcnt lgkmcnt(0)")
    A("s_waitcnt lgkmcnt(4)")
    for m in range(4):
        wmf(m); wrd(8 + 2*m); wrd(9 + 2*m)
    for m in range(4, 16):
        A(f"s_waitcnt lgkmcnt({15-m})")
        wmf(m)
    A("s_nop 3" if DRY else "s_nop 5")
    dry_out()
    for x in EX8: A(x)
    g.stamp(4, 2)
    for i in range(4):
        A(f"v_bfi_b32 v{8+i}, v36, s{62+i}, v{8+i}")
    A("global_store_dwordx4 v13, v[8:11], s[42:43] sc1")
    A("global_store_dwordx4 v37, v[8:11], s[42:43] sc1")
    if opts.get("wb", 0):
        A("s_or_b32 s49, s61, s5"); A("s_cmp_lg_u32 s49, 0"); A("s_cbranch_scc1 L_fin")
        A("s_waitcnt vmcnt(0)")
        if opts["wb"] > 1: A(f"s_sleep {opts['wb']}")
        A("buffer_wbl2 sc1")
        A("s_waitcnt vmcnt(0)")
    g.stamp(2); g.stamp(7, 2)
    A("s_branch L_fin")

    g.lab("L_t_f1")
    def pair_loads():
        for p in range(4):
            l = g.uniq("fl")
            A(f"s_bitcmp1_b32 s71, {p}"); A(f"s_cbranch_scc0 {l}")
            for i in (2*p, 2*p+1): A(f"global_load_dwordx4 {vr(VA+4*i,4)}, v{adr[i]}, s[42:43] sc1")
            g.lab(l)
    def pair_checks():
        S = VA + 32
        A("s_waitcnt vmcnt(0)")
        for p in range(4):
            l = g.uniq("fc")
            A(f"s_bitcmp1_b32 s71, {p}"); A(f"s_cbranch_scc0 {l}")
            B_ = VA + 8 * p
            for k in range(8): A(f"v_xor_b32 v{B_+k}, s{62+k%4}, v{B_+k}")
            A(f"v_or3_b32 v8, v{B_}, v{B_+1}, v{B_+2}")
            A(f"v_or3_b32 v9, v{B_+3}, v{B_+4}, v{B_+5}")
            A(f"v_or3_b32 v8, v8, v{B_+6}, v{B_+7}")
            for h in range(2): A(f"v_pk_add_f32 {vr(S+8*p+2*h,2)}, {vr(B_+2*h,2)}, {vr(B_+4+2*h,2)}")
            A("v_or_b32 v8, v8, v9")
            A("v_lshlrev_b32 v8, 24, v8")
            A("v_cmp_ne_u32 vcc, 0, v8")
            A("s_cmp_lg_u64 vcc, 0"); A(f"s_cbranch_scc1 {l}")
            A(f"s_bitset0_b32 s71, {p}")
            g.lab(l)
    FFL = opts.get("fflags", "").replace("_", " ")
    S = VA + 32
    if XD:
        A("s_mov_b32 s70, 0")
        A("s_mov_b32 s71, 15")
        A("v_mov_b32 v2, v6")
        g.lab("L_f1_w")
        A("s_mov_b64 exec, 255")
        A("global_load_dword v9, v0, s[42:43] sc1")
        A("s_mov_b64 exec, -1")
        A(f"ds_read_b32 v8, v38 offset:{L_CNT}")
        A("s_waitcnt lgkmcnt(0)")
        A("v_readfirstlane_b32 s68, v8")
        A("s_cmp_ge_u32 s68, 8"); A("s_cbranch_scc1 L_f1_wd")
        A("s_waitcnt vmcnt(0)")
        A("v_and_b32 v9, 0xff, v9")
        A("v_cmp_eq_u32 vcc, s62, v9")
        A("s_lshr_b32 s68, vcc_lo, 4"); A("s_and_b32 s68, s68, vcc_lo")
        A("s_and_b32 s69, s68, s71")
        A("s_cbranch_scc0 L_f1_wn")
        A("s_andn2_b32 s52, s71, s69")
        A("s_mov_b32 s71, s69")
        pair_loads(); pair_checks()
        A("s_or_b32 s71, s71, s52")
        g.lab("L_f1_wn")
        A("s_add_u32 s70, s70, 1")
        A(f"s_cmp_lt_u32 s70, {SPIN_MAX}"); A("s_cbranch_scc1 L_f1_w")
        g.lab("L_f1_wd")
        pair_loads()
        tr_reads(g, 16, 1024, 512, True)
        rot_addrs()
        g.stamp(1)
        A("s_branch L_f1_c")
    else:
        A("v_mov_b32 v2, v0")
        dma_loop(g, 8, 32*2752, FFL)
        A("v_xor_b32 v2, 16, v2")
        A("s_add_u32 s49, s49, s52")
        A("s_add_u32 s50, s50, s53")
        dma_loop(g, 8, 32*2752, FFL)
        def look():
            for i in range(8): A(f"global_load_dwordx4 {vr(VA+4*i,4)}, v{adr[i]}, s[42:43] sc1")
        LOOK = opts.get("look", 3)
        if LOOK == 1: look()
        A("v_mov_b32 v2, v6")
        A(f"s_waitcnt vmcnt({8 if LOOK == 1 else 0})")
        if LOOK == 2: look()
        A("s_barrier")
        if LOOK == 3: look()
        tr_reads(g, 16, 1024, 512, True)
        rot_addrs()
        g.stamp(1)
        A("s_mov_b32 s70, 0")
        A("s_mov_b32 s71, 15")
        A("s_branch L_f1_c")
    if 1:
        def ap_check():
            for k in range(32): A(f"v_xor_b32 v{S+k}, s{62+k%4}, v{VA+k}")
            for p in range(4): A(f"v_or3_b32 v{8+p}, v{S+8*p}, v{S+8*p+1}, v{S+8*p+2}")
            for p in range(4): A(f"v_or3_b32 v{8+p}, v{8+p}, v{S+8*p+3}, v{S+8*p+4}")
            for p in range(4): A(f"v_or3_b32 v{8+p}, v{8+p}, v{S+8*p+5}, v{S+8*p+6}")
            for p in range(4): A(f"v_or_b32 v{8+p}, v{8+p}, v{S+8*p+7}")
            A("v_or3_b32 v3, v8, v9, v10")
            A("v_or_b32 v3, v3, v11")
            A("v_lshlrev_b32 v3, 24, v3")
            A("v_cmp_ne_u32 vcc, 0, v3")
        g.lab("L_f1_p")
        A("s_add_u32 s70, s70, 1")
        A(f"s_cmp_ge_u32 s70, {SPIN_MAX}")
        A("s_cbranch_scc1 L_f1_ok")
        pair_loads()
        g.lab("L_f1_c")
        pair_checks()
        A("s_cmp_lg_u32 s71, 0")
        A("s_cbranch_scc1 L_f1_p")
        g.lab("L_f1_ok")
        sum8q(S)
    g.stamp(7); g.stamp(1, 2)
    if 1:
        for h in range(2): A(f"v_pk_fma_f32 {vr(8+2*h,2)}, {vr(S+2*h,2)}, {vr(24+2*h,2)}, {vr(28+2*h,2)}")
        A("v_cvt_pk_bf16_f32 v8, v8, v9")
        A("v_cvt_pk_bf16_f32 v9, v10, v11")
        A(f"ds_write_b64 v12, v[8:9] offset:{L_ACT}")
        q = []
        def rd(m): A(f"ds_read_b128 {vr(VA+4*m,4)}, v{RA[m//4]} offset:{L_ACT+64*(m%4)}"); q.append(("r", m))
        def need(op):
            i = q.index(op); A(f"s_waitcnt lgkmcnt({len(q)-1-i})"); del q[:i+1]
        for m in range(4): rd(m)
        for h in range(2): A(f"v_pk_fma_f32 {vr(16+2*h,2)}, {vr(S+2*h,2)}, {vr(20+2*h,2)}, {vr(16+2*h,2)}")
        A("v_pk_mul_f32 v[10:11], v[16:17], v[16:17]")
        A("v_pk_add_f32 v[20:21], v[16:17], v[18:19]")
        A("v_pk_fma_f32 v[10:11], v[18:19], v[18:19], v[10:11]")
        A("v_add_f32 v20, v20, v21")
        A("v_add_f32 v21, v10, v11")
        A(f"ds_write_b64 v5, v[20:21] offset:{L_SC}")
        A("s_waitcnt lgkmcnt(0)"); del q[:]
        g.stamp(2, 2)
        tbar()
        g.stamp(3, 2)
        for m in range(4, 8): rd(m)
        A(f"ds_read_b128 v[20:23], v7 offset:{L_SC}"); q.append(("s", 0))
        A(f"ds_read_b128 v[24:27], v7 offset:{L_SC+16}"); q.append(("s", 1))
        DF = 32
        dpp = lambda r, mod: f"v_add_f32_dpp v{r}, v{r}, v{r} {mod} row_mask:0xf bank_mask:0xf"
        fill = {5: ["S", "v_pk_add_f32 v[20:21], v[20:21], v[22:23]", "v_pk_add_f32 v[24:25], v[24:25], v[26:27]"],
                6: ["v_pk_add_f32 v[20:21], v[20:21], v[24:25]", "s_nop 0"],
                7: [dpp(20, "quad_perm:[2,3,0,1]"), dpp(21, "quad_perm:[2,3,0,1]")],
                8: [dpp(20, "row_ror:4"), dpp(21, "row_ror:4")],
                9: [dpp(20, "row_ror:8"), dpp(21, "row_ror:8")],
                10: ["v_mov_b32 v22, v20", "v_mov_b32 v23, v21"],
                11: ["v_permlane16_swap_b32 v22, v20", "v_permlane16_swap_b32 v23, v21"],
                12: ["v_add_f32 v20, v20, v22", "v_add_f32 v21, v21, v23", "v_mov_b32 v22, v20", "v_mov_b32 v23, v21"],
                13: ["v_permlane32_swap_b32 v22, v20", "v_permlane32_swap_b32 v23, v21"],
                14: ["v_add_f32 v20, v20, v22", "v_add_f32 v21, v21, v23"],
                15: [f"v_mul_f32 v20, 0x{f2u(-1/512):08x}, v20", f"v_mul_f32 v21, 0x{f2u(1/512):08x}, v21",
                     "v_fma_f32 v21, -v20, v20, v21", "v_max_f32 v21, 0, v21", f"v_add_f32 v21, 0x{EPS:08x}, v21", "v_rsq_f32 v21, v21",
                     "s_nop 1"]}
        for m in range(16):
            if ("r", m) in q: need(("r", m))
            c = "0" if m == 0 else vr(DF, 4)
            A(f"v_mfma_f32_16x16x32_bf16 {vr(DF,4)}, {vr(VW+4*m,4)}, {vr(VA+4*m,4)}, {c}")
            if m < 4: rd(8 + 2*m); rd(9 + 2*m)
            for t in fill.get(m, []):
                if t == "S": need(("s", 1))
                else: A(t)
        g.stamp(5, 2)
        for i in range(4): A(f"v_fmac_f32_dpp v{DF+i}, v{DF+i}, v20 row_shl:2 row_mask:0xf bank_mask:0x1")
        for i in range(4): A(f"v_mul_f32 v{8+i}, v{DF+i}, v21")
        for i in range(4): A(f"v_add_f32_dpp v{8+i}, v{DF+i}, v{8+i} row_shl:4 row_mask:0xf bank_mask:0xf")
        HM = "0x000f000f" if opts.get("hfull", 1) else "0x00030003"
        A(f"s_mov_b32 s50, {HM}")
        A(f"s_mov_b32 s51, {HM}")
        A("v_permlane32_swap_b32 v8, v10")
        A("v_permlane32_swap_b32 v9, v11")
        for i in range(2): A(f"v_mul_f32 v{20+i}, 0x{LOG2E ^ 0x80000000:08x}, v{8+i}")
        for i in range(2): A(f"v_exp_f32 v{20+i}, v{20+i}")
        for i in range(2): A(f"v_mul_f32 v{8+i}, v{8+i}, v{10+i}")
        for i in range(2): A(f"v_add_f32 v{20+i}, 1.0, v{20+i}")
        for i in range(2): A(f"v_rcp_f32 v{20+i}, v{20+i}")
        A("s_mov_b64 exec, s[50:51]")
        for i in range(2): A(f"v_mul_f32 v{8+i}, v{8+i}, v{20+i}")
        A("v_cvt_pk_bf16_f32 v8, v8, v9")
        A(f"v_mov_b32 v9, s{ST}")
        dry_out()
        A("global_store_dwordx2 v13, v[8:9], s[42:43] sc1")
        A("global_store_dwordx2 v4, v[8:9], s[42:43] sc1")
        g.stamp(2); g.stamp(7, 2)
        A("s_branch L_fin")

    g.lab("L_t_f2")
    def f2_dma():
        A("v_mov_b32 v2, v29")
        A("s_and_b32 s59, s61, 3"); A("s_mul_i32 s59, s59, 3072")
        for part in range(2):
            A(f"s_mul_i32 s49, s5, {11*32*1024}")
            A("s_add_u32 s49, s49, s48")
            A("s_mul_i32 s50, s5, 11264")
            A(f"s_add_u32 s50, s50, {L_WT}")
            if part == 0:
                A("s_lshl_b32 s52, s59, 5")
                A("s_add_u32 s49, s49, s52")
                A("s_add_u32 s50, s50, s59")
                A("s_sub_u32 s52, 11264, s59")
                dma_loop(g, "s52", 32*1024, FFL)
            else:
                dma_loop(g, "s59", 32*1024, FFL)
    if opts.get("f2d", 0):
        A("s_lshr_b32 s49, s8, 1"); A("s_lshl_b32 s49, s49, 14"); A("s_and_b32 s50, s8, 1"); A("s_lshl_b32 s50, s50, 12"); A("s_add_u32 s49, s49, s50")
        A("v_add_u32 v8, s49, v15")
        A("s_mov_b64 exec, 1")
        A("s_mov_b32 s70, 0")
        g.lab("L_f2_h")
        A("global_load_dword v9, v8, s[42:43] sc1")
        A("s_waitcnt vmcnt(0)")
        A("v_and_b32 v9, 0xff, v9")
        A("v_cmp_ne_u32 vcc, s62, v9")
        spin_tail(g, "L_f2_h", "L_f2_hd", 2)
        A("s_mov_b64 exec, -1")
    f2_dma()
    A("v_mov_b32 v2, v6")
    A("s_mov_b32 s50, 0x00030003"); A("s_mov_b32 s51, 0x00030003")
    A("s_mov_b32 s53, 0x0fff0fff")
    A("s_cmp_eq_u32 s5, 3")
    A("s_cselect_b32 s52, 0x00ff00ff, s53")
    A("s_mov_b32 s53, s52")
    def ap_loads():
        A("s_mov_b64 exec, s[50:51]")
        for i in range(8): A(f"global_load_dwordx4 {vr(VA+4*i,4)}, v{adr[i]}, s[42:43] sc1")
    A("s_cmp_lg_u32 s5, 0")
    A("s_cbranch_scc1 L_f2_w")
    ap_loads()
    A("s_mov_b64 exec, -1")
    A("s_waitcnt vmcnt(8)")
    A("s_branch L_f2_w2")
    g.lab("L_f2_w")
    A("s_waitcnt vmcnt(0)")
    g.lab("L_f2_w2")
    tr_reads(g, 11, 1024, 128)
    g.stamp(1)
    e = g.uniq("f2x")
    A("s_cmp_lg_u32 s5, 0")
    A(f"s_cbranch_scc1 {e}")
    A("s_mov_b32 s70, 0")
    A("s_mov_b64 exec, s[50:51]")
    A("s_branch L_f2_ac")
    g.lab("L_f2_a")
    ap_loads()
    g.lab("L_f2_ac")
    A("s_waitcnt vmcnt(0)")
    ap_check()
    F2S = opts.get("f2s", 0)
    spin_tail(g, "L_f2_a", "L_f2_ad", 0 if F2S else 2)
    A("s_mov_b64 exec, -1")
    if F2S: A("s_barrier")
    sum8p(S, S)
    x1_from(S)
    if F2S:
        A(f"s_sleep {F2S-3}")
        A("s_branch L_f2_go")
    g.lab(e)
    if F2S:
        A("s_barrier")
        A(f"s_sleep {F2S}")
        g.lab("L_f2_go")
    for i in range(4): A(f"v_mov_b32 v{VA+8+i}, 0")
    DD = VA + 16
    A("s_mov_b32 s70, 0")
    g.lab("L_f2_p")
    A(f"global_load_dwordx4 {vr(VA,4)}, v28, s[42:43] offset:-2048 sc1")
    A(f"global_load_dwordx4 {vr(VA+4,4)}, v28, s[42:43] sc1")
    A("s_mov_b64 exec, s[52:53]")
    A(f"global_load_dwordx4 {vr(VA+8,4)}, v28, s[42:43] offset:2048 sc1")
    A("s_mov_b64 exec, -1")
    def mf(m):
        j, mp = divmod(m, 4)
        c = "0" if j == 0 else vr(DD+4*mp, 4)
        A(f"v_mfma_f32_16x16x32_bf16 {vr(DD+4*mp,4)}, {vr(VW+4*m,4)}, {vr(VA+4*j,4)}, {c}")
    for j in range(3):
        A(f"s_waitcnt vmcnt({2-j})")
        A(f"v_xor_b32 v{VA+4*j+1}, s{ST}, v{VA+4*j+1}")
        A(f"v_xor_b32 v{VA+4*j+3}, s{ST}, v{VA+4*j+3}")
    A(f"v_or3_b32 v31, v{VA+1}, v{VA+3}, v{VA+5}")
    A(f"v_or_b32 v3, v{VA+9}, v{VA+11}")
    A(f"v_or_b32 v31, v{VA+7}, v31")
    A("v_cmp_ne_u32 s[68:69], 0, v3")
    A("v_cmp_ne_u32 vcc, 0, v31")
    for j in range(3):
        for h in range(2): A(f"v_mov_b32_dpp v{VA+4*j+2*h+1}, v{VA+4*j+2*h} quad_perm:[2,3,2,3] row_mask:0xf bank_mask:0xf")
    A("s_and_b64 s[68:69], s[68:69], s[52:53]")
    A("s_or_b64 vcc, vcc, s[68:69]")
    for m in range(4): mf(m)
    spin_tail(g, "L_f2_p", "L_f2_ok", 0)
    for m in range(4, 11): mf(m)
    A("s_nop 6")
    for i in range(4): A(f"v_add_f32_dpp v{8+i}, v{DD+4+i}, v{DD+i} row_shl:4 row_mask:0xf bank_mask:0xf")
    for i in range(4): A(f"v_add_f32_dpp v{DD+8+i}, v{DD+12+i}, v{DD+8+i} row_shl:4 row_mask:0xf bank_mask:0xf")
    for i in range(4): A(f"v_add_f32_dpp v{8+i}, v{DD+8+i}, v{8+i} row_shl:8 row_mask:0xf bank_mask:0xf")
    A("s_mov_b64 exec, s[50:51]")
    g.stamp(7); g.stamp(1, 2)
    A("ds_write_b128 v30, v[8:11]")
    A("s_waitcnt lgkmcnt(0)")
    g.stamp(2, 2)
    tbar()
    g.stamp(3, 2)
    A("s_cmp_lg_u32 s5, s77")
    A("s_cbranch_scc1 L_fin")
    for i in range(3):
        A(f"ds_read_b128 {vr(VA+4*i,4)}, v12 offset:{128*(i+1)}")
    A("s_waitcnt lgkmcnt(2)")
    for h in range(2): A(f"v_pk_add_f32 {vr(8+2*h,2)}, {vr(8+2*h,2)}, {vr(VA+2*h,2)}")
    A("s_waitcnt lgkmcnt(0)")
    for h in range(2): A(f"v_pk_add_f32 {vr(VA+4+2*h,2)}, {vr(VA+4+2*h,2)}, {vr(VA+8+2*h,2)}")
    for h in range(2): A(f"v_pk_add_f32 {vr(8+2*h,2)}, {vr(8+2*h,2)}, {vr(VA+4+2*h,2)}")
    for h in range(2): A(f"v_pk_fma_f32 {vr(8+2*h,2)}, {vr(8+2*h,2)}, {vr(24+2*h,2)}, {vr(16+2*h,2)}")
    A("v_cvt_pk_bf16_f32 v8, v8, v9")
    A("v_cvt_pk_bf16_f32 v9, v10, v11")
    dry_out()
    A("global_store_dwordx2 v13, v[8:9], s[38:39] " + opts.get("of", "").replace("_", " "))
    A("s_mov_b64 exec, 1")
    A("s_cmp_lg_u32 s61, 0")
    A("s_cbranch_scc1 L_noep")
    A(f"v_mov_b32 v10, s{ST}")
    A(f"global_store_dword v38, v10, s[42:43] offset:{WS_E} " + opts.get("of", "").replace("_", " "))
    if opts.get("amp"):
        A("s_waitcnt vmcnt(0)")
        A("s_memrealtime s[66:67]"); A("s_waitcnt lgkmcnt(0)")
        A("s_sub_u32 s66, s66, s78"); A(f"s_mul_i32 s66, s66, {opts['amp']}")
        g.lab("L_xa")
        A("s_sleep 1")
        A("s_memrealtime s[64:65]"); A("s_waitcnt lgkmcnt(0)")
        A("s_sub_u32 s64, s64, s78"); A("s_cmp_lt_u32 s64, s66"); A("s_cbranch_scc1 L_xa")
    g.lab("L_noep")
    g.stamp(2); g.stamp(7, 2)

    g.lab("L_fin")
    if opts.get("stamps"):
        A("s_mov_b64 exec, -1")
        A("s_waitcnt vmcnt(0)")
        g.stamp(8)
        A(f"s_cmp_lg_u32 s5, {opts.get('swave', 0)}")
        A("s_cbranch_scc1 L_end")
        A("s_lshl_b32 s3, s2, 7")
        A(f"s_add_u32 s3, s3, {WS_STAMP}")
        A("v_mov_b32 v2, s3")
        A("s_waitcnt lgkmcnt(0)")
        for i in (range(10) if opts["stamps"] != 3 else (0, 6, 8)):
            A(f"v_mov_b32 v3, s{80+2*i}")
            A(f"global_store_dword v2, v3, s[42:43] offset:{4*i}")
        A(f"v_mov_b32 v3, s{SLOC}")
        A(f"global_store_dword v2, v3, s[42:43] offset:40")
        if opts.get("dbgt"):
            A("s_lshr_b32 s3, s2, 3"); A(f"s_cmp_lg_u32 s3, {opts['dbgt']}"); A("s_cbranch_scc1 L_end")
            A("s_lshl_b32 s3, s8, 2"); A("v_mov_b32 v2, s3")
            A("s_and_b32 s80, s80, 0xffff"); A("s_and_b32 s92, s92, 0xffff")
            A("s_getreg_b32 s3, hwreg(HW_REG_XCC_ID, 0, 4)"); A("s_mul_i32 s3, s3, 100000"); A("s_add_u32 s80, s80, s3")
            A("v_mov_b32 v3, s80"); A("global_store_dword v2, v3, s[40:41]")
            A("v_mov_b32 v3, s92"); A("global_store_dword v2, v3, s[40:41] offset:32")
    g.lab("L_end")
    A("s_endpgm")
    g.L.append(".p2align 7")
    g.lab("L_table")
    for w in range(0, 256, 8):
        A(".long " + ", ".join(f"0x{RM[v][0] | (RM[v][1] << 3) | (SP[v][1] << 9) | (SP[v][0] << 16) | (RK[v] << 26):08x}" for v in range(w, w + 8)))
    g.lab("L_gtab")
    for x in range(8):
        f1 = sorted(t for w, (r, t) in enumerate(RM) if r == C_F1 and w % 8 == x)
        f2 = sorted(set(t // 4 for w, (r, t) in enumerate(RM) if r == C_F2 and w % 8 == x))
        assert f1 == list(range(f1[0], f1[0] + len(f1))) and len(f1) <= 7 and len(f2) == 1
        A(f".long 0x{64*f1[0] | ((64*(f1[-1]+1)-4) << 16):08x}, 0x{128*f2[0]:08x}")
    g.L.append(f'''.section .rodata,"a"
.p2align 6
.amdhsa_kernel {KNAME}
  .amdhsa_next_free_vgpr 168
  .amdhsa_next_free_sgpr 102
  .amdhsa_accum_offset 168
  .amdhsa_group_segment_fixed_size 0
  .amdhsa_kernarg_size 112
  .amdhsa_user_sgpr_count 2
  .amdhsa_user_sgpr_kernarg_segment_ptr 1
  .amdhsa_system_sgpr_workgroup_id_x 1
.end_amdhsa_kernel''')
    return "\n".join(g.L) + "\n"

if __name__ == "__main__":
    import json, os
    here = os.path.dirname(os.path.abspath(__file__))
    opts = {"ref": os.path.join(here, "..", KNAME[:-7] + ".s.ref")}
    out = sys.argv[1]
    for kv in sys.argv[2:]:
        k, v = kv.split("=")
        try: v = int(v)
        except ValueError: pass
        opts[k] = v
    open(out, "w").write(gen(opts))
```

```python
import sys, struct

KNAME = "adaLN_cond__sliding_block_cached__glu_gated_swiglu__decode_kernel"

def f2u(x): return struct.unpack("<I", struct.pack("<f", x))[0]
LOG2E = f2u(1.4426950408889634)
SCALE = f2u(128 ** -0.5)
EPS = f2u(1e-5)

WS_E   = 0x00000
WS_HDR = 0x00400
WS_MOD = 0x01000
WS_Q   = 0x08000
WS_ST  = 0x10000
WS_OP  = 0x20000
WS_HH  = 0x40000
WS_AP  = 0x50000
WS_PRB = 0x80000
WS_STAMP = 0x100000
ACT_BS = 1056
L_ACT = 0
L_QV  = L_ACT + 6400
L_ML  = L_QV + 256
L_PG  = L_ML + 8
L_NR  = L_ML + 12
L_PQ  = L_ML + 16
L_PS  = L_ML + 20
L_MB  = L_ML + 32
L_CNT = L_ML + 64
L_OP  = L_CNT + 64 + 128
L_RED = L_OP + 4096
L_SC  = L_RED + 1024
L_WT  = 20480
L_VX  = L_WT + 65536
assert L_SC + 8192 <= L_WT and L_OP % 16 == 0 and L_SC % 16 == 0

C_NONE, C_WO, C_F1, C_F2, C_MODB, C_MODA, C_Q = 0, 1, 2, 3, 4, 5, 6
RN = {0: "none", 1: "WO", 2: "F1", 3: "F2", 4: "MODB", 5: "MODA", 6: "Q"}
def cls(r, t):
    n = RN[r]
    if r in (C_WO, C_MODB, C_MODA, C_Q) and t % 8 == 3: n += "3"
    if r == C_F2 and t // 4 == 3: n += "3"
    return n
COST = {"Q": 560, "Q3": 610, "WO": 560, "WO3": 600, "MODA": 680, "MODA3": 680, "MODB": 670, "MODB3": 720, "F1": 330, "F2": 170, "F23": 200, "none": 110}
def role_map(mode=3, cost=COST, asc=0, af=1, helpers=None):
    import itertools, random
    mod = lambda t: (C_MODA if t < 16 else C_MODB, t)
    h3 = [(C_Q, t) for t in range(64) if t % 8 == 3] + [mod(t) for t in range(48) if t % 8 == 3]
    hn = [mod(t) for t in range(16) if t % 8 != 3] + [(C_Q, t) for t in range(64) if t % 8 != 3] + [mod(t) for t in range(16, 48) if t % 8 != 3]
    nf1, nn, n3 = {3: ([4, 7, 4, 7, 4, 7, 4, 6], [0, 1, 0, 1, 0, 1, 0, 2], [2, 2, 2, 1, 2, 1, 2, 2]),
                   4: ([6, 5, 6, 5, 6, 5, 5, 5], [0, 1, 0, 1, 0, 1, 1, 1], [2, 2, 2, 1, 2, 1, 2, 2]),
                   5: ([5, 6, 5, 6, 5, 6, 5, 5], [0, 1, 0, 1, 0, 1, 0, 2], [2, 2, 2, 1, 2, 1, 2, 2])}[mode]
    X = []; f = 0
    for x in range(8):
        l = [(C_F2, 4 * x + i) for i in range(4)] + [(C_F1, f + i) for i in range(nf1[x])] + [(C_NONE, 0)] * nn[x]; f += nf1[x]
        X.append(l)
    for i in range(2):
        for x in range(8):
            if i < n3[x]: X[x].append(h3.pop(0))
    while hn:
        for x in range(8):
            if len(X[x]) < 24 and hn: X[x].append(hn.pop(0))
    H = {}
    for x in range(8):
        cand = [rt for k in ((C_F1, C_F2) if af else (C_F2, C_F1)) for rt in X[x] if rt[0] == k]
        H[x] = cand[:2 * (1 + n3[x])]
    if helpers is not None: helpers.update(H)
    allh = set(rt for x in H for rt in H[x])
    c = lambda rt: cost[cls(*rt)] + (asc if rt in allh else 0)
    order = {C_MODA: 0, C_Q: 1, C_WO: 2, C_MODB: 3, C_F1: 4, C_F2: 5, C_NONE: 6}
    R = [None] * 256
    rnd_ = random.Random(1)
    for x in range(8):
        l = X[x]; assert len(l) == 24
        tot = lambda g: c((C_WO, g)) + sum(c(rt) for rt in l[3*g:3*g+3])
        bad = lambda: sum(tot(g) ** 2 for g in range(8))
        for _ in range(4000):
            a, b = rnd_.randrange(24), rnd_.randrange(24); o = bad()
            l[a], l[b] = l[b], l[a]
            if bad() > o: l[a], l[b] = l[b], l[a]
        for g in range(8):
            for s, rt in enumerate(sorted([(C_WO, g)] + l[3*g:3*g+3], key=lambda rt: order[rt[0]])): R[8 * (g + 8 * s) + x] = rt
    for c_, n in ((C_MODA, range(16)), (C_MODB, range(16, 48)), (C_F1, range(43)), (C_F2, range(32)), (C_Q, range(64))):
        assert sorted(t for r, t in R if r == c_) == list(n), c_
    return R
def split_table(RM, cost, nq=0):
    T = [None] * 256
    for x in range(8):
        for g in range(8):
            ws = [8 * (g + 8 * s) + x for s in range(4)]
            c = [cost[w] if isinstance(cost, list) else cost[cls(*RM[w])] for w in ws]
            n = [256 + (sum(c) / 4 - ci) / 16 for ci in c]
            for _ in range(4):
                lo = [min(288, max(224, v)) for v in n]; d = 1024 - sum(lo)
                fr = [i for i in range(4) if (d > 0 and lo[i] < 288) or (d < 0 and lo[i] > 224)]
                n = [v + (d / len(fr) if i in fr else 0) for i, v in enumerate(lo)] if fr else lo
            if nq:
                q, off = nq; import itertools
                base = [int((v - off) // q) * q + off for v in n]
                best = min((c_ for c_ in itertools.product((-q, 0, q), repeat=4) if sum(base) + sum(c_) == 1024 and all(224 <= b + d <= 288 for b, d in zip(base, c_))),
                           key=lambda c_: sorted((b + d - v for b, d, v in zip(base, c_, n)), reverse=True))
                n = [b + d for b, d in zip(base, best)]
            a = [0]
            for v in n: a.append(a[-1] + v)
            a = [int(round(v)) for v in a]; assert a[4] == 1024
            for s, w in enumerate(ws):
                T[w] = (896 + a[s] - 224 * s, a[s + 1] - a[s] - 224); assert 0 <= T[w][1] <= 64
    return T
SPIN_MAX = 1 << 18
ST, SLOC, SXCC = 74, 75, 76

NOTES = {
    "L_nb1": "streaming waves: K then V of this workgroup's keys (range from L_table), 1 KB per load, about 3 loads in flight per wave",
    "L_helper": "helper waves: LDS sentinels, launch tag, role dispatch",
    "L_r_moda": "roles MODA / MODB: 64 columns of silu(c) @ w_mod",
    "L_r_q": "role Q: LayerNorm + modulation + 64 columns of h @ wq",
    "L_r_wo": "role WO: 512 x 64 tile of wo",
    "L_r_f1": "role F1: 32 columns of w1 and w3",
    "L_r_f2": "role F2: 16 columns of w2",
    "L_svc1": "wave 0: fetch q for the streaming waves",
    "L_svc2": "wave 0: max / sum of this split's scores, for the streaming waves (LDS) and for the WO workgroups",
    "L_disp3": "idle-time preparation of the tail",
    "L_join": "the barrier opens when the streaming waves have ended",
    "L_t_wo": "tail WO: gather the group's partial outputs, project, publish",
    "L_t_f1": "tail F1: residual, LayerNorm (applied after the product), gate/up, SwiGLU, publish",
    "L_t_f2": "tail F2: down projection, gated residual, output; advances the epoch word",
    "L_gtab": "per group: byte columns of w1/w3 and of w2 that its workgroups will read",
    "L_table": "per workgroup: role | tile << 3 | extra chunks << 9 | first extra chunk << 16 (chunk = 4 keys) | prefetch share << 26",
}
class G:
    def __init__(s, opts):
        s.L = []; s.o = opts; s.n = 0; s.tail = False; s.help = False
    def A(s, t):
        s.L.append("  " + t)
    def lab(s, t):
        if t in NOTES: s.L.append("; ---- " + NOTES[t])
        s.L.append(t + ":")
    def C(s, t): s.L.append("; ---- " + t)
    def uniq(s, p): s.n += 1; return f"L_{p}_{s.n}"
    def stamp(s, idx, lvl=1):
        m = s.o.get("stamps", 0)
        if m == 3 and idx not in (0, 6, 8): return
        if m and (m == lvl or idx in (0, 6, 8)) and not (lvl == 2 and m == 1):
            s.A(f"s_memrealtime s[{80+2*idx}:{81+2*idx}]")

def vr(a, n): return f"v[{a}:{a+n-1}]"

def wave_allreduce(g, op, v, t):
    A = g.A
    for r in (8, 4, 2, 1):
        A("s_nop 1")
        A(f"{op}_dpp v{v}, v{v}, v{v} row_ror:{r} row_mask:0xf bank_mask:0xf")
    A(f"v_mov_b32 v{t}, v{v}")
    A("s_nop 1")
    A(f"v_permlane16_swap_b32 v{t}, v{v}")
    A(f"{op} v{v}, v{v}, v{t}")
    A(f"v_mov_b32 v{t}, v{v}")
    A("s_nop 1")
    A(f"v_permlane32_swap_b32 v{t}, v{v}")
    A(f"{op} v{v}, v{v}, v{t}")

def rnd(g, d, s=None):
    g.A(f"v_cvt_pk_bf16_f32 v{d}, 0, v{s if s is not None else d}")

def spin_tail(g, l, e, sleep, mult=1):
    A = g.A
    A("s_cmp_eq_u64 vcc, 0")
    A(f"s_cbranch_scc1 {e}")
    if sleep: A(f"s_sleep {sleep}")
    A("s_add_u32 s70, s70, 1")
    A(f"s_cmp_lt_u32 s70, {SPIN_MAX*mult}")
    A(f"s_cbranch_scc1 {l}")
    g.lab(e)

def chk_sentinel(g, regs, tmp):
    A = g.A
    rs = list(regs)
    if len(rs) == 1:
        A(f"v_cmp_eq_u32 vcc, -1, v{rs[0]}")
        return
    if len(rs) == 2:
        A(f"v_max_u32 v{tmp}, v{rs[0]}, v{rs[1]}"); rs = []
    else:
        A(f"v_max3_u32 v{tmp}, v{rs[0]}, v{rs[1]}, v{rs[2]}"); rs = rs[3:]
    while len(rs) >= 2:
        A(f"v_max3_u32 v{tmp}, v{tmp}, v{rs[0]}, v{rs[1]}"); rs = rs[2:]
    if rs: A(f"v_max_u32 v{tmp}, v{tmp}, v{rs[0]}")
    A(f"v_cmp_eq_u32 vcc, -1, v{tmp}")

def poll_tagged(g, loads, tagregs, sleep=0):
    A = g.A
    l = g.uniq("polt"); e = g.uniq("poltd")
    A("s_mov_b32 s70, 0")
    g.lab(l)
    for x in loads: A(x)
    A("s_waitcnt vmcnt(0)")
    for i, r in enumerate(tagregs):
        if i == 0: A(f"v_cmp_ne_u32 vcc, s{ST}, v{r}")
        else:
            A(f"v_cmp_ne_u32 s[68:69], s{ST}, v{r}")
            A("s_or_b64 vcc, vcc, s[68:69]")
    spin_tail(g, l, e, sleep)

def poll_lds(g, loads, regs, tmp, sleep):
    A = g.A
    l = g.uniq("pl"); e = g.uniq("pld")
    A("s_mov_b32 s70, 0")
    g.lab(l)
    for x in loads: A(x)
    A("s_waitcnt lgkmcnt(0)")
    chk_sentinel(g, regs, tmp)
    spin_tail(g, l, e, sleep, 4)

def check_votes(g, va, vt):
    A = g.A
    A(f"v_lshlrev_b32 v{vt+6}, 5, v1")
    A(f"global_load_dword v{vt+5}, v{vt+6}, s[42:43] offset:{WS_HDR+4} sc1")
    A("s_waitcnt vmcnt(0)")
    A(f"v_subrev_u32 v{vt+5}, s{ST}, v{vt+5}")
    A(f"v_cmp_eq_u32 vcc, 1, v{vt+5}")
    A("s_bcnt1_i32_b64 s70, vcc")
    A(f"v_cmp_eq_u32 vcc, 0, v{vt+5}")
    A("s_bcnt1_i32_b64 s71, vcc")
    A("s_cmp_gt_u32 s70, s71")
    A("s_cselect_b32 s71, 4, 0")
    if "near" in g.o: A(f"s_mov_b32 s71, {4*g.o['near']}")
    A(f"s_sub_u32 s68, s{SXCC}, s{ST}")
    A("s_xor_b32 s71, s71, s68"); A("s_and_b32 s71, s71, 4"); A("s_lshl_b32 s71, s71, 11")
    A(f"v_mov_b32 v{vt}, s71")
    A(f"ds_write_b32 v38, v{vt} offset:{L_NR}")

def pub_local(g, ins):
    A = g.A
    l = g.uniq("pf"); e = g.uniq("pe")
    A(f"s_cmp_eq_u32 s{SLOC}, 1")
    A(f"s_cbranch_scc0 {l}")
    A(ins)
    A(f"s_branch {e}")
    g.lab(l)
    A(ins + " sc1")
    g.lab(e)

def hs_signal(g, vt, vt2):
    A = g.A
    A(f"v_mov_b32 v{vt2}, 1")
    A("s_mov_b64 exec, 1")
    A(f"ds_add_u32 v38, v{vt2} offset:{L_CNT}")
    A("s_mov_b64 exec, -1")
def hs_wait(g, target, vt2, sleep=1):
    A = g.A
    l = g.uniq("hs"); e = g.uniq("hsd")
    A("s_mov_b32 s70, 0")
    g.lab(l)
    A(f"ds_read_b32 v{vt2}, v38 offset:{L_CNT}")
    A("s_waitcnt lgkmcnt(0)")
    A(f"v_cmp_gt_u32 vcc, {target}, v{vt2}")
    spin_tail(g, l, e, sleep, 8)
def dma_loop(g, n, step, flags, pace=0):
    A = g.A
    l = g.uniq("dma"); e = g.uniq("dmae")
    if isinstance(n, int):
        A(f"s_add_u32 s51, s50, {n*1024}")
    else:
        A(f"s_add_u32 s51, s50, {n}")
        A("s_cmp_lt_u32 s50, s51")
        A(f"s_cbranch_scc0 {e}")
    g.lab(l)
    A("s_mov_b32 m0, s50")
    A("s_add_u32 s50, s50, 1024")
    if not g.o.get("nodma"):
        A(f"buffer_load_dwordx4 v2, s[44:47], s49 offen {flags} lds")
    A(f"s_add_u32 s49, s49, {step}")
    if pace: A(f"s_waitcnt vmcnt({pace-1})")
    A("s_cmp_lt_u32 s50, s51")
    A(f"s_cbranch_scc1 {l}")
    g.lab(e)

VW, VA = 40, 104

def srd(g, d, base, nbytes):
    A = g.A
    A(f"s_mov_b32 s{d}, s{base}")
    A(f"s_mov_b32 s{d+1}, s{base+1}")
    A(f"s_mov_b32 s{d+2}, {nbytes}")
    A(f"s_mov_b32 s{d+3}, 0x20000")

def tr64_addr(g):
    A = g.A
    A("v_lshrrev_b32 v2, 2, v1")
    A("v_bfe_u32 v3, v1, 1, 1")
    A("s_lshl_b32 s49, s5, 1")
    A("v_or_b32 v3, s49, v3")
    A("v_and_b32 v10, 6, v2")
    A("v_xor_b32 v3, v3, v10")
    A("v_lshlrev_b32 v2, 7, v2")
    A("v_lshl_add_u32 v2, v3, 4, v2")
    A("v_and_b32 v3, 1, v1")
    A("v_lshl_add_u32 v2, v3, 3, v2")
    A(f"v_add_u32 v2, {L_WT}, v2")
def tr_reads(g, nk, mstep, hstep, rot=False):
    A = g.A
    for m in range(nk):
        if rot and m % 4 == 0:
            A(f"s_add_u32 s49, s5, {m//4}"); A("s_and_b32 s49, s49, 3"); A(f"s_mul_i32 s49, s49, {4*mstep}")
            A("v_add_u32 v3, s49, v2")
        for h in range(2):
            if rot: A(f"ds_read_b64_tr_b16 {vr(VW+4*m+2*h,2)}, v3 offset:{(m%4)*mstep+h*hstep}")
            else: A(f"ds_read_b64_tr_b16 {vr(VW+4*m+2*h,2)}, v2 offset:{m*mstep+h*hstep}")
        if m >= 5: A("s_waitcnt lgkmcnt(10)")
    A("s_waitcnt lgkmcnt(0)")
def tr_tile64(g):
    tr64_addr(g)
    tr_reads(g, 16, 4096, 2048)
def gemv_fused(g, vaddr, D):
    A = g.A
    def rd(m):
        for h in range(2):
            A(f"ds_read_b64_tr_b16 {vr(VW+4*m+2*h,2)}, v2 offset:{m*4096+h*2048}")
        A(f"ds_read_b128 {vr(VA+4*m,4)}, v{vaddr} offset:{64*m}")
    for m in range(5): rd(m)
    for m in range(16):
        A(f"s_waitcnt lgkmcnt({3*(min(m+5,16)-m-1)})")
        c = "0" if m == 0 else vr(D, 4)
        A(f"v_mfma_f32_16x16x32_bf16 {vr(D,4)}, {vr(VW+4*m,4)}, {vr(VA+4*m,4)}, {c}")
        if m + 5 < 16: rd(m + 5)
    A("s_nop 7")

def batch_reduce2(g, va, vb, ta, tb):
    A = g.A
    A("s_nop 0")
    for m in ("quad_perm:[1,0,3,2]", "quad_perm:[2,3,0,1]", "row_ror:8"):
        A(f"v_add_f32_dpp v{va}, v{va}, v{va} {m} row_mask:0xf bank_mask:0xf")
        A(f"v_add_f32_dpp v{vb}, v{vb}, v{vb} {m} row_mask:0xf bank_mask:0xf")
        A("s_nop 0")
    for sw in ("v_permlane16_swap_b32", "v_permlane32_swap_b32"):
        A(f"v_mov_b32 v{ta}, v{va}")
        A(f"v_mov_b32 v{tb}, v{vb}")
        A("s_nop 0")
        A(f"{sw} v{ta}, v{va}")
        A(f"{sw} v{tb}, v{vb}")
        A(f"v_add_f32 v{va}, v{va}, v{ta}")
        A(f"v_add_f32 v{vb}, v{vb}, v{tb}")

def ln_partial(g, x):
    A = g.A
    A(f"v_add_f32 v8, v{x}, v{x+1}"); A(f"v_mul_f32 v9, v{x}, v{x}")
    A(f"v_add_f32 v10, v{x+2}, v{x+3}"); A(f"v_mul_f32 v11, v{x+2}, v{x+2}")
    A(f"v_fmac_f32 v9, v{x+1}, v{x+1}"); A(f"v_fmac_f32 v11, v{x+3}, v{x+3}")
    A("v_add_f32 v8, v8, v10"); A("v_add_f32 v9, v9, v11")
    batch_reduce2(g, 8, 9, 10, 11)
    A("ds_write_b64 v5, v[8:9]")
def ln_apply(g, x, t):
    A = g.A
    A(f"ds_read_b128 {vr(t,4)}, v6")
    A(f"ds_read_b128 {vr(t+4,4)}, v6 offset:16")
    A("s_waitcnt lgkmcnt(0)")
    A(f"v_pk_add_f32 {vr(t,2)}, {vr(t,2)}, {vr(t+2,2)}")
    A(f"v_pk_add_f32 {vr(t+4,2)}, {vr(t+4,2)}, {vr(t+6,2)}")
    A(f"v_pk_add_f32 {vr(t,2)}, {vr(t,2)}, {vr(t+4,2)}")
    A(f"v_mul_f32 v8, 0x{f2u(1/512):08x}, v{t}")
    A(f"v_mul_f32 v9, 0x{f2u(1/512):08x}, v{t+1}")
    A("v_fma_f32 v9, -v8, v8, v9")
    rnd(g, 8)
    A("v_max_f32 v9, 0, v9")
    rnd(g, 9)
    for i in range(2): A(f"v_sub_f32 v{x+i}, v{x+i}, v8")
    A(f"v_add_f32 v9, 0x{EPS:08x}, v9")
    for i in range(2, 4): A(f"v_sub_f32 v{x+i}, v{x+i}, v8")
    rnd(g, 9)
    rnd(g, x)
    A("v_sqrt_f32 v9, v9")
    rnd(g, x+1)
    rnd(g, 9)
    rnd(g, x+2)
    A("v_rcp_f32 v9, v9")
    rnd(g, x+3)
    for i in range(4): A(f"v_mul_f32 v{x+i}, v{x+i}, v9")
    for i in range(4): rnd(g, x+i)

def act_addr(g, v, base, bstride):
    A = g.A
    A(f"v_and_b32 v{v}, 1, v1")
    A(f"v_mul_u32_u24 v{v}, {bstride}, v{v}")
    A(f"v_lshrrev_b32 v3, 4, v1")
    A(f"v_lshl_add_u32 v{v}, v3, 4, v{v}")
    if base: A(f"v_add_u32 v{v}, {base}, v{v}")

def gemv(g, nk, vaddr, D):
    A = g.A
    first = min(nk, 12)
    for m in range(first):
        A(f"ds_read_b128 {vr(VA+4*m,4)}, v{vaddr} offset:{64*m}")
    issued = first
    for m in range(nk):
        A(f"s_waitcnt lgkmcnt({issued-m-1})")
        c = "0" if m == 0 else vr(D, 4)
        A(f"v_mfma_f32_16x16x32_bf16 {vr(D,4)}, {vr(VW+4*m,4)}, {vr(VA+4*m,4)}, {c}")
        if issued < nk:
            A(f"ds_read_b128 {vr(VA+4*issued,4)}, v{vaddr} offset:{64*issued}")
            issued += 1
    A("s_nop 7")

def guard(g, r):
    g.A(f"v_min_u32 v{r}, s72, v{r}")

def unpack2(g, d, s):
    g.A(f"v_lshlrev_b32 v{d}, 16, v{s}")
    g.A(f"v_and_b32 v{d+1}, s73, v{s}")
def unpack4(g, d, s, step=1):
    unpack2(g, d, s); unpack2(g, d+2, s+step)

def silu4(g, x, t):
    A = g.A
    for i in range(4): A(f"v_mul_f32 v{t+i}, 0x{LOG2E ^ 0x80000000:08x}, v{x+i}")
    for i in range(4): A(f"v_exp_f32 v{t+i}, v{t+i}")
    A("s_nop 0")
    for i in range(4): A(f"v_add_f32 v{t+i}, 1.0, v{t+i}")
    for i in range(4): A(f"v_rcp_f32 v{t+i}, v{t+i}")
    A("s_nop 0")
    for i in range(4): A(f"v_mul_f32 v{x+i}, v{x+i}, v{t+i}")

EX8 = ["s_mov_b32 exec_lo, 0x00030003", "s_mov_b32 exec_hi, 0x00030003"]

def gen(opts):
    g = G(opts); A = g.A
    D = opts.get("D", 3); NS = 36; NO = 8; NL = opts.get("NL", 8)
    LDS_BYTES = L_VX + 8192 * NL
    cost = dict(COST)
    for k in list(cost):
        if "c" + k in opts: cost[k] = opts["c" + k]
    HLP = {}
    ASCOST = opts.get("asc", 120)
    RM = role_map(opts.get("rmode", 4), cost, ASCOST, opts.get("af", 1), HLP)
    opts["_RM"] = RM
    if opts.get("even"): cost = {k: 0 for k in cost}
    AS = opts.get("as", 40); ASC = [0] * 256
    if AS:
        for x in range(8):
            slow = [(r, t) for w, (r, t) in enumerate(RM) if w % 8 == x and cls(r, t)[-1] == "3" and r != C_F2]
            help_ = [RM.index(rt) for rt in HLP[x]]
            for i, (r, t) in enumerate(sorted(slow, reverse=True)):
                for p in range(2): ASC[help_[2*i+p]] = p | ((t >> 3) << 1) | ({C_Q: 1, C_WO: 2}.get(r, 3) << 4)
    SP = split_table(RM, [cost[cls(*RM[w])] + (ASCOST if ASC[w] else 0) for w in range(256)],
                     {0: 0, 1: (8, 4), 2: (8, 0), 3: (4, 0)}[opts.get("nq", 3)])
    free = lambda w: RM[w][0] in (C_NONE, C_MODA, C_MODB, C_Q)
    RK = [sum(1 for v in range(w % 8, w, 8) if free(v)) & 15 if free(w) else ASC[w] for w in range(256)]
    WFL = opts.get("wflags", "nt").replace("_", " ")
    hdr = open(opts["ref"]).read().split("; Override launch")[0]
    g.L.append(hdr.rstrip("\n"))
    g.L.append(""";
;    answers first), the load depth per die, L2 prefetches and the sizes of the key ranges only affect speed.""")
    g.L.append(f"; @launch grid=(256,1,1) block=(768,1,1) lds={LDS_BYTES}")
    g.L.append('.amdgcn_target "amdgcn-amd-amdhsa--gfx950"\n.text')
    g.L.append(f".globl {KNAME}\n.p2align 8\n.type {KNAME},@function\n{KNAME}:")
    A("s_cmpk_ge_u32 s2, 256")
    A("s_cbranch_scc1 L_end")
    A("s_load_dwordx2 s[44:45], s[0:1], 8")
    g.stamp(0)
    A("v_readfirstlane_b32 s5, v0")
    A("s_and_b32 s6, s2, 63")
    A("s_lshr_b32 s7, s2, 6")
    A("s_lshr_b32 s5, s5, 6")
    A("v_and_b32 v1, 63, v0")
    A("s_cmp_lt_u32 s5, 4")
    A("s_cbranch_scc1 L_helper")

    RB = 24
    def slot(j): return RB + 4 * j
    A("s_lshl_b32 s10, s6, 22")
    A("s_lshl_b32 s11, s5, 9")
    A("s_add_u32 s11, s11, s10")
    A(f"s_add_u32 s11, s11, {0x300000-4*512}")
    A("v_lshrrev_b32 v3, 5, v1")
    A("v_lshl_add_u32 v2, v1, 4, s11")
    A(f"v_mul_u32_u24 v3, {32768-512}, v3")
    A(f"s_mul_i32 s12, s2, {opts.get('rot2', 9)}"); A("s_lshr_b32 s12, s12, 3")
    A(f"s_and_b32 s12, s12, {opts.get('rm', 15)}")
    A("s_mul_i32 s58, s7, 28")
    A("v_add_u32 v2, v2, v3")
    A("s_add_u32 s12, s12, s58")
    A("s_and_b32 s13, s12, -8"); A("s_add_u32 s12, s12, s13"); A("s_lshl_b32 s12, s12, 12")
    A("s_lshl_b32 s46, 1, 28"); A("s_lshl_b32 s47, 1, 17")
    A(f"s_mov_b32 s19, {0x9000}")
    XR = opts.get("xr", 0)
    if XR:
        A(f"s_and_b32 s18, s5, {XR}"); A("s_lshl_b32 s18, s18, 12")
    def phys(r):
        if not XR: return f"s{r}"
        A(f"s_xor_b32 s17, s{r}, s{18 if r == 12 else 16}"); return "s17"
    def nextrow(r): A(f"s_add_u32 s{r}, s{r}, s19"); A(f"s_bitset0_b32 s{r}, 15")
    A("s_waitcnt lgkmcnt(0)")
    def sched(txt):
        out = []
        for part in str(txt).split(","):
            p, _, u = part.partition(".")
            out.append(([int(c) for c in p], int(u) if u else 999))
        return lambda j: next(p[j % len(p)] for p, u in out if j < u)
    SCH = sched(opts.get("sch", D)); SCE = sched(opts.get("sce", "332")); XM = opts.get("xm", 0x55)
    D0 = opts.get("D0", 3); JB = NO - 1 + D0
    step = [D0]
    def throttle(_=None):
        j = step[0]; step[0] += 1
        d = SCH(j); e = SCE(j)
        assert max(d, e) <= D
        A(f"s_waitcnt vmcnt({max(d, e)-1})")
        if e != d:
            l = g.uniq("th")
            A("s_bitcmp0_b32 s68, 0")
            A(f"s_cbranch_scc{1 if e < d else 0} {l}")
            A(f"s_waitcnt vmcnt({min(d, e)-1})")
            g.lab(l)
    def issue(t, i, lds=None):
        if i < NO:
            A(f"buffer_load_dwordx4 {vr(slot(i),4)}, v0, s[{44+4*t}:{47+4*t}], {phys(13)} offen nt")
            nextrow(13)
            return
        if lds is not None:
            A(f"s_add_u32 m0, s15, {lds*1024}")
            if not XR: A("s_nop 0")
            A(f"buffer_load_dwordx4 v2, s[{44+4*t}:{47+4*t}], {phys(12)} offen nt lds")
        else:
            A(f"buffer_load_dwordx4 {vr(slot(i),4)}, v2, s[{44+4*t}:{47+4*t}], {phys(12)} offen nt")
        if (t, i) == (1, NS - 1): return
        nextrow(12)
        if i >= NO + 12:
            A("s_cmp_ge_u32 s12, s59")
            A("s_cselect_b32 s12, s58, s12")
    def optional(i, body):
        l = g.uniq("opt")
        A(f"s_cmp_gt_u32 s60, {i}")
        A(f"s_cbranch_scc1 {l}")
        body()
        g.lab(l)
    def optionals(t, between=None):
        l = g.uniq("opts")
        A("s_mov_b32 s13, s61")
        for i in range(NO - 1, -1, -1):
            A(f"s_cmp_gt_u32 s60, {i}")
            A(f"s_cbranch_scc1 {l}")
            throttle("o"); issue(t, i)
        g.lab(l)
    g.lab("L_nb1")
    for j in range(NO, NS):
        if j >= NO + D0: throttle(j)
        issue(0, j)
        if j == JB:
            if opts.get("pst"): g.stamp(2)
            A("s_getpc_b64 s[56:57]")
            g.lab("L_pc")
            A("s_lshl_b32 s3, s2, 2")
            A("s_add_u32 s3, s3, L_table-L_pc")
            A("s_load_dword s14, s[56:57], s3")
            A("s_load_dwordx2 s[48:49], s[0:1], 16")
            A("s_load_dwordx4 s[20:23], s[0:1], 24")
            A("s_load_dwordx2 s[28:29], s[0:1], 80")
            A("s_load_dwordx2 s[42:43], s[0:1], 104")
            A("s_getreg_b32 s68, hwreg(HW_REG_XCC_ID, 0, 3)"); A(f"s_lshr_b32 s68, {XM}, s68")
            A("s_barrier")
            A("s_sub_u32 s9, s5, 4")
            A("s_mov_b64 s[50:51], s[46:47]")
            A("s_mov_b32 s52, 0xcccccccc"); A("s_mov_b32 s53, 0xcccccccc")
            A("s_mov_b32 s54, 0xaaaaaaaa"); A("s_mov_b32 s55, 0xaaaaaaaa")
            A(f"s_mul_i32 s15, s9, {NL*1024}")
            A(f"s_add_u32 s15, s15, {L_VX}")
            A("s_add_u32 s59, s58, 28")
            for r in (58, 59): A(f"s_and_b32 s13, s{r}, -8"); A(f"s_add_u32 s{r}, s{r}, s13"); A(f"s_lshl_b32 s{r}, s{r}, 12")
            A("s_lshl_b32 s13, s9, 9")
            A("v_subrev_u32 v0, s13, v2")
            A("v_mov_b32 v4, 0")
            A("v_lshrrev_b32 v5, 3, v1")
            A("v_and_b32 v6, 6, v5")
            A("v_xor_b32 v6, v6, v1")
            A("v_and_b32 v6, 7, v6")
            A("s_lshl_b32 s33, s9, 6")
            A("s_movk_i32 s26, 6144"); A(f"s_mov_b32 s30, {512*6144}"); A("s_mov_b32 s31, s47")
            A("s_lshl_b32 s34, s9, 13"); A(f"s_add_u32 s34, s34, {L_WT}"); A("s_add_u32 s35, s34, 8192")
            A("s_and_b32 s36, s2, 7"); A("s_lshl_b32 s36, s36, 1"); A("s_and_b32 s37, s9, 1"); A("s_add_u32 s36, s36, s37")
            A("s_lshr_b32 s37, s9, 1"); A("s_lshl_b32 s37, s37, 4"); A("s_add_u32 s36, s36, s37"); A("s_lshl_b32 s36, s36, 6")
            A("s_waitcnt lgkmcnt(0)")
            A("s_and_b32 s27, s14, 7")
            A(f"s_cmp_eq_u32 s27, {C_Q}")
            A("s_cselect_b64 s[28:29], s[20:21], s[28:29]"); A("s_cselect_b32 s26, 0x2000, s26"); A("s_cselect_b32 s30, 0x400000, s30")
            A(f"s_cmp_eq_u32 s27, {C_WO}")
            A("s_cselect_b64 s[28:29], s[22:23], s[28:29]"); A("s_cselect_b32 s26, 0x400, s26"); A("s_cselect_b32 s30, 0x400000, s30")
            A("s_cselect_b32 s33, s36, s33")
            A(f"s_cselect_b32 s27, {C_MODB}, s27")
            A("v_mul_u32_u24 v5, s26, v5")
            A("v_lshl_add_u32 v5, v6, 4, v5")
            A("v_mov_b32 v6, 1")
            A("s_mul_i32 s33, s33, s26")
            A("s_bfe_u32 s32, s14, 0x60003"); A("s_lshl_b32 s32, s32, 7"); A("s_add_u32 s33, s33, s32")
            A("s_lshl_b32 s26, s26, 3")
            l = g.uniq("wl"); e = g.uniq("we")
            A(f"s_cmp_lt_u32 s27, {C_MODB}"); A(f"s_cbranch_scc1 {e}")
            g.lab(l)
            A("s_mov_b32 m0, s34")
            A(f"s_waitcnt vmcnt({opts.get('wd', 5)-1})")
            if not opts.get("nodma"): A(f"buffer_load_dwordx4 v5, s[28:31], s33 offen {WFL} lds")
            A("s_add_u32 s33, s33, s26")
            A("s_addk_i32 s34, 1024")
            A("s_cmp_lt_u32 s34, s35"); A(f"s_cbranch_scc1 {l}")
            g.lab(e)
        if j == JB + D:
            e = g.uniq("ws")
            A(f"s_cmp_lt_u32 s27, {C_MODB}"); A(f"s_cbranch_scc1 {e}")
            A("s_mov_b64 exec, 1")
            A(f"ds_add_u32 v4, v6 offset:{L_CNT}")
            A("s_mov_b64 exec, -1")
            g.lab(e)
        if j == opts.get("JO", 30):
            A("s_bfe_u32 s61, s14, 0xa0010")
            A("s_add_u32 s61, s61, s9")
            if XR: A(f"s_and_b32 s16, s61, {XR}"); A("s_lshl_b32 s16, s16, 12")
            A("s_and_b32 s13, s61, -64"); A("s_add_u32 s61, s61, s13"); A("s_lshl_b32 s61, s61, 9")
            A("s_bfe_u32 s60, s14, 0x70009")
            A("s_sub_u32 s60, s9, s60"); A("s_add_u32 s60, s60, 64"); A("s_lshr_b32 s60, s60, 3")
            A("v_bfrev_b32 v3, v1")
            A("v_lshrrev_b32 v3, 28, v3")
            A("v_cmp_gt_u32 s[66:67], s60, v3")
            A("v_and_b32 v3, 15, v1")
            A("v_lshlrev_b32 v3, 4, v3")
            optionals(0)
        if j == opts.get("JQ", 26): A(f"ds_write_b32 v4, v4 offset:{L_PQ}")
        if j == opts.get("JG", 38): A(f"ds_write_b32 v4, v4 offset:{L_PG}")
    for k in range(NL):
        throttle(NS + k)
        issue(1, NO + k, lds=k)
        if NS + k == opts.get("JG", 38): A(f"ds_write_b32 v4, v4 offset:{L_PG}")
    g.stamp(1)
    T, X = 8, 16
    NOCOMP = opts.get("nocomp", 0)
    if not NOCOMP:
        poll_lds(g, [f"ds_read_b128 v[4:7], v3 offset:{L_QV}"], [4, 5, 6, 7], 8, 2)
    if not opts.get("pst"): g.stamp(2)
    A(f"s_waitcnt vmcnt({NL})")
    nxt = NO + NL
    for G_ in (1, 2, 3, 4, 0):
        ne = 4 if G_ == 4 else 8
        if not NOCOMP:
            for tt in range(4):
                for e in range(ne):
                    c = "0" if tt == 0 else f"v{T+e}"
                    A(f"v_dot2_f32_bf16 v{T+e}, v{slot(8*G_+e)+tt}, v{4+tt}, {c}")
        if str(G_) in str(opts.get("qki", 30)) and nxt < 8 * ((G_ or 4) + 1):
            if NOCOMP: throttle(99)
            issue(1, nxt); nxt += 1
        if NOCOMP: continue
        for e in range(0, ne, 2):
            A(f"v_add_f32_dpp v{T+e}, v{T+e}, v{T+e} row_ror:8 row_mask:0xf bank_mask:0x3")
            A(f"v_add_f32_dpp v{T+e}, v{T+e+1}, v{T+e+1} row_ror:8 row_mask:0xf bank_mask:0xc")
        if ne == 4: A("s_nop 0")
        for h in range(ne // 4):
            d = 3 if G_ == 4 else X + 2 * G_ + h
            A(f"v_add_f32_dpp v{d}, v{T+4*h}, v{T+4*h} row_shl:4 row_mask:0xf bank_mask:0x5")
            A(f"v_add_f32_dpp v{d}, v{T+4*h+2}, v{T+4*h+2} row_shr:4 row_mask:0xf bank_mask:0xa")
    PR = [4, 6, 20]
    if NOCOMP:
        for n in range(4): A(f"v_mov_b32 v{X+n}, 1.0")
    else:
        A("v_add_f32_dpp v3, v3, v3 quad_perm:[2,3,0,1] row_mask:0xf bank_mask:0xf")
        for n in (2, 3, 4, 5, 6, 7, 0, 1):
            A(f"v_add_f32_dpp v{X+n}, v{X+n}, v{X+n} quad_perm:[2,3,0,1] row_mask:0xf bank_mask:0xf")
        for n in range(4):
            A(f"v_cndmask_b32 v{T+n}, v{X+2*n}, v{X+2*n+1}, s[52:53]")
        A(f"v_add_f32_dpp v{X+2}, v3, v3 quad_perm:[1,0,3,2] row_mask:0xf bank_mask:0xf")
        for n in range(4):
            A(f"v_add_f32_dpp v{T+n}, v{T+n}, v{T+n} quad_perm:[1,0,3,2] row_mask:0xf bank_mask:0xf")
        for n in range(2):
            A(f"v_cndmask_b32 v{X+n}, v{T+2*n}, v{T+2*n+1}, s[54:55]")
        for n in range(3): rnd(g, X+n)
        for n in range(3): A(f"v_mul_f32 v{X+n}, 0x{SCALE:08x}, v{X+n}")
        for n in range(3): rnd(g, X+n)
        A(f"v_mov_b32 v{X+3}, 0xff800000")
        A("s_mov_b32 s52, 0xeeeeeeee"); A("s_mov_b32 s53, 0xeeeeeeee")
        A(f"v_cndmask_b32 v{X}, v{X}, v{X+3}, s[66:67]")
        A(f"v_cndmask_b32 v{X+2}, v{X+2}, v{X+3}, s[52:53]")
    A("s_lshl_b32 s11, s9, 10")
    A("v_lshl_add_u32 v3, v1, 4, s11")
    A(f"ds_write_b128 v3, v[{X}:{X+3}] offset:{L_SC}")
    g.stamp(3)
    while True:
        throttle(99); issue(1, nxt); nxt += 1
        if nxt - NO - NL >= D: break
    A("v_lshl_add_u32 v3, v1, 4, s15")
    for k in range(NL):
        A(f"ds_read_b128 {vr(slot(NO+k),4)}, v3 offset:{k*1024}")
    A(f"v_max3_f32 v22, v{X}, v{X+1}, v{X+2}")
    wave_allreduce(g, "v_max_f32", 22, 23)
    for n in range(3): A(f"v_sub_f32 v{X+n}, v{X+n}, v22")
    for n in range(3): A(f"v_mul_f32 v{X+n}, 0x{LOG2E:08x}, v{X+n}")
    for n in range(3): A(f"v_exp_f32 v{X+n}, v{X+n}")
    A("s_nop 0")
    for n in range(3):
        A(f"v_cvt_pk_bf16_f32 v{PR[n]}, v{X+n}, 0")
        A(f"v_cvt_pk_bf16_f32 v{PR[n]+1}, 0, v{X+n}")
    for e in range(8): A(f"v_mov_b32 v{T+e}, 0")
    A("s_lshl_b32 s11, s9, 9")
    A("v_and_b32 v3, 15, v1")
    A("v_lshlrev_b32 v3, 5, v3")
    A("v_lshrrev_b32 v16, 4, v1")
    A("v_lshl_add_u32 v3, v16, 3, v3")
    A("v_add_u32 v3, s11, v3")
    A(f"v_mov_b32 v16, {L_ML}")
    def pv(i):
        if NOCOMP: return
        c = ((i & 1) << 3) | (((i >> 1) & 1) << 2) | (((i >> 2) & 1) << 1) | ((i >> 3) & 1)
        pr = PR[i >> 4]
        for tt in range(4):
            for hf in range(2):
                A(f"v_dot2c_f32_bf16_dpp v{T+2*tt+hf}, v{pr+hf}, v{slot(i)+tt} row_newbcast:{c} row_mask:0xf bank_mask:0xf")
    def pvx(i):
        if i < NO: optional(i, lambda: pv(i))
        else: pv(i)
    A("s_waitcnt lgkmcnt(0)")
    per = opts.get("pvper", 3)
    BURST = opts.get("burst", 5)
    order = list(range(NO, nxt)); done = 0
    nm = lambda k: sum(1 for s_ in order[k+1:] if s_ >= NO)
    optionals(1)
    order += list(range(NO - 1, -1, -1))
    rest = list(range(nxt, NS))
    for r, i in enumerate(rest):
        if len(rest) - r > BURST: throttle(99)
        ok = [k for k in range(done, len(order)) if nm(k) >= D - 1] if len(rest) - r > BURST else []
        issue(1, i); order.append(i)
        if i == opts.get("JS", 24): A(f"ds_write_b32 v16, v16 offset:{L_PS-L_ML}")
        for k in ok[:per]: pvx(order[k]); done += 1
    g.stamp(7)
    if not NOCOMP:
        poll_lds(g, ["ds_read_b32 v18, v16"], [18], 17, 2)
    g.stamp(4)
    A("v_sub_f32 v22, v22, v18")
    A(f"v_mul_f32 v22, 0x{LOG2E:08x}, v22")
    A("v_exp_f32 v22, v22")
    A(f"ds_read_b64 v[18:19], v16 offset:{L_MB-L_ML}")
    A("s_lshl_b32 s56, s6, 2"); A("s_add_u32 s56, s56, s7")
    A("s_lshl_b32 s57, s56, 9"); A(f"s_add_u32 s57, s57, {WS_OP}")
    A("v_lshl_add_u32 v2, v1, 3, s57")
    A("v_and_b32 v17, 1, v1")
    A("v_lshlrev_b32 v17, 4, v17")
    A("v_lshlrev_b32 v1, 3, v1")
    A("v_mov_b32 v0, 1")
    A("s_movk_i32 s56, 0xff")
    A("s_waitcnt lgkmcnt(0)")
    A(f"v_readfirstlane_b32 s{SLOC}, v19")
    A("v_lshrrev_b32 v18, v17, v18")
    A("v_lshrrev_b32 v19, 8, v18")
    while done < NS:
        if nm(done) < D + BURST: A(f"s_waitcnt vmcnt({nm(done)})")
        pvx(order[done]); done += 1
    g.stamp(5); g.stamp(5, 2)
    A("s_nop 2")
    for j in range(4):
        A(f"v_permlane32_swap_b32 v{T+j}, v{T+j+4}")
    for j in range(4):
        A(f"v_add_f32 v{T+j}, v{T+j}, v{T+j+4}")
    A("s_nop 0")
    for j in range(2):
        A(f"v_permlane16_swap_b32 v{T+j}, v{T+j+2}")
    for j in range(2):
        A(f"v_add_f32 v{T+j}, v{T+j}, v{T+j+2}")
    for j in range(2):
        A(f"v_mul_f32 v{T+j}, v{T+j}, v22")
    A(f"ds_write_b64 v3, v[{T}:{T+1}] offset:{L_OP}")
    A("s_mov_b64 exec, 1")
    A(f"ds_add_rtn_u32 v17, v16, v0 offset:{L_CNT+4-L_ML}")
    A("s_mov_b64 exec, -1")
    PA = slot(NO)
    for i in range(8):
        A(f"ds_read_b64 {vr(PA+2*i,2)}, v1 offset:{L_OP+512*i}")
    for i in range(4):
        A(f"s_waitcnt lgkmcnt({6-2*i})")
        if i == 0: A("v_readfirstlane_b32 s57, v17")
        A(f"v_pk_add_f32 {vr(PA+4*i,2)}, {vr(PA+4*i,2)}, {vr(PA+4*i+2,2)}")
    A(f"v_pk_add_f32 {vr(PA,2)}, {vr(PA,2)}, {vr(PA+4,2)}")
    A(f"v_pk_add_f32 {vr(PA+8,2)}, {vr(PA+8,2)}, {vr(PA+12,2)}")
    A("s_cmp_lg_u32 s57, 7")
    A(f"v_pk_add_f32 {vr(PA,2)}, {vr(PA,2)}, {vr(PA+8,2)}")
    A(f"v_bfi_b32 v18, s56, v18, v{PA}")
    A(f"v_bfi_b32 v19, s56, v19, v{PA+1}")
    A("s_cbranch_scc1 L_send")
    if not opts.get("nohelp") in (1, 2): pub_local(g, "global_store_dwordx2 v2, v[18:19], s[42:43]")
    g.lab("L_send")
    if opts.get("stamps") in (1, 2): g.stamp(6)
    A("s_barrier")
    if opts.get("stamps") in (1, 2):
        A("s_lshl_b32 s3, s2, 7")
        A("s_lshl_b32 s4, s9, 2")
        A("s_add_u32 s4, s4, s3")
        A(f"s_add_u32 s4, s4, {WS_STAMP+96}")
        A("v_mov_b32 v2, s4")
        A("s_waitcnt lgkmcnt(0)")
        A("v_mov_b32 v3, s92")
        A("global_store_dword v2, v3, s[42:43]")
        A("s_cmp_lg_u32 s5, 4")
        A("s_cbranch_scc1 L_end")
        A(f"s_add_u32 s3, s3, {WS_STAMP+64}")
        A("v_mov_b32 v2, s3")
        A("s_waitcnt lgkmcnt(0)")
        for i in range(8):
            A(f"v_mov_b32 v3, s{80+2*i}")
            A(f"global_store_dword v2, v3, s[42:43] offset:{4*i}")
    A("s_endpgm")

    g.lab("L_helper")
    g.help = True
    if opts.get("nohelp") == 1: A("s_endpgm")
    def h_loads():
        A("s_getpc_b64 s[56:57]")
        g.lab("L_pc2")
        A("s_lshl_b32 s3, s2, 2")
        A("s_add_u32 s3, s3, L_table-L_pc2")
        A("s_load_dwordx16 s[16:31], s[0:1], 0")
        A("s_load_dword s14, s[56:57], s3")
        A("s_load_dwordx8 s[32:39], s[0:1], 64")
        A("s_load_dwordx4 s[40:43], s[0:1], 96")
        A("s_and_b32 s8, s2, 7")
        A("s_mov_b64 s[100:101], s[56:57]")
        if opts.get("amp"): A("s_memrealtime s[78:79]")
        A("s_mov_b32 s72, 0xfffffffe")
        A("s_mov_b32 s73, 0xffff0000")
    def h_init():
        A("v_mov_b32 v4, -1"); A("v_mov_b32 v5, -1"); A("v_mov_b32 v6, -1"); A("v_mov_b32 v7, -1")
        A("v_lshlrev_b32 v2, 4, v0")
        A(f"ds_write_b128 v2, v[4:7] offset:{L_SC}")
        A(f"ds_write_b128 v2, v[4:7] offset:{L_SC+4096}")
        A("v_lshlrev_b32 v2, 2, v1")
        A(f"ds_write_b32 v2, v4 offset:{L_QV}")
        A("v_mov_b32 v38, 0")
        A(f"ds_write_b128 v38, v[4:7] offset:{L_ML}")
        A(f"ds_write_b128 v38, v[4:7] offset:{L_PQ}")
        A("v_mov_b32 v39, 0")
        A(f"ds_write_b64 v38, v[38:39] offset:{L_CNT}")
    h_init()
    A("s_waitcnt lgkmcnt(0)")
    A("s_barrier")
    h_loads()
    A(f"s_getreg_b32 s{SXCC}, hwreg(HW_REG_XCC_ID, 0, 4)")
    A("v_lshrrev_b32 v12, 3, v0")
    A("v_lshlrev_b32 v12, 5, v12")
    A("v_bfe_u32 v3, v1, 2, 1")
    A("v_lshl_add_u32 v12, v3, 10, v12")
    A("v_and_b32 v8, 3, v1")
    A("v_lshl_add_u32 v13, v8, 3, v12")
    A("v_and_b32 v12, 0xffffffdf, v12")
    A("v_lshl_add_u32 v12, v8, 4, v12")
    A("v_bfe_u32 v8, v1, 3, 1")
    A("v_lshl_add_u32 v12, v8, 3, v12")
    A("v_lshl_add_u32 v12, v3, 5, v12")
    A("s_waitcnt lgkmcnt(0)")
    A(f"s_load_dword s{ST}, s[42:43], {WS_E}")
    A("s_and_b32 s13, s14, 7")
    A("s_bfe_u32 s61, s14, 0x60003")
    A(f"s_cmp_eq_u32 s13, {C_Q}"); A("s_cbranch_scc1 L_r_q")
    A(f"s_cmp_ge_u32 s13, {C_MODB}"); A("s_cbranch_scc1 L_r_moda")
    A(f"s_cmp_eq_u32 s13, {C_WO}"); A("s_cbranch_scc1 L_r_wo")
    if AS:
        g.C("some F1 / F2 workgroups pull the later rows of a slow-loading weight tile of their group into L2 (values unused)")
        A("s_lshr_b32 s48, s14, 30")
        A("s_cmp_eq_u32 s48, 0"); A("s_cbranch_scc1 L_noas")
        A("s_bfe_u32 s49, s14, 0x1001a"); A("s_lshl_b32 s49, s49, 2"); A("s_add_u32 s49, s49, s5")
        A("s_lshl_b32 s50, s49, 6")
        A("s_lshr_b32 s51, s49, 1"); A("s_lshl_b32 s51, s51, 4"); A("s_and_b32 s49, s49, 1"); A("s_add_u32 s51, s51, s49")
        A("s_lshl_b32 s49, s8, 1"); A("s_add_u32 s51, s51, s49"); A("s_lshl_b32 s51, s51, 6")
        A("s_movk_i32 s52, 6144"); A("s_mov_b64 s[54:55], s[36:37]")
        A("s_cmp_eq_u32 s48, 1"); A("s_cselect_b32 s52, 0x2000, s52"); A("s_cselect_b64 s[54:55], s[22:23], s[54:55]")
        A("s_cmp_eq_u32 s48, 2"); A("s_cselect_b32 s52, 0x400, s52"); A("s_cselect_b64 s[54:55], s[24:25], s[54:55]"); A("s_cselect_b32 s50, s51, s50")
        A("s_bfe_u32 s49, s14, 0x3001b"); A("s_lshl_b32 s49, s49, 10"); A("s_add_u32 s49, s49, 384")
        A(f"v_max_u32 v2, {64-AS}, v1")
        A("v_add_u32 v2, s50, v2")
        A("v_mul_u32_u24 v2, s52, v2")
        A("v_add_u32 v2, s49, v2")
        A("global_load_dword v167, v2, s[54:55]")
        g.lab("L_noas")
    A(f"s_cmp_eq_u32 s13, {C_F1}"); A("s_cbranch_scc1 L_r_f1")
    A(f"s_cmp_eq_u32 s13, {C_F2}"); A("s_cbranch_scc1 L_r_f2")
    A("s_branch L_r_none")

    def make_tag():
        A("s_waitcnt lgkmcnt(0)")
        A(f"s_mul_i32 s{ST}, s{ST}, 0x9e3779b1")
        A(f"s_add_u32 s{ST}, s{ST}, 0x7f4a7c15")
        A(f"s_add_u32 s{SXCC}, s{SXCC}, s{ST}")
    def line_out_addr(v, bsh=6, ush=7):
        A(f"v_and_b32 v{v}, 1, v1")
        A(f"v_lshlrev_b32 v{v}, {bsh}, v{v}")
        A("v_lshrrev_b32 v3, 4, v1")
        A(f"v_lshl_add_u32 v{v}, v3, 4, v{v}")
        A(f"s_lshl_b32 s49, s5, {ush}")
        A("s_add_u32 s49, s49, s58")
        A(f"v_add_u32 v{v}, s49, v{v}")
    def pack_tagged():
        A("v_cvt_pk_bf16_f32 v8, v8, v9")
        A("v_cvt_pk_bf16_f32 v10, v10, v11")
        A(f"v_mov_b32 v9, s{ST}")
        A(f"v_mov_b32 v11, s{ST}")
    def ln_addrs():
        A("v_bfe_u32 v6, v1, 2, 1")
        A("v_lshlrev_b32 v6, 5, v6")
        A(f"v_add_u32 v6, {L_RED}, v6")
        A("s_lshl_b32 s49, s5, 3")
        A("v_add_u32 v5, s49, v6")

    def mod_params():
        A("s_lshl_b32 s58, s61, 9")
        A(f"s_add_u32 s58, s58, {WS_MOD}")
    def mod_act():
        unpack4(g, 16, 14)
        silu4(g, 16, 20)
        A("v_cvt_pk_bf16_f32 v14, v16, v17")
        A("v_cvt_pk_bf16_f32 v15, v18, v19")
        A(f"ds_write_b64 v12, v[14:15] offset:{L_ACT}")
    def mod_finish():
        line_out_addr(13)
        act_addr(g, 14, L_ACT, ACT_BS)
        tr64_addr(g)
        A("s_waitcnt lgkmcnt(0)")
        hs_signal(g, 8, 9); hs_wait(g, 12, 9, 2)
        g.stamp(1)
        gemv_fused(g, 14, 8)
        pack_tagged()
        for x in EX8: A(x)
        A("global_store_dwordx4 v13, v[8:11], s[42:43] sc1")
        A("s_mov_b64 exec, -1")
        g.stamp(2)

    g.lab("L_r_moda")
    mod_params()
    A("global_load_dwordx2 v[14:15], v13, s[34:35]")
    make_tag()
    A("s_waitcnt vmcnt(0)")
    mod_act()
    mod_finish()
    A("s_mov_b32 s60, 0")
    A("s_branch L_svc1")

    g.lab("L_r_q")
    A("s_lshl_b32 s58, s61, 9")
    A(f"s_add_u32 s58, s58, {WS_Q}")
    A("global_load_dwordx2 v[14:15], v13, s[16:17]")
    make_tag()
    A("s_waitcnt vmcnt(0)")
    ln_addrs()
    unpack4(g, 20, 14)
    ln_partial(g, 20)
    A("s_waitcnt lgkmcnt(0)")
    hs_signal(g, 8, 9); hs_wait(g, 12, 9, 4)
    ln_apply(g, 20, 24)
    tr_tile64(g)
    line_out_addr(13)
    act_addr(g, 14, L_ACT, ACT_BS)
    A("v_lshlrev_b32 v15, 4, v0")
    A(f"v_add_u32 v15, {WS_MOD}, v15")
    A("v_add_u32 v36, 0x1000, v15")
    poll_lds(g, [f"ds_read_b32 v8, v38 offset:{L_PQ}"], [8], 9, 8)
    g.stamp(1)
    A("s_mov_b64 s[64:65], -1"); A("s_mov_b64 s[66:67], -1")
    A("s_mov_b32 s70, 0")
    g.lab("L_q_p")
    A("s_mov_b64 exec, s[64:65]")
    A("global_load_dwordx4 v[16:19], v15, s[42:43] sc1")
    A("s_mov_b64 exec, s[66:67]")
    A("global_load_dwordx4 v[32:35], v36, s[42:43] sc1")
    A("s_mov_b64 exec, -1")
    A("s_waitcnt vmcnt(0)")
    A(f"v_cmp_ne_u32 s[64:65], s{ST}, v17"); A(f"v_cmp_ne_u32 s[68:69], s{ST}, v19"); A("s_or_b64 s[64:65], s[64:65], s[68:69]")
    A(f"v_cmp_ne_u32 s[66:67], s{ST}, v33"); A(f"v_cmp_ne_u32 s[68:69], s{ST}, v35"); A("s_or_b64 s[66:67], s[66:67], s[68:69]")
    A("s_or_b64 vcc, s[64:65], s[66:67]")
    spin_tail(g, "L_q_p", "L_q_ok", opts.get("msleep", 0))
    g.stamp(7)
    unpack4(g, 28, 32, 2)
    unpack4(g, 24, 16, 2)
    for i in range(4): A(f"v_add_f32 v{28+i}, 1.0, v{28+i}")
    for i in range(4): rnd(g, 28+i)
    for i in range(4): A(f"v_mul_f32 v{20+i}, v{20+i}, v{28+i}")
    for i in range(4): rnd(g, 20+i)
    for i in range(4): A(f"v_add_f32 v{20+i}, v{20+i}, v{24+i}")
    A("v_cvt_pk_bf16_f32 v16, v20, v21")
    A("v_cvt_pk_bf16_f32 v17, v22, v23")
    A(f"ds_write_b64 v12, v[16:17] offset:{L_ACT}")
    hs_signal(g, 8, 9); hs_wait(g, 16, 9, 0)
    gemv(g, 16, 14, 8)
    pack_tagged()
    guard(g, 8); guard(g, 10)
    for x in EX8: A(x)
    A("global_store_dwordx4 v13, v[8:11], s[42:43] sc1")
    A("s_mov_b64 exec, -1")
    g.stamp(2)
    A("s_mov_b32 s60, 0")
    A("s_branch L_svc1")

    g.lab("L_r_wo")
    A("s_and_b32 s66, s2, 7")
    A("s_lshr_b32 s58, s66, 1"); A("s_lshl_b32 s58, s58, 14")
    A("s_and_b32 s49, s66, 1"); A("s_lshl_b32 s49, s49, 12"); A("s_add_u32 s58, s58, s49")
    A("s_lshl_b32 s49, s61, 9")
    A("s_add_u32 s58, s58, s49")
    A(f"s_add_u32 s58, s58, {WS_AP}")
    make_tag()
    g.C("wave 3 races loads of fresh lines on either memory side and votes which hand-off copy its die should read (speed only)")
    e = g.uniq("nr"); l = g.uniq("nrl")
    A("s_cmp_lg_u32 s5, 3"); A(f"s_cbranch_scc1 {e}")
    A("s_lshl_b32 s49, s61, 14")
    A("s_lshl_b32 s50, s8, 10"); A("s_add_u32 s49, s49, s50"); A(f"s_add_u32 s49, s49, {WS_PRB}")
    A(f"s_add_u32 s50, s49, {opts.get('nprobe', 2)*128}")
    A("s_mov_b32 s54, 0")
    g.lab(l)
    for c in range(2):
        A("s_xor_b32 s55, s49, 0x2000")
        A(f"s_mov_b32 s51, s{ST}"); A(f"s_mov_b32 s52, s{ST}")
        for q in ((0, 1), (1, 0))[c]: A(f"s_load_dword s{51+q}, s[42:43], s{(49, 55)[q]}")
        A("s_waitcnt lgkmcnt(1)")
        A(f"s_cmp_lg_u32 s52, s{ST}"); A("s_addc_u32 s54, s54, 0")
        A(f"s_cmp_lg_u32 s51, s{ST}"); A("s_subb_u32 s54, s54, 0")
        A("s_waitcnt lgkmcnt(0)")
        A("s_add_u32 s49, s49, 128")
    A("s_cmp_lt_u32 s49, s50"); A(f"s_cbranch_scc1 {l}")
    A("s_cmp_lg_u32 s54, 0"); A("s_cselect_b32 s53, 0, 2")
    A("s_cmp_gt_i32 s54, 0")
    A("s_cselect_b32 s54, 1, 0")
    A(f"s_sub_u32 s55, s{SXCC}, s{ST}"); A("s_lshr_b32 s55, s55, 2")
    A("s_xor_b32 s54, s54, s55"); A("s_and_b32 s54, s54, 1"); A("s_or_b32 s54, s54, s53")
    A(f"s_add_u32 s54, s54, s{ST}")
    A("s_lshl_b32 s55, s8, 3"); A("s_add_u32 s55, s55, s61"); A("s_lshl_b32 s55, s55, 5")
    A("v_mov_b32 v8, s55"); A(f"v_mov_b32 v10, s{SXCC}"); A("v_mov_b32 v11, s54")
    A("s_mov_b64 exec, 1")
    A(f"global_store_dwordx2 v8, v[10:11], s[42:43] offset:{WS_HDR} sc1")
    A("s_mov_b64 exec, -1")
    g.lab(e)
    A("s_mov_b32 s60, 1")
    A("s_branch L_svc1")

    def f1_lane_par(sp):
        A("v_lshrrev_b32 v2, 2, v1")
        A("v_mul_u32_u24 v2, 5504, v2")
        A("s_and_b32 s49, s5, 2")
        A(f"s_or_b32 s49, s49, {sp}")
        A("v_xor_b32 v3, s49, v1")
        A("v_and_b32 v3, 3, v3")
        A("v_lshl_add_u32 v2, v3, 4, v2")
    def f2_lane():
        A("v_lshrrev_b32 v2, 1, v1")
        A("v_lshlrev_b32 v2, 10, v2")
        A("v_and_b32 v3, 1, v1")
        A("v_lshl_add_u32 v2, v3, 4, v2")

    g.lab("L_r_f1")
    A("s_lshl_b32 s48, s61, 6")
    A("s_mul_i32 s49, s61, 47"); A("s_lshr_b32 s49, s49, 9")
    A(f"s_mul_i32 s49, s49, {16384-11*512}")
    A("s_lshl_b32 s58, s61, 9")
    A("s_add_u32 s58, s58, s49")
    A(f"s_add_u32 s58, s58, {WS_HH}")
    A("s_cmp_lt_u32 s5, 2")
    A("s_cselect_b32 s44, s28, s30")
    A("s_cselect_b32 s45, s29, s31")
    A(f"s_mov_b32 s46, {512*2752}"); A("s_mov_b32 s47, 0x20000")
    A("s_mov_b32 s60, 2")
    make_tag()
    A("s_branch L_svc1")

    g.lab("L_r_f2")
    srd(g, 44, 32, 1376*1024)
    make_tag()
    A("s_mov_b32 s60, 3")
    A("s_lshl_b32 s48, s61, 5")
    A("global_load_dword v167, v38, s[38:39]")
    A("s_branch L_svc1")

    g.lab("L_r_none")
    A("s_mov_b32 s60, 0")
    make_tag()

    g.lab("L_svc1")
    if opts.get("nohelp") == 2:
        A("s_endpgm")
    A("s_cmp_lg_u32 s5, 0")
    A("s_cbranch_scc1 L_disp3")
    A("s_and_b32 s64, s6, 31"); A("s_lshl_b32 s64, s64, 10")
    A("s_and_b32 s65, s6, 32"); A("s_lshl_b32 s65, s65, 1"); A("s_add_u32 s64, s64, s65")
    A(f"s_add_u32 s64, s64, {WS_Q}")
    A("v_bfe_u32 v16, v1, 2, 3")
    A("v_lshl_add_u32 v16, v16, 7, s64")
    A("v_and_b32 v17, 3, v1")
    A("v_lshl_add_u32 v16, v17, 4, v16")
    A("v_and_b32 v17, 31, v1")
    A("v_lshlrev_b32 v17, 3, v17")
    A("s_lshl_b32 s71, s8, 8")
    A("v_and_b32 v18, 7, v1")
    A("v_lshl_add_u32 v18, v18, 5, s71")
    poll_lds(g, [f"ds_read_b32 v8, v38 offset:{L_PG}"], [8], 9, 8)
    A(f"global_load_dword v19, v18, s[42:43] offset:{WS_HDR} sc1")
    poll_tagged(g, ["global_load_dwordx4 v[20:23], v16, s[42:43] sc1"], [21, 23], sleep=opts.get("qsleep", 0))
    A("v_mov_b32 v21, v22")
    A(f"ds_write_b64 v17, v[20:21] offset:{L_QV}")
    A(f"v_cmp_ne_u32 vcc, s{SXCC}, v19")
    A("s_cmp_eq_u64 vcc, 0")
    A(f"s_cselect_b32 s{SLOC}, 1, 0")
    if opts.get("nolocal"): A(f"s_mov_b32 s{SLOC}, 0")
    A(f"v_mov_b32 v20, s{ST}"); A(f"v_mov_b32 v21, s{SLOC}")
    A(f"ds_write_b64 v38, v[20:21] offset:{L_MB}")
    g.stamp(3)

    g.lab("L_svc2")
    if opts.get("nohelp") == 3: A("s_endpgm")
    A("v_lshlrev_b32 v16, 4, v1")
    A("s_lshl_b32 s64, s6, 9"); A(f"s_add_u32 s64, s64, {WS_ST}")
    A("s_lshl_b32 s65, s7, 7"); A("s_add_u32 s65, s65, s64")
    A("v_mov_b32 v18, s65")
    SR = [VA + 4 * i + k for i in range(8) for k in range(3)]
    poll_lds(g, [f"ds_read_b128 {vr(VA+4*i,4)}, v16 offset:{L_SC+1024*i}" for i in range(8)], SR, 8, 4)
    A(f"v_max3_f32 v8, v{SR[0]}, v{SR[1]}, v{SR[2]}")
    for i in range(3, 23, 2): A(f"v_max3_f32 v8, v8, v{SR[i]}, v{SR[i+1]}")
    A(f"v_max_f32 v8, v8, v{SR[23]}")
    wave_allreduce(g, "v_max_f32", 8, 11)
    A("v_min_u32 v9, s72, v8")
    A(f"ds_write_b32 v38, v9 offset:{L_ML}")
    for r in SR: A(f"v_sub_f32 v{r}, v{r}, v8")
    for r in SR: A(f"v_mul_f32 v{r}, 0x{LOG2E:08x}, v{r}")
    for r in SR: A(f"v_exp_f32 v{r}, v{r}")
    A("s_nop 0")
    for st in (12, 6, 3):
        for i in range(st): A(f"v_add_f32 v{SR[i]}, v{SR[i]}, v{SR[i+st]}")
    A(f"v_add_f32 v10, v{SR[0]}, v{SR[1]}")
    A(f"v_add_f32 v10, v10, v{SR[2]}")
    wave_allreduce(g, "v_add_f32", 10, 11)
    A(f"v_mov_b32 v9, s{ST}"); A(f"v_mov_b32 v11, s{ST}")
    A("s_mov_b64 exec, 1")
    pub_local(g, "global_store_dwordx4 v18, v[8:11], s[42:43]")
    A("s_mov_b64 exec, -1")
    g.stamp(4)

    g.lab("L_disp3")
    if opts.get("nohelp") in (3, 7): A("s_endpgm")
    for i in range(4): A(f"s_bfe_u32 s{62+i}, s{ST}, 0x{(8 << 16) | (8 * i):x}")
    RA = [14, 0, 2, 3]
    def rot_addrs():
        for j in (1, 2, 3, 0):
            A(f"s_add_u32 s49, s5, {j}"); A("s_and_b32 s49, s49, 3"); A("s_lshl_b32 s49, s49, 8")
            A(f"v_add_u32 v{RA[j]}, s49, v14")
    if opts.get("optouch", 1):
        e = g.uniq("opt")
        A("s_cmp_lg_u32 s5, 2"); A(f"s_cbranch_scc1 {e}")
        poll_lds(g, [f"ds_read_b32 v8, v38 offset:{L_ML}"], [8], 9, 32)
        A("s_lshl_b32 s56, s6, 2"); A("s_add_u32 s56, s56, s7")
        A("s_lshl_b32 s57, s56, 9"); A(f"s_add_u32 s57, s57, {WS_OP}")
        A("v_lshl_add_u32 v3, v1, 3, s57")
        A("global_load_dword v167, v3, s[42:43] sc1")
        g.lab(e)
    A("s_cmp_eq_u32 s60, 2"); A("s_cbranch_scc1 L_pre_f1")
    A("s_cmp_eq_u32 s60, 3"); A("s_cbranch_scc1 L_pre_f2")
    A("s_cmp_eq_u32 s60, 1"); A("s_cbranch_scc1 L_pre_wo")
    A("s_lshr_b32 s68, s14, 29"); A(f"s_mul_i32 s68, s68, {opts.get('xt', 1)}"); A("s_xor_b32 s68, s68, s8")
    A("s_lshl_b32 s68, s68, 3"); A("s_add_u32 s68, s68, L_gtab-L_pc2")
    A("s_load_dwordx2 s[100:101], s[100:101], s68")
    A("s_waitcnt lgkmcnt(0)")
    A("s_lshr_b32 s68, s14, 26"); A("s_lshl_b32 s68, s68, 2"); A("s_add_u32 s68, s68, s5"); A("s_and_b32 s68, s68, 31")
    A("s_and_b32 s69, s100, 0xffff"); A("s_lshr_b32 s100, s100, 16")
    A("v_and_b32 v12, 3, v1")
    A("v_lshl_add_u32 v12, v12, 7, s69")
    A("v_min_u32 v12, s100, v12")
    A("v_lshrrev_b32 v13, 2, v1")
    A("v_mul_u32_u24 v13, 2752, v13")
    A(f"s_mul_i32 s69, s68, {16*2752}")
    A("v_add3_u32 v12, v12, v13, s69")
    A("v_min_u32 v13, 42, v1")
    A(f"s_mul_i32 s68, s68, {43*1024}")
    A("s_add_u32 s68, s68, s101")
    A("v_lshl_add_u32 v13, v13, 10, s68")
    A("s_branch L_join")
    g.lab("L_pre_wo")
    hs_wait(g, 8, 9, 8)
    tr64_addr(g)
    tr_reads(g, 16, 4096, 2048, True)
    A("s_lshl_b32 s49, s5, 3"); A("s_add_u32 s49, s49, s66")
    A("s_lshl_b32 s50, s49, 9"); A(f"s_add_u32 s50, s50, {WS_ST}")
    A("v_lshrrev_b32 v12, 5, v1")
    A("v_lshl_add_u32 v15, v12, 14, s50")
    A("v_and_b32 v16, 3, v1")
    A("v_lshl_add_u32 v15, v16, 7, v15")
    poll_lds(g, [f"ds_read_b32 v8, v38 offset:{L_PS}"], [8], 9, 16)
    poll_tagged(g, ["global_load_dwordx4 v[16:19], v15, s[42:43] sc1"], [17, 19], sleep=opts.get("ssleep", 8))
    A("v_max_f32_dpp v10, v16, v16 quad_perm:[1,0,3,2] row_mask:0xf bank_mask:0xf")
    A("s_nop 1")
    A("v_max_f32_dpp v10, v10, v10 quad_perm:[2,3,0,1] row_mask:0xf bank_mask:0xf")
    A("v_sub_f32 v8, v16, v10")
    A(f"v_mul_f32 v8, 0x{LOG2E:08x}, v8")
    A("v_exp_f32 v8, v8")
    A("s_nop 0")
    A("v_mul_f32 v9, v18, v8")
    A("s_nop 1")
    A("v_add_f32_dpp v9, v9, v9 quad_perm:[1,0,3,2] row_mask:0xf bank_mask:0xf")
    A("s_nop 1")
    A("v_add_f32_dpp v9, v9, v9 quad_perm:[2,3,0,1] row_mask:0xf bank_mask:0xf")
    A("v_rcp_f32 v9, v9")
    A("s_nop 0")
    A("v_mul_f32 v8, v8, v9")
    A("s_nop 1")
    for i in range(4): A(f"v_mov_b32_dpp v{20+i}, v8 quad_perm:[{i},{i},{i},{i}] row_mask:0xf bank_mask:0xf")
    g.stamp(5)
    A("s_lshl_b32 s49, s49, 11")
    A(f"s_add_u32 s49, s49, {WS_OP}")
    A("v_lshrrev_b32 v12, 5, v1")
    A("v_and_b32 v16, 31, v1")
    A("v_lshlrev_b32 v15, 16, v12")
    A("v_lshl_add_u32 v15, v16, 4, v15")
    A("v_add_u32 v15, s49, v15")
    A(f"v_mul_u32_u24 v12, {ACT_BS}, v12")
    A("v_bfe_u32 v16, v1, 3, 2")
    A("v_lshl_add_u32 v12, v16, 6, v12")
    A("v_and_b32 v16, 3, v1")
    A("v_lshl_add_u32 v12, v16, 4, v12")
    A("v_bfe_u32 v16, v1, 2, 1")
    A("v_lshl_add_u32 v12, v16, 3, v12")
    A("s_lshl_b32 s49, s5, 8")
    A("v_add_u32 v12, s49, v12")
    act_addr(g, 14, L_ACT, ACT_BS)
    line_out_addr(13)
    A("v_add_u32 v37, 0x2000, v13")
    A("v_mov_b32 v36, 0xff")
    rot_addrs()
    A("s_branch L_join")

    adr = [15, 35, 32, 36, 33, 37, 34, 39]
    def ap_addrs():
        for i in range(1, 8): A(f"v_add_u32 v{adr[i]}, {(i >> 1) * 16384 + (i & 1) * 4096}, v15")
    def hdr_wave():
        e = g.uniq("hc")
        A("s_cmp_lg_u32 s5, 3"); A(f"s_cbranch_scc1 {e}")
        poll_lds(g, [f"ds_read_b32 v8, v38 offset:{L_QV}"], [8], 9, 32)
        check_votes(g, 10, VA)
        g.lab(e)
    def near_copy():
        poll_lds(g, [f"ds_read_b32 v11, v38 offset:{L_NR}"], [11], 9, 8)

    PG = VA + 32
    def pre_gather(addrs):
        poll_lds(g, [f"ds_read_b32 v8, v38 offset:{L_PS}"], [8], 9, 16)
        A("global_load_dwordx2 v[8:9], v31, s[16:17]")
        poll_tagged(g, [f"global_load_dwordx4 {vr(PG+4*i,4)}, v{a}, s[42:43] sc1" for i, a in enumerate(addrs)],
                    [PG + 1 + 2 * i for i in range(2 * len(addrs))], sleep=8)

    g.lab("L_pre_f1")
    hdr_wave()
    A("v_mov_b32 v31, v13")
    A("v_lshlrev_b32 v15, 4, v0")
    A(f"v_add_u32 v24, {WS_MOD+2*4096}, v15")
    A(f"v_add_u32 v25, {WS_MOD+3*4096}, v15")
    A(f"v_add_u32 v26, {WS_MOD+4*4096}, v15")
    near_copy()
    A(f"v_add_u32 v15, {WS_AP}, v15")
    A("v_add_u32 v15, v11, v15")
    ap_addrs()
    A("v_bfe_u32 v5, v1, 2, 1")
    A(f"v_mul_u32_u24 v5, {ACT_BS}, v5")
    A("v_lshrrev_b32 v3, 3, v0")
    A("v_lshl_add_u32 v5, v3, 5, v5")
    A("v_and_b32 v3, 3, v1")
    A("v_lshl_add_u32 v5, v3, 3, v5")
    A("v_and_b32 v14, 7, v1")
    A(f"v_mul_u32_u24 v14, {ACT_BS}, v14")
    A("v_lshrrev_b32 v3, 4, v1")
    A("v_lshl_add_u32 v14, v3, 4, v14")
    A("v_and_b32 v7, 1, v1")
    A(f"v_mul_u32_u24 v7, {ACT_BS}, v7")
    A("v_lshrrev_b32 v3, 1, v1")
    A("v_lshl_add_u32 v7, v3, 5, v7")
    A("v_and_b32 v13, 3, v1")
    A("v_lshlrev_b32 v13, 5, v13")
    A("v_bfe_u32 v3, v1, 4, 1")
    A("v_lshl_add_u32 v13, v3, 3, v13")
    A("s_lshl_b32 s49, s5, 7")
    A("s_add_u32 s49, s49, s58")
    A("v_add_u32 v13, s49, v13")
    A("v_lshrrev_b32 v3, 5, v1")
    A("v_lshl_add_u32 v13, v3, 4, v13")
    A("v_add_u32 v4, 0x2000, v13")
    E1 = 8
    if 1:
        A("s_and_b32 s54, s61, 1")
        A("s_mul_i32 s52, s54, -2"); A("s_add_u32 s52, s52, 1")
        A("s_mul_i32 s53, s52, 16384"); A("s_sub_u32 s53, s53, 8192")
        A("s_mul_i32 s52, s52, 2752"); A(f"s_sub_u32 s52, s52, {256*2752}")
        f1_lane_par("s54")
        A("v_mov_b32 v0, v2")
        A("v_lshrrev_b32 v6, 3, v1")
        A("v_lshlrev_b32 v6, 6, v6")
        A("v_bfe_u32 v3, v1, 2, 1")
        A("v_lshl_add_u32 v6, v3, 14, v6")
        A("v_and_b32 v8, 2, v1")
        A("v_or_b32 v3, v3, v8")
        A("v_xor_b32 v3, s5, v3")
        A("v_lshl_add_u32 v6, v3, 4, v6")
        A("v_lshl_add_u32 v6, v8, 14, v6")
        A("v_and_b32 v3, 1, v1")
        A("v_lshl_add_u32 v6, v3, 3, v6")
        A(f"v_add_u32 v6, {L_WT}, v6")
        A("s_and_b32 s55, s5, 1")
        A(f"s_mul_i32 s49, s55, {256*2752}")
        A("s_add_u32 s49, s49, s48")
        A("s_mul_i32 s50, s54, 2752"); A("s_add_u32 s49, s49, s50")
        A("s_lshr_b32 s50, s5, 1"); A("s_lshl_b32 s50, s50, 15")
        A("s_lshl_b32 s54, s54, 14"); A("s_add_u32 s50, s50, s54")
        A("s_lshl_b32 s55, s55, 13"); A("s_add_u32 s50, s50, s55")
        A(f"s_add_u32 s50, s50, {L_WT}")
    pre_gather([24, 25, 26])
    unpack4(g, 16, 8)
    unpack4(g, 20, PG, 2)
    unpack4(g, 28, PG+8, 2)
    for i in range(4): A(f"v_add_f32 v{28+i}, 1.0, v{28+i}")
    A("v_cvt_pk_bf16_f32 v8, v28, v29"); A("v_cvt_pk_bf16_f32 v9, v30, v31")
    A(f"v_mov_b32 v{PG+5}, v{PG+6}")
    A(f"ds_write_b64 v12, v[8:9] offset:{L_ACT+2*ACT_BS}")
    A(f"ds_write_b64 v12, {vr(PG+4,2)} offset:{L_ACT+4*ACT_BS}")
    for i in range(4): rnd(g, 28+i)
    for i in range(4): A(f"v_mul_f32 v{24+i}, v{20+i}, v{28+i}")
    for i in range(4): A(f"v_mul_f32 v{28+i}, v{16+i}, v{28+i}")
    A("s_branch L_join")

    g.lab("L_pre_f2")
    hdr_wave()
    A("v_and_b32 v12, 1, v1")
    A("v_lshrrev_b32 v14, 4, v1")
    A("s_lshl_b32 s49, s61, 5")
    A("v_lshl_add_u32 v3, v14, 3, s49")
    A("v_lshl_add_u32 v13, v12, 10, v3")
    A("v_mov_b32 v31, v13")
    A("v_lshlrev_b32 v15, 6, v12")
    A("v_lshl_add_u32 v15, v14, 4, v15")
    A("s_lshl_b32 s49, s61, 7")
    A("v_add_u32 v15, s49, v15")
    A(f"v_add_u32 v24, {WS_MOD+2*4096}, v15")
    A(f"v_add_u32 v25, {WS_MOD+5*4096}, v15")
    near_copy()
    A(f"v_add_u32 v15, {WS_AP}, v15")
    A("v_add_u32 v15, v11, v15")
    ap_addrs()
    A("s_lshl_b32 s49, s5, 14")
    A(f"s_add_u32 s49, s49, {WS_HH+2048}")
    A("v_lshl_add_u32 v28, v14, 7, s49")
    A("v_add_u32 v28, v11, v28")
    A("v_lshl_add_u32 v28, v12, 5, v28")
    A("v_and_b32 v3, 2, v1")
    A("v_lshl_add_u32 v28, v3, 3, v28")
    A("v_bfe_u32 v3, v1, 2, 2")
    A("v_lshl_add_u32 v28, v3, 9, v28")
    A("v_lshl_add_u32 v12, v14, 1, v12")
    A("v_lshlrev_b32 v12, 4, v12")
    A(f"v_add_u32 v12, {L_RED}, v12")
    A("s_lshl_b32 s49, s5, 7")
    A("v_add_u32 v30, s49, v12")
    f2_lane()
    A("v_mov_b32 v29, v2")
    A("v_lshlrev_b32 v6, 8, v14")
    A("v_bfe_u32 v3, v1, 2, 2")
    A("v_lshl_add_u32 v6, v3, 5, v6")
    A("v_and_b32 v3, 3, v1")
    A("v_lshl_add_u32 v6, v3, 3, v6")
    A("s_mul_i32 s49, s5, 11264")
    A(f"s_add_u32 s49, s49, {L_WT}")
    A("v_add_u32 v6, s49, v6")
    pre_gather([24, 25])
    if opts.get("apw", 1):
        e = g.uniq("apw")
        A("s_cmp_lg_u32 s5, 2"); A(f"s_cbranch_scc1 {e}")
        A("s_and_b32 s49, s61, 3"); A("s_lshl_b32 s49, s49, 14"); A(f"s_add_u32 s49, s49, {WS_AP}")
        A("v_lshl_add_u32 v3, v1, 7, s49")
        A("v_add_u32 v3, v11, v3")
        A("global_load_dword v167, v3, s[42:43] sc1")
        g.lab(e)
    unpack4(g, 16, 8)
    unpack4(g, 20, PG, 2)
    unpack4(g, 24, PG+4, 2)

    g.lab("L_join")
    if opts.get("nohelp") == 4:
        A("s_endpgm")
    A("s_waitcnt vmcnt(0) lgkmcnt(0)")
    g.stamp(9)
    A("s_barrier")
    g.stamp(6)
    g.tail = True
    g.stamp(9, 2)
    if opts.get("nohelp") == 5:
        A("s_cmp_lg_u32 s60, 0"); A("s_cbranch_scc1 L_fin")
    if opts.get("nohelp") == 6:
        A("s_cmp_gt_u32 s60, 1"); A("s_cbranch_scc1 L_fin")
    A("s_cmp_eq_u32 s60, 1"); A("s_cbranch_scc1 L_t_wo")
    A("s_cmp_eq_u32 s60, 2"); A("s_cbranch_scc1 L_t_f1")
    A("s_cmp_eq_u32 s60, 3"); A("s_cbranch_scc1 L_t_f2")
    g.C("pull a share of the FFN weights of this group into L2 (values unused)")
    if not opts.get("notouch"):
        A("global_load_dword v16, v12, s[28:29]")
        A("global_load_dword v17, v12, s[30:31]")
        A("global_load_dword v18, v13, s[32:33]")
    A("s_branch L_fin")

    def sum8p(src, dst):
        for p in range(4):
            for h in range(2): A(f"v_pk_add_f32 {vr(dst+8*p+2*h,2)}, {vr(src+8*p+2*h,2)}, {vr(src+8*p+4+2*h,2)}")
        sum8q(dst)
    def sum8q(dst):
        for i in range(2):
            for h in range(2): A(f"v_pk_add_f32 {vr(dst+16*i+2*h,2)}, {vr(dst+16*i+2*h,2)}, {vr(dst+16*i+8+2*h,2)}")
        for h in range(2): A(f"v_pk_add_f32 {vr(dst+2*h,2)}, {vr(dst+2*h,2)}, {vr(dst+16+2*h,2)}")
    def x1_from(S):
        for i in range(4): rnd(g, S+i)
        for i in range(4): A(f"v_mul_f32 v{S+i}, v{S+i}, v{20+i}")
        for i in range(4): rnd(g, S+i)
        for i in range(4): A(f"v_add_f32 v{16+i}, v{16+i}, v{S+i}")
        for i in range(4): rnd(g, 16+i)

    g.lab("L_t_wo")
    A("s_mov_b32 s70, 0")
    g.lab("L_wo_p")
    for i in range(4): A(f"global_load_dwordx4 {vr(VA+4*i,4)}, v15, s[42:43] offset:{512*i} sc1")
    for k in range(16):
        if k % 4 == 0: A(f"s_waitcnt vmcnt({3-k//4})")
        A(f"v_xor_b32 v{VA+k}, s{62+k%4}, v{VA+k}")
    for k in range(4): A(f"v_or3_b32 v{28+k}, v{VA+3*k}, v{VA+3*k+1}, v{VA+3*k+2}")
    A("v_or3_b32 v28, v28, v29, v30")
    A(f"v_or3_b32 v31, v31, v{VA+12}, v{VA+13}")
    A(f"v_or3_b32 v28, v28, v{VA+14}, v{VA+15}")
    A("v_or_b32 v28, v28, v31")
    A("v_lshlrev_b32 v28, 24, v28")
    A("v_cmp_ne_u32 vcc, 0, v28")
    for i in range(4):
        for h in range(2):
            f = f"{vr(20+(i&2),2)}"; sel = f"op_sel:[0,{i&1},0] op_sel_hi:[1,{i&1},1]"
            if i == 0: A(f"v_pk_mul_f32 {vr(16+2*h,2)}, {vr(VA+2*h,2)}, {f} op_sel:[0,0] op_sel_hi:[1,0]")
            else: A(f"v_pk_fma_f32 {vr(16+2*h,2)}, {vr(VA+4*i+2*h,2)}, {f}, {vr(16+2*h,2)} {sel}")
    spin_tail(g, "L_wo_p", "L_wo_ok", 0)
    g.stamp(7); g.stamp(1, 2)
    A(f"v_cvt_pk_bf16_f32 v16, v16, v17")
    A(f"v_cvt_pk_bf16_f32 v17, v18, v19")
    A(f"ds_write_b64 v12, v[16:17] offset:{L_ACT}")
    wrd = lambda m: A(f"ds_read_b128 {vr(VA+4*m,4)}, v{RA[m//4]} offset:{L_ACT+64*(m%4)}")
    wmf = lambda m: A(f"v_mfma_f32_16x16x32_bf16 v[8:11], {vr(VW+4*m,4)}, {vr(VA+4*m,4)}, " + ("0" if m == 0 else "v[8:11]"))
    for m in range(4): wrd(m)
    A("s_waitcnt lgkmcnt(4)")
    g.stamp(2, 2)
    A("s_barrier")
    g.stamp(3, 2)
    for m in range(4, 8): wrd(m)
    if opts.get("stamps") == 2: A("s_waitcnt lgkmcnt(0)")
    A("s_waitcnt lgkmcnt(4)")
    for m in range(4):
        wmf(m); wrd(8 + 2*m); wrd(9 + 2*m)
    for m in range(4, 16):
        A(f"s_waitcnt lgkmcnt({15-m})")
        wmf(m)
    A("s_nop 5")
    for x in EX8: A(x)
    g.stamp(4, 2)
    for i in range(4):
        A(f"v_bfi_b32 v{8+i}, v36, s{62+i}, v{8+i}")
    A("global_store_dwordx4 v13, v[8:11], s[42:43] sc1")
    A("global_store_dwordx4 v37, v[8:11], s[42:43] sc1")
    g.stamp(2); g.stamp(7, 2)
    A("s_branch L_fin")

    g.lab("L_t_f1")
    def pair_loads():
        for p in range(4):
            l = g.uniq("fl")
            A(f"s_bitcmp1_b32 s71, {p}"); A(f"s_cbranch_scc0 {l}")
            for i in (2*p, 2*p+1): A(f"global_load_dwordx4 {vr(VA+4*i,4)}, v{adr[i]}, s[42:43] sc1")
            g.lab(l)
    def pair_checks():
        S = VA + 32
        A("s_waitcnt vmcnt(0)")
        for p in range(4):
            l = g.uniq("fc")
            A(f"s_bitcmp1_b32 s71, {p}"); A(f"s_cbranch_scc0 {l}")
            B_ = VA + 8 * p
            for k in range(8): A(f"v_xor_b32 v{B_+k}, s{62+k%4}, v{B_+k}")
            A(f"v_or3_b32 v8, v{B_}, v{B_+1}, v{B_+2}")
            A(f"v_or3_b32 v9, v{B_+3}, v{B_+4}, v{B_+5}")
            A(f"v_or3_b32 v8, v8, v{B_+6}, v{B_+7}")
            for h in range(2): A(f"v_pk_add_f32 {vr(S+8*p+2*h,2)}, {vr(B_+2*h,2)}, {vr(B_+4+2*h,2)}")
            A("v_or_b32 v8, v8, v9")
            A("v_lshlrev_b32 v8, 24, v8")
            A("v_cmp_ne_u32 vcc, 0, v8")
            A("s_cmp_lg_u64 vcc, 0"); A(f"s_cbranch_scc1 {l}")
            A(f"s_bitset0_b32 s71, {p}")
            g.lab(l)
    FFL = opts.get("fflags", "").replace("_", " ")
    S = VA + 32
    A("v_mov_b32 v2, v0")
    dma_loop(g, 8, 32*2752, FFL)
    A("v_xor_b32 v2, 16, v2")
    A("s_add_u32 s49, s49, s52")
    A("s_add_u32 s50, s50, s53")
    dma_loop(g, 8, 32*2752, FFL)
    A("v_mov_b32 v2, v6")
    A("s_waitcnt vmcnt(0)")
    A("s_barrier")
    for i in range(8): A(f"global_load_dwordx4 {vr(VA+4*i,4)}, v{adr[i]}, s[42:43] sc1")
    tr_reads(g, 16, 1024, 512, True)
    rot_addrs()
    g.stamp(1)
    A("s_mov_b32 s70, 0")
    A("s_mov_b32 s71, 15")
    A("s_branch L_f1_c")
    if 1:
        def ap_check():
            for k in range(32): A(f"v_xor_b32 v{S+k}, s{62+k%4}, v{VA+k}")
            for p in range(4): A(f"v_or3_b32 v{8+p}, v{S+8*p}, v{S+8*p+1}, v{S+8*p+2}")
            for p in range(4): A(f"v_or3_b32 v{8+p}, v{8+p}, v{S+8*p+3}, v{S+8*p+4}")
            for p in range(4): A(f"v_or3_b32 v{8+p}, v{8+p}, v{S+8*p+5}, v{S+8*p+6}")
            for p in range(4): A(f"v_or_b32 v{8+p}, v{8+p}, v{S+8*p+7}")
            A("v_or3_b32 v3, v8, v9, v10")
            A("v_or_b32 v3, v3, v11")
            A("v_lshlrev_b32 v3, 24, v3")
            A("v_cmp_ne_u32 vcc, 0, v3")
        g.lab("L_f1_p")
        A("s_add_u32 s70, s70, 1")
        A(f"s_cmp_ge_u32 s70, {SPIN_MAX}")
        A("s_cbranch_scc1 L_f1_ok")
        pair_loads()
        g.lab("L_f1_c")
        pair_checks()
        A("s_cmp_lg_u32 s71, 0")
        A("s_cbranch_scc1 L_f1_p")
        g.lab("L_f1_ok")
        sum8q(S)
    g.stamp(7); g.stamp(1, 2)
    if 1:
        for h in range(2): A(f"v_pk_fma_f32 {vr(8+2*h,2)}, {vr(S+2*h,2)}, {vr(24+2*h,2)}, {vr(28+2*h,2)}")
        A("v_cvt_pk_bf16_f32 v8, v8, v9")
        A("v_cvt_pk_bf16_f32 v9, v10, v11")
        A(f"ds_write_b64 v12, v[8:9] offset:{L_ACT}")
        q = []
        def rd(m): A(f"ds_read_b128 {vr(VA+4*m,4)}, v{RA[m//4]} offset:{L_ACT+64*(m%4)}"); q.append(("r", m))
        def need(op):
            i = q.index(op); A(f"s_waitcnt lgkmcnt({len(q)-1-i})"); del q[:i+1]
        for m in range(4): rd(m)
        for h in range(2): A(f"v_pk_fma_f32 {vr(16+2*h,2)}, {vr(S+2*h,2)}, {vr(20+2*h,2)}, {vr(16+2*h,2)}")
        A("v_pk_mul_f32 v[10:11], v[16:17], v[16:17]")
        A("v_pk_add_f32 v[20:21], v[16:17], v[18:19]")
        A("v_pk_fma_f32 v[10:11], v[18:19], v[18:19], v[10:11]")
        A("v_add_f32 v20, v20, v21")
        A("v_add_f32 v21, v10, v11")
        A(f"ds_write_b64 v5, v[20:21] offset:{L_SC}")
        A("s_waitcnt lgkmcnt(0)"); del q[:]
        g.stamp(2, 2)
        A("s_barrier")
        g.stamp(3, 2)
        for m in range(4, 8): rd(m)
        A(f"ds_read_b128 v[20:23], v7 offset:{L_SC}"); q.append(("s", 0))
        A(f"ds_read_b128 v[24:27], v7 offset:{L_SC+16}"); q.append(("s", 1))
        DF = 32
        dpp = lambda r, mod: f"v_add_f32_dpp v{r}, v{r}, v{r} {mod} row_mask:0xf bank_mask:0xf"
        fill = {5: ["S", "v_pk_add_f32 v[20:21], v[20:21], v[22:23]", "v_pk_add_f32 v[24:25], v[24:25], v[26:27]"],
                6: ["v_pk_add_f32 v[20:21], v[20:21], v[24:25]", "s_nop 0"],
                7: [dpp(20, "quad_perm:[2,3,0,1]"), dpp(21, "quad_perm:[2,3,0,1]")],
                8: [dpp(20, "row_ror:4"), dpp(21, "row_ror:4")],
                9: [dpp(20, "row_ror:8"), dpp(21, "row_ror:8")],
                10: ["v_mov_b32 v22, v20", "v_mov_b32 v23, v21"],
                11: ["v_permlane16_swap_b32 v22, v20", "v_permlane16_swap_b32 v23, v21"],
                12: ["v_add_f32 v20, v20, v22", "v_add_f32 v21, v21, v23", "v_mov_b32 v22, v20", "v_mov_b32 v23, v21"],
                13: ["v_permlane32_swap_b32 v22, v20", "v_permlane32_swap_b32 v23, v21"],
                14: ["v_add_f32 v20, v20, v22", "v_add_f32 v21, v21, v23"],
                15: [f"v_mul_f32 v20, 0x{f2u(-1/512):08x}, v20", f"v_mul_f32 v21, 0x{f2u(1/512):08x}, v21",
                     "v_fma_f32 v21, -v20, v20, v21", "v_max_f32 v21, 0, v21", f"v_add_f32 v21, 0x{EPS:08x}, v21", "v_rsq_f32 v21, v21",
                     "s_nop 1"]}
        for m in range(16):
            if ("r", m) in q: need(("r", m))
            c = "0" if m == 0 else vr(DF, 4)
            A(f"v_mfma_f32_16x16x32_bf16 {vr(DF,4)}, {vr(VW+4*m,4)}, {vr(VA+4*m,4)}, {c}")
            if m < 4: rd(8 + 2*m); rd(9 + 2*m)
            for t in fill.get(m, []):
                if t == "S": need(("s", 1))
                else: A(t)
        g.stamp(5, 2)
        for i in range(4): A(f"v_fmac_f32_dpp v{DF+i}, v{DF+i}, v20 row_shl:2 row_mask:0xf bank_mask:0x1")
        for i in range(4): A(f"v_mul_f32 v{8+i}, v{DF+i}, v21")
        for i in range(4): A(f"v_add_f32_dpp v{8+i}, v{DF+i}, v{8+i} row_shl:4 row_mask:0xf bank_mask:0xf")
        A("s_mov_b32 s50, 0x000f000f")
        A("s_mov_b32 s51, 0x000f000f")
        A("v_permlane32_swap_b32 v8, v10")
        A("v_permlane32_swap_b32 v9, v11")
        for i in range(2): A(f"v_mul_f32 v{20+i}, 0x{LOG2E ^ 0x80000000:08x}, v{8+i}")
        for i in range(2): A(f"v_exp_f32 v{20+i}, v{20+i}")
        for i in range(2): A(f"v_mul_f32 v{8+i}, v{8+i}, v{10+i}")
        for i in range(2): A(f"v_add_f32 v{20+i}, 1.0, v{20+i}")
        for i in range(2): A(f"v_rcp_f32 v{20+i}, v{20+i}")
        A("s_mov_b64 exec, s[50:51]")
        for i in range(2): A(f"v_mul_f32 v{8+i}, v{8+i}, v{20+i}")
        A("v_cvt_pk_bf16_f32 v8, v8, v9")
        A(f"v_mov_b32 v9, s{ST}")
        A("global_store_dwordx2 v13, v[8:9], s[42:43] sc1")
        A("global_store_dwordx2 v4, v[8:9], s[42:43] sc1")
        g.stamp(2); g.stamp(7, 2)
        A("s_branch L_fin")

    g.lab("L_t_f2")
    def f2_dma():
        A("v_mov_b32 v2, v29")
        A("s_and_b32 s59, s61, 3"); A("s_mul_i32 s59, s59, 3072")
        for part in range(2):
            A(f"s_mul_i32 s49, s5, {11*32*1024}")
            A("s_add_u32 s49, s49, s48")
            A("s_mul_i32 s50, s5, 11264")
            A(f"s_add_u32 s50, s50, {L_WT}")
            if part == 0:
                A("s_lshl_b32 s52, s59, 5")
                A("s_add_u32 s49, s49, s52")
                A("s_add_u32 s50, s50, s59")
                A("s_sub_u32 s52, 11264, s59")
                dma_loop(g, "s52", 32*1024, FFL)
            else:
                dma_loop(g, "s59", 32*1024, FFL)
    f2_dma()
    A("v_mov_b32 v2, v6")
    A("s_mov_b32 s50, 0x00030003"); A("s_mov_b32 s51, 0x00030003")
    A("s_mov_b32 s53, 0x0fff0fff")
    A("s_cmp_eq_u32 s5, 3")
    A("s_cselect_b32 s52, 0x00ff00ff, s53")
    A("s_mov_b32 s53, s52")
    def ap_loads():
        A("s_mov_b64 exec, s[50:51]")
        for i in range(8): A(f"global_load_dwordx4 {vr(VA+4*i,4)}, v{adr[i]}, s[42:43] sc1")
    A("s_cmp_lg_u32 s5, 0")
    A("s_cbranch_scc1 L_f2_w")
    ap_loads()
    A("s_mov_b64 exec, -1")
    A("s_waitcnt vmcnt(8)")
    A("s_branch L_f2_w2")
    g.lab("L_f2_w")
    A("s_waitcnt vmcnt(0)")
    g.lab("L_f2_w2")
    tr_reads(g, 11, 1024, 128)
    g.stamp(1)
    e = g.uniq("f2x")
    A("s_cmp_lg_u32 s5, 0")
    A(f"s_cbranch_scc1 {e}")
    A("s_mov_b32 s70, 0")
    A("s_mov_b64 exec, s[50:51]")
    A("s_branch L_f2_ac")
    g.lab("L_f2_a")
    ap_loads()
    g.lab("L_f2_ac")
    A("s_waitcnt vmcnt(0)")
    ap_check()
    spin_tail(g, "L_f2_a", "L_f2_ad", 2)
    A("s_mov_b64 exec, -1")
    sum8p(S, S)
    x1_from(S)
    g.lab(e)
    for i in range(4): A(f"v_mov_b32 v{VA+8+i}, 0")
    DD = VA + 16
    A("s_mov_b32 s70, 0")
    g.lab("L_f2_p")
    A(f"global_load_dwordx4 {vr(VA,4)}, v28, s[42:43] offset:-2048 sc1")
    A(f"global_load_dwordx4 {vr(VA+4,4)}, v28, s[42:43] sc1")
    A("s_mov_b64 exec, s[52:53]")
    A(f"global_load_dwordx4 {vr(VA+8,4)}, v28, s[42:43] offset:2048 sc1")
    A("s_mov_b64 exec, -1")
    def mf(m):
        j, mp = divmod(m, 4)
        c = "0" if j == 0 else vr(DD+4*mp, 4)
        A(f"v_mfma_f32_16x16x32_bf16 {vr(DD+4*mp,4)}, {vr(VW+4*m,4)}, {vr(VA+4*j,4)}, {c}")
    for j in range(3):
        A(f"s_waitcnt vmcnt({2-j})")
        A(f"v_xor_b32 v{VA+4*j+1}, s{ST}, v{VA+4*j+1}")
        A(f"v_xor_b32 v{VA+4*j+3}, s{ST}, v{VA+4*j+3}")
    A(f"v_or3_b32 v31, v{VA+1}, v{VA+3}, v{VA+5}")
    A(f"v_or_b32 v3, v{VA+9}, v{VA+11}")
    A(f"v_or_b32 v31, v{VA+7}, v31")
    A("v_cmp_ne_u32 s[68:69], 0, v3")
    A("v_cmp_ne_u32 vcc, 0, v31")
    for j in range(3):
        for h in range(2): A(f"v_mov_b32_dpp v{VA+4*j+2*h+1}, v{VA+4*j+2*h} quad_perm:[2,3,2,3] row_mask:0xf bank_mask:0xf")
    A("s_and_b64 s[68:69], s[68:69], s[52:53]")
    A("s_or_b64 vcc, vcc, s[68:69]")
    for m in range(4): mf(m)
    spin_tail(g, "L_f2_p", "L_f2_ok", 0)
    for m in range(4, 11): mf(m)
    A("s_nop 6")
    for i in range(4): A(f"v_add_f32_dpp v{8+i}, v{DD+4+i}, v{DD+i} row_shl:4 row_mask:0xf bank_mask:0xf")
    for i in range(4): A(f"v_add_f32_dpp v{DD+8+i}, v{DD+12+i}, v{DD+8+i} row_shl:4 row_mask:0xf bank_mask:0xf")
    for i in range(4): A(f"v_add_f32_dpp v{8+i}, v{DD+8+i}, v{8+i} row_shl:8 row_mask:0xf bank_mask:0xf")
    A("s_mov_b64 exec, s[50:51]")
    g.stamp(7); g.stamp(1, 2)
    A("ds_write_b128 v30, v[8:11]")
    A("s_waitcnt lgkmcnt(0)")
    g.stamp(2, 2)
    A("s_barrier")
    g.stamp(3, 2)
    A("s_cmp_lg_u32 s5, 0")
    A("s_cbranch_scc1 L_fin")
    for i in range(3):
        A(f"ds_read_b128 {vr(VA+4*i,4)}, v12 offset:{128*(i+1)}")
    A("s_waitcnt lgkmcnt(2)")
    for h in range(2): A(f"v_pk_add_f32 {vr(8+2*h,2)}, {vr(8+2*h,2)}, {vr(VA+2*h,2)}")
    A("s_waitcnt lgkmcnt(0)")
    for h in range(2): A(f"v_pk_add_f32 {vr(VA+4+2*h,2)}, {vr(VA+4+2*h,2)}, {vr(VA+8+2*h,2)}")
    for h in range(2): A(f"v_pk_add_f32 {vr(8+2*h,2)}, {vr(8+2*h,2)}, {vr(VA+4+2*h,2)}")
    for h in range(2): A(f"v_pk_fma_f32 {vr(8+2*h,2)}, {vr(8+2*h,2)}, {vr(24+2*h,2)}, {vr(16+2*h,2)}")
    A("v_cvt_pk_bf16_f32 v8, v8, v9")
    A("v_cvt_pk_bf16_f32 v9, v10, v11")
    A("global_store_dwordx2 v13, v[8:9], s[38:39]")
    A("s_mov_b64 exec, 1")
    A("s_cmp_lg_u32 s61, 0")
    A("s_cbranch_scc1 L_noep")
    A(f"v_mov_b32 v10, s{ST}")
    A(f"global_store_dword v38, v10, s[42:43] offset:{WS_E}")
    if opts.get("amp"):
        A("s_waitcnt vmcnt(0)")
        A("s_memrealtime s[66:67]"); A("s_waitcnt lgkmcnt(0)")
        A("s_sub_u32 s66, s66, s78"); A(f"s_mul_i32 s66, s66, {opts['amp']}")
        g.lab("L_xa")
        A("s_sleep 1")
        A("s_memrealtime s[64:65]"); A("s_waitcnt lgkmcnt(0)")
        A("s_sub_u32 s64, s64, s78"); A("s_cmp_lt_u32 s64, s66"); A("s_cbranch_scc1 L_xa")
    g.lab("L_noep")
    g.stamp(2); g.stamp(7, 2)

    g.lab("L_fin")
    if opts.get("stamps"):
        A("s_mov_b64 exec, -1")
        A("s_waitcnt vmcnt(0)")
        g.stamp(8)
        A(f"s_cmp_lg_u32 s5, {opts.get('swave', 0)}")
        A("s_cbranch_scc1 L_end")
        A("s_lshl_b32 s3, s2, 7")
        A(f"s_add_u32 s3, s3, {WS_STAMP}")
        A("v_mov_b32 v2, s3")
        A("s_waitcnt lgkmcnt(0)")
        for i in (range(10) if opts["stamps"] != 3 else (0, 6, 8)):
            A(f"v_mov_b32 v3, s{80+2*i}")
            A(f"global_store_dword v2, v3, s[42:43] offset:{4*i}")
        A(f"v_mov_b32 v3, s{SLOC}")
        A(f"global_store_dword v2, v3, s[42:43] offset:40")
        if opts.get("dbgt"):
            A("s_lshr_b32 s3, s2, 3"); A(f"s_cmp_lg_u32 s3, {opts['dbgt']}"); A("s_cbranch_scc1 L_end")
            A("s_lshl_b32 s3, s8, 2"); A("v_mov_b32 v2, s3")
            A("s_and_b32 s80, s80, 0xffff"); A("s_and_b32 s92, s92, 0xffff")
            A("s_getreg_b32 s3, hwreg(HW_REG_XCC_ID, 0, 4)"); A("s_mul_i32 s3, s3, 100000"); A("s_add_u32 s80, s80, s3")
            A("v_mov_b32 v3, s80"); A("global_store_dword v2, v3, s[40:41]")
            A("v_mov_b32 v3, s92"); A("global_store_dword v2, v3, s[40:41] offset:32")
    g.lab("L_end")
    A("s_endpgm")
    g.L.append(".p2align 7")
    g.lab("L_table")
    for w in range(0, 256, 8):
        A(".long " + ", ".join(f"0x{RM[v][0] | (RM[v][1] << 3) | (SP[v][1] << 9) | (SP[v][0] << 16) | (RK[v] << 26):08x}" for v in range(w, w + 8)))
    g.lab("L_gtab")
    for x in range(8):
        f1 = sorted(t for w, (r, t) in enumerate(RM) if r == C_F1 and w % 8 == x)
        f2 = sorted(set(t // 4 for w, (r, t) in enumerate(RM) if r == C_F2 and w % 8 == x))
        assert f1 == list(range(f1[0], f1[0] + len(f1))) and len(f1) <= 7 and len(f2) == 1
        A(f".long 0x{64*f1[0] | ((64*(f1[-1]+1)-4) << 16):08x}, 0x{128*f2[0]:08x}")
    g.L.append(f'''.section .rodata,"a"
.p2align 6
.amdhsa_kernel {KNAME}
  .amdhsa_next_free_vgpr 168
  .amdhsa_next_free_sgpr 102
  .amdhsa_accum_offset 168
  .amdhsa_group_segment_fixed_size 0
  .amdhsa_kernarg_size 112
  .amdhsa_user_sgpr_count 2
  .amdhsa_user_sgpr_kernarg_segment_ptr 1
  .amdhsa_system_sgpr_workgroup_id_x 1
.end_amdhsa_kernel''')
    return "\n".join(g.L) + "\n"

if __name__ == "__main__":
    import json, os
    here = os.path.dirname(os.path.abspath(__file__))
    opts = {"ref": os.path.join(here, "..", KNAME[:-7] + ".s.ref")}
    out = sys.argv[1]
    for kv in sys.argv[2:]:
        k, v = kv.split("=")
        try: v = int(v)
        except ValueError: pass
        opts[k] = v
    open(out, "w").write(gen(opts))
```
